```python
import torch

def _softmax(x, axis=-1):
    return torch.softmax(x, dim=axis)
def _gelu(x):
    return torch.nn.functional.gelu(x, approximate="tanh")
def _silu(x):
    return torch.nn.functional.silu(x)
def _sigmoid(x):
    return torch.sigmoid(x)
def _layernorm(x, axis=-1, eps=1e-5):
    m = x.mean(dim=axis, keepdim=True)
    v = x.var(dim=axis, keepdim=True, unbiased=False)
    return (x - m) / torch.sqrt(v + eps)
def _scatter_add(tgt, idx, src, axis=0):
    return tgt.clone().index_add_(axis, idx, src)
def _segment_sum(src, seg, n):
    out = torch.zeros((n,) + src.shape[1:], dtype=src.dtype)
    return out.index_add_(0, seg, src)
def _pad(x, pw):
    flat = tuple(v for pair in reversed(pw) for v in pair)
    return torch.nn.functional.pad(x, flat)

kernel_name = 'standalone__gqa_softmax__near_ridge'

def setup_inputs():

    _w = (lambda a: (lambda t: t.to(torch.bfloat16) if t.is_floating_point() else t)(torch.as_tensor(a)))
    B, Hq, Hkv, Sq, Sk, D = 8, 32, 32, 768, 512, 192
    return {
        "q": _w((lambda *s: torch.randn(*s, dtype=torch.bfloat16) * 0.8)(B, Hq, Sq, D)),
        "k": _w((lambda *s: torch.randn(*s, dtype=torch.bfloat16) * 0.8)(B, Hkv, Sk, D)),
        "v": _w((lambda *s: torch.randn(*s, dtype=torch.bfloat16) * 0.05)(B, Hkv, Sk, D)),
    }

def reference(q, k, v):
    B, Hq, Sq, D = q.shape
    Hkv = k.shape[1]
    rep = Hq // Hkv
    k = (lambda x, n, axis: torch.repeat_interleave(x, n, dim=axis))(k, rep, axis=1)
    v = (lambda x, n, axis: torch.repeat_interleave(x, n, dim=axis))(v, rep, axis=1)
    scale = D ** -0.5
    scores = torch.einsum("bhqd,bhkd->bhqk", q, k) * scale
    p = _softmax(scores, axis=-1)
    return torch.einsum("bhqk,bhkd->bhqd", p, v)
```

```python
import re

def regs(spec):
    m = re.fullmatch(r"([vas])\[(\d+):(\d+)\]", spec)
    if m:
        return [f"{m.group(1)}{i}" for i in range(int(m.group(2)), int(m.group(3)) + 1)]
    return [spec]

def R(kind, lo, n=1):
    return f"{kind}{lo}" if n == 1 else f"{kind}[{lo}:{lo+n-1}]"

class I:
    def __init__(s, text, kind, rd=(), wr=(), **kw):
        s.text = text; s.kind = kind
        s.rd = [r for x in rd for r in regs(x)]
        s.wr = [r for x in wr for r in regs(x)]
        s.srcc = []
        s.__dict__.update(kw)
    def __repr__(s): return s.text

def mfma(d, a, b, c):
    i = I(f"v_mfma_f32_16x16x32_bf16 {d}, {a}, {b}, {c}", "M", [a, b] + ([c] if c != "0" else []), [d])
    i.srcc = regs(c) if c != "0" else []
    i.ab = regs(a) + regs(b)
    return i

def _isreg(x): return re.fullmatch(r"-?[vas](\d+|\[\d+:\d+\])|vcc|m0|exec", x) is not None

def valu(op, d, *src, kind="V", extra="", rmw=False):
    rd = [x.lstrip("-") for x in src if _isreg(x)]
    if rmw: rd.append(d)
    return I(f"{op} {d}, {', '.join(src)}{extra}", kind, rd, [d])

def swap(op, a, b):
    return I(f"{op} {a}, {b}", "V", [a, b], [a, b], perm=True)

def salu(text, rd=(), wr=()):
    return I(text, "S", rd, wr)

def sop(op, d, *src):
    rd = [x for x in src if _isreg(x)]
    return I(f"{op} {d}, {', '.join(src)}", "S", rd, [d])

def nop(n): return I(f"s_nop {n}", "S", nops=n + 1)

def waitcnt(vm=None, lgkm=None):
    t = "s_waitcnt" + (f" vmcnt({vm})" if vm is not None else "") + (f" lgkmcnt({lgkm})" if lgkm is not None else "")
    return I(t, "S", vm=vm, lgkm=lgkm, wait=True)

def ds_read(op, d, addr, off):
    assert 0 <= off < 65536, off
    return I(f"{op} {d}, {addr} offset:{off}", "D", [addr], [d])

def ds_write(op, addr, data, off):
    assert 0 <= off < 65536, off
    return I(f"{op} {addr}, {data} offset:{off}", "W", [addr, data], [])

def dma(voff, srd, soff, off, pol="", tag=None):
    return I(f"buffer_load_dwordx4 {voff}, {srd}, {soff} offen offset:{off}{pol} lds", "G", [voff, srd, soff, "m0"], [], dma=True, tag=tag)

def gstore(data, voff, srd, soff, off, pol="", tag=None):
    return I(f"buffer_store_dwordx4 {data}, {voff}, {srd}, {soff} offen offset:{off}{pol}", "G", [data, voff, srd, soff], [], store=True, tag=tag, sdata=regs(data))

def gload(d, voff, srd, soff, off, pol="", tag=None):
    return I(f"buffer_load_dwordx4 {d}, {voff}, {srd}, {soff} offen offset:{off}{pol}", "G", [voff, srd, soff], [d], tag=tag)

def label(name): return I(f"{name}:", "L")

def check(trace, name=""):
    probs = []
    pos = 0
    lastw = {}
    lastc = {}
    laststore = {}
    lg = []
    vm = []
    pend = {}
    for ins in trace:
        if ins.kind == "L": continue
        def dist(p): return pos - p - 1
        isv = ins.kind in "VE"
        for r in ins.rd:
            if r in pend: probs.append(f"{name}: {ins} reads {r} pending from {pend[r]}")
            if r in lastw:
                p, w = lastw[r]
                need = 0
                if w.kind in "VE" and ins.kind == "M": need = 2
                if w.kind == "M":
                    if ins.kind == "M":
                        if r in ins.ab: need = 8
                        elif ins.srcc == w.wr: need = 0
                        else: need = 6
                    else: need = 8
                if w.kind == "E" and ins.kind == "V": need = max(need, 1)
                if w.kind in "VE" and getattr(ins, "perm", False): need = max(need, 2)
                if w.kind in "VE" and (r[0] == "s" or r == "vcc"):
                    need = max(need, 5 if ins.kind == "G" else (2 if isv else 0))
                if w.kind in "VE" and "readfirstlane" in ins.text: need = max(need, 1)
                if r == "m0" and ins.kind == "G": need = max(need, 1)
                if dist(p) < need: probs.append(f"{name}: RAW {w} -> {ins} dist {dist(p)} < {need}")
        for r in ins.wr:
            if r in pend and ins.kind != "D": probs.append(f"{name}: {ins} writes {r} pending from {pend[r]}")
            if r in lastw:
                p, w = lastw[r]
                if w.kind == "M" and ins.kind != "M" and dist(p) < 8: probs.append(f"{name}: WAW {w} -> {ins} dist {dist(p)}")
                if w.kind == "M" and ins.kind == "M" and ins.srcc != w.wr and dist(p) < 6: probs.append(f"{name}: WAW(M) {w} -> {ins} dist {dist(p)}")
            if isv and r in lastc and dist(lastc[r]) < 3: probs.append(f"{name}: WAR srcC -> {ins}")
            if r in laststore and dist(laststore[r]) < 2: probs.append(f"{name}: WAR store data -> {ins}")
        if getattr(ins, "wait", False):
            if ins.lgkm is not None:
                while len(lg) > ins.lgkm:
                    x = lg.pop(0)
                    for r in x.wr:
                        if pend.get(r) is x: del pend[r]
            if ins.vm is not None:
                while len(vm) > ins.vm:
                    x = vm.pop(0)
                    for r in x.wr:
                        if pend.get(r) is x: del pend[r]
        if ins.kind in "DW":
            lg.append(ins)
            for r in ins.wr: pend[r] = ins
        if ins.kind == "G":
            vm.append(ins)
            for r in ins.wr: pend[r] = ins
            for r in getattr(ins, "sdata", []): laststore[r] = pos
        for r in ins.wr: lastw[r] = (pos, ins)
        for r in ins.srcc: lastc[r] = pos
        pos += getattr(ins, "nops", 1)
    return probs
```

```python
import sys, struct, math
from asmlib import *

NAME = "standalone__gqa_softmax__near_ridge_kernel"
def f2h(x): return "0x%08x" % struct.unpack("<I", struct.pack("<f", x))[0]
CSCALE = (192 ** -0.5) * math.log2(math.e)

class Cfg:
    polkv = ""; polq = ""; polo = ""
    stamps = False
    thresh = 2.0 ** 64
    def __init__(s, **kw): s.__dict__.update(kw)

def Oreg(qb, b): return R("v", (qb * 11 + b) * 4, 4) if b < 11 else R("a", 192 + 4 * qb, 4)
SB = 176; PB = 208
def Sreg(qb, kb): return R("v", SB + qb * 8 + kb * 4, 4)
def Se(qb, e): return f"v{SB + qb * 8 + e}"
def Preg(qb): return R("v", PB + 4 * qb, 4)
KA = ["v224", "v225"]; VA = ["v226", "v227", "v228", "v229"]; VOFF = "v230"; VDR = "v231"
MC = [f"v{232+i}" for i in range(4)]; LS = [f"v{236+i}" for i in range(4)]; LSV = [f"v{240+i}" for i in range(4)]
QA = ["v244", "v245"]; OW = ["v246", "v247", "v248", "v249"]; VDR0 = "v250"
T = [f"v{251+i}" for i in range(5)]
def Qreg(qb, s): return R("a", (qb * 6 + s) * 4, 4)
def Kreg(kb, s): return R("a", 96 + (kb * 6 + s) * 4, 4)
def Vreg(b): return R("a", 144 + 4 * b, 4)
def Vhalf(b, x): return R("a", 144 + 4 * b + 2 * x, 2)
def DRreg(i): return R("a", 208 + 4 * i, 4)
SRK, SRV, SRQ, SRO = "s[8:11]", "s[12:15]", "s[16:19]", "s[20:23]"
sWAVE, sKOF, sVOF, sKEND, sKNX, sGOF, sC, sCNT, sLEFT, sITEM, sRB, sSTG, sQM, sFLAG = [f"s{i}" for i in range(24, 38)]
sT = [f"s{i}" for i in range(38, 46)]
sQP, sOP = 46, 48
sXB = "s50"
sNN = "s51"
sMODE = "s52"
sTODO = "s53"
KSLOT = [0, 12288]; VSLOT = [24576, 36864]; STG = 49152; FLAGS_LDS = 49152 + 98304
OOR = 0x40000000

def qk_mfmas():
    out = []
    for qb in range(4):
        for s in range(6):
            for kb in range(2):
                out.append(mfma(Sreg(qb, kb), Kreg(kb, s), Qreg(qb, s), "0" if s == 0 else Sreg(qb, kb)))
    return out
def pv_mfmas(c0):
    return [mfma(Oreg(qb, b), Vreg(b), Preg(qb), "0" if c0 else Oreg(qb, b)) for qb in range(4) for b in range(12)]
def k_reads(slot):
    return [ds_read("ds_read_b128", Kreg(kb, s), KA[s & 1], KSLOT[slot] + kb * 6144 + (s >> 1) * 1024) for s in range(6) for kb in range(2)]
def q_reads():
    return [ds_read("ds_read_b128", Qreg(qb, s), QA[s & 1], qb * 6144 + (s >> 1) * 1024) for qb in range(4) for s in range(6)]
def v_reads(slot):
    return [ds_read("ds_read_b64_tr_b16", Vhalf(b, x), VA[b & 3], VSLOT[slot] + x * 6144 + (b >> 2) * 1024) for b in range(12) for x in range(2)]
def kv_dma(cfg, which, slot):
    base = (KSLOT if which == "K" else VSLOT)[slot]
    srd, sof = (SRK, sKOF) if which == "K" else (SRV, sVOF)
    return [(sop("s_add_u32", "m0", sRB, str(base + cb * 896)), dma(VOFF, srd, sof, cb * 128, cfg.polkv, tag=which)) for cb in range(3)]

class Op:
    def __init__(s, ins, deps=(), lo=0, hi=95, fixed=None, samegap=()):
        s.ins = ins; s.deps = list(deps); s.lo = lo; s.hi = hi; s.fixed = fixed; s.gap = None; s.samegap = list(samegap)

NEXP_H = 22
def sm_ops(minit=None):
    H, Rr = [], []
    egaps = list(range(2, 96, 3))
    for qb in range(4):
        ready = 12 * qb + 11 + 4
        pre = []
        if minit:
            t, u = MC[qb], LS[qb]
            sv = Op(valu("v_mov_b32", LSV[qb], LS[qb]), lo=(0 if qb < 2 else 12 * qb))
            c = []
            def ch(ins, extra=()):
                o = Op(ins, deps=(c[-1:] if c else []) + list(extra), lo=ready); c.append(o); return o
            if minit == "P":
                ch(valu("v_max3_f32", t, t, Se(qb, 0), Se(qb, 1)))
                ch(valu("v_max3_f32", t, t, Se(qb, 2), Se(qb, 3)))
                ch(valu("v_max3_f32", t, t, Se(qb, 4), Se(qb, 5)))
                ch(valu("v_max3_f32", t, t, Se(qb, 6), Se(qb, 7)))
            else:
                ch(valu("v_max3_f32", t, Se(qb, 0), Se(qb, 1), Se(qb, 2)))
                ch(valu("v_max3_f32", t, t, Se(qb, 3), Se(qb, 4)))
                ch(valu("v_max3_f32", t, t, Se(qb, 5), Se(qb, 6)))
                ch(valu("v_max_f32", t, t, Se(qb, 7)))
            ch(valu("v_mov_b32", u, t), [sv])
            ch(swap("v_permlane32_swap_b32", t, u))
            ch(valu("v_max_f32", t, t, u))
            ch(valu("v_mov_b32", u, t))
            ch(swap("v_permlane16_swap_b32", t, u))
            ch(valu("v_max_f32", t, t, u))
            last = ch(valu("v_mul_f32", t, sC, t))
            z = Op(valu("v_mov_b32", u, "0"), deps=[c[-2]], lo=ready)
            H += [sv] + c + [z]
            pre = [last, z]
        prevadd = None
        ex = []
        for e in range(8):
            n = qb * 8 + e
            inH = n < NEXP_H
            f = Op(valu("v_fma_f32", Se(qb, e), Se(qb, e), sC, "-" + MC[qb]), deps=pre[:1])
            x = Op(valu("v_exp_f32", Se(qb, e), Se(qb, e), kind="E"), deps=[f])
            fH = qb < 3
            if fH: f.lo = ready
            else: f.deps = []
            (H if fH else Rr).append(f)
            x.fixed = egaps[(32 - NEXP_H) + n] if inH else egaps[n - NEXP_H]
            if not inH and fH: x.deps = []
            (H if inH else Rr).append(x)
            aH = n < NEXP_H - 2
            a = Op(valu("v_add_f32", LS[qb], LS[qb], Se(qb, e)), deps=([x] if (aH or not inH) else []) + (pre[1:] if aH else []))
            if prevadd is not None and prevadd[1] == aH: a.samegap = [prevadd[0]]
            if not aH: a.hi = 12 * qb - 1
            prevadd = (a, aH)
            (H if aH else Rr).append(a)
            ex.append((x, inH))
            if e & 1:
                cv = Op(valu("v_cvt_pk_bf16_f32", f"v{PB + 4*qb + (e >> 1)}", Se(qb, e - 1), Se(qb, e)),
                        deps=[y for (y, h) in ex[-2:] if h == aH])
                if aH: cv.lo = 48 + 12 * qb + 11
                else: cv.hi = 12 * qb - 1
                (H if aH else Rr).append(cv)
    return H, Rr

def schedule(mf, mem, sal, ops):
    cons = {id(o): [] for o in ops}
    for o in ops:
        for d in o.deps: cons[id(d)].append((o, 1))
        for d in o.samegap: cons[id(d)].append((o, 0))
    def dl(o, memo={}):
        if id(o) in memo: return memo[id(o)]
        v = o.fixed if o.fixed is not None else o.hi
        if o.fixed is None:
            for c, k in cons[id(o)]:
                v = min(v, dl(c, memo) - k - (1 if getattr(c.ins, "perm", False) else 0))
        memo[id(o)] = v
        return v
    memo = {}
    for o in ops: o.dl = dl(o, memo)
    for o in ops: assert o.dl >= o.lo, (o.ins, o.dl, o.lo)
    out = []; over = 0
    todo = [o for o in ops if o.fixed is None]
    fixed = {o.fixed: o for o in ops if o.fixed is not None}
    for g in range(96):
        if mf[g] is not None: out.append(mf[g])
        m = mem.get(g, []); s = sal.get(g, [])
        room = 2
        out += m; room -= len(m)
        out += s; room -= (len(s) if m else max(0, len(s) - 1))
        if g in fixed:
            o = fixed[g]
            assert all(d.gap is not None and d.gap < g for d in o.deps), o.ins
            o.gap = g; out.append(o.ins); room -= 2
        while True:
            rdy = [o for o in todo if o.lo <= g and all(d.gap is not None and d.gap + (1 if getattr(o.ins, "perm", False) else 0) < g for d in o.deps)
                   and all(d.gap is not None for d in o.samegap)]
            if not rdy: break
            o = min(rdy, key=lambda o: o.dl)
            if room <= 0 and o.dl > g: break
            o.gap = g; todo.remove(o); out.append(o.ins); room -= 1
        over += max(0, -room)
    assert not todo, [o.ins for o in todo]
    return out, over

def iteration(cfg, kind):
    par = {"P": 1, "Z": 0, "O": 1, "E": 0, "X": 0, "Y": 1, "T": 1}[kind]
    mf = (qk_mfmas() if kind != "T" else [None] * 48) + (pv_mfmas(kind == "Z") if kind != "P" else [None] * 48)
    mem = {}; sal = {}
    def M(g, i): mem.setdefault(g, []).append(i)
    def S(g, i): sal.setdefault(g, []).append(i)
    ops = []
    if kind != "P": ops += sm_ops()[1]
    if kind != "T": ops += sm_ops({"P": "P", "Y": "Y"}.get(kind))[0]
    npc = {"Z": 6, "E": 3}.get(kind, 0)
    S(0, salu("s_barrier"))
    if kind != "T":
        for j, (m0, d) in enumerate(kv_dma(cfg, "K", (par + 1) & 1)):
            S(2 + 3 * j, m0); M(3 + 3 * j, d)
        S(11, sop("s_mov_b32", sT[0], sKOF))
        S(14, sop("s_add_u32", sKOF, sKOF, "12288"))
        S(17, salu(f"s_cmp_eq_u32 {sKOF}, {sKEND}", [sKOF, sKEND], ["scc"]))
        S(20, sop("s_cselect_b32", sKOF, sKNX, sKOF))
    rd = []
    if kind != "P": rd += v_reads(par)
    dr = [ds_read("ds_read_b128", DRreg(i), VDR, i * 1024) for i in range(npc)]
    rd = rd + dr
    free = [g for g in range(1, 38) if g % 3 != 2 and g not in mem]
    n2 = max(0, len(rd) - len(free))
    dbl = set(free[int((k + 0.5) * len(free) / n2)] for k in range(n2)) if n2 else set()
    for g in free:
        for _ in range(2 if g in dbl else 1):
            if rd: M(g, rd.pop(0))
    assert not rd
    w = waitcnt(vm=0, lgkm=0) if kind != "T" else waitcnt(lgkm=0)
    w.need = ("K", 2) if kind != "T" else None
    S(47, w)
    if kind != "T":
        S(48, salu("s_barrier"))
        for j, (m0, d) in enumerate(kv_dma(cfg, "V", par)):
            S(50 + 3 * j, m0); M(51 + 3 * j, d)
        S(59, sop("s_mov_b32", sVOF, sT[0]))
        g = 60
        for i in range(npc):
            M(g, gstore(DRreg(i), VOFF, SRO, sGOF, (i // 3) * 3072 + (i % 3) * 128, cfg.polo, tag="O"))
            S(g + 2, sop("s_add_u32", "m0", sQM, str((i % 3) * 896)))
            M(g + 3, dma(VOFF, SRQ, sGOF, (i // 3) * 3072 + (i % 3) * 128, cfg.polq, tag="Q"))
            g += 6 if npc <= 3 else 3
            if npc > 3: g += 0
        if npc:
            S(89, sop("s_add_u32", sGOF, sGOF, str(npc * 1024)))
            S(92, sop("s_add_u32", sQM, sQM, str(npc * 1024)))
            ops.append(Op(valu("v_add_u32", VDR, str(npc * 1024), VDR), lo=48))
        rd = k_reads(par) + (q_reads() if kind == "X" else [])
        free = [g for g in range(49, 86) if g % 3 != 2 and g not in mem]
        if len(rd) <= 12: free = [g for g in free if g % 3 == 1]
        n2 = max(0, len(rd) - len(free))
        dbl = set(free[int((k + 0.5) * len(free) / n2)] for k in range(n2)) if n2 else set()
        for g in free:
            for _ in range(2 if g in dbl else 1):
                if rd: M(g, rd.pop(0))
        assert not rd
        w = waitcnt(vm=0, lgkm=0); w.need = ("V", 2)
        S(95, w)
        if kind == "O":
            S(83, sop("s_sub_u32", sCNT, sCNT, "1"))
            S(86, salu(f"s_cmp_eq_u32 {sCNT}, 0", [sCNT], ["scc"]))
        if kind == "X":
            S(86, salu(f"s_cmp_eq_u32 {sLEFT}, 1", [sLEFT], ["scc"]))
    out, over = schedule(mf, mem, sal, ops)
    print(f"iteration {kind}: {len(out)} instrs, overflow slots {over}", file=sys.stderr)
    return out

def fixnops(seq, name):
    import re
    for _ in range(400):
        p = [x for x in check(seq, name) if "dist" in x]
        if not p: return seq
        for k in range(1, len(seq) + 1):
            q = [x for x in check(seq[:k], name) if "dist" in x]
            if q:
                m = re.search(r"dist (\d+)(?: < (\d+))?", q[0])
                need = int(m.group(2) or 8) - int(m.group(1))
                seq = seq[:k - 1] + [nop(need - 1)] + seq[k - 1:]
                break
    raise RuntimeError("fixnops")

def window_srd(srd_lo, ptr, item):
    return [sop("s_mul_i32", sT[1], item, "98304"), sop("s_mul_i32", sT[2], sWAVE, "24576"), sop("s_add_u32", sT[1], sT[1], sT[2]),
            sop("s_add_u32", f"s{srd_lo}", f"s{ptr}", sT[1]), sop("s_addc_u32", f"s{srd_lo+1}", f"s{ptr+1}", "0")]

def head_base(dst, item):
    return [sop("s_mul_hi_u32", dst, item, "0x55555556"), sop("s_mul_i32", dst, dst, "196608"), sop("s_add_u32", dst, dst, sRB)]

def next_item_setup():
    o = []
    o += head_base(sKEND, sITEM) + [sop("s_add_u32", sKEND, sKEND, "196608")]
    o += [sop("s_add_u32", sT[3], sITEM, "32")]
    o += head_base(sKNX, sT[3])
    o += window_srd(16, sQP, sT[3])
    o += [salu(f"s_cmp_gt_u32 {sLEFT}, 1", [sLEFT], ["scc"]), sop("s_cselect_b32", sKNX, sKNX, str(OOR)), sop("s_cselect_b32", "s18", "24576", "0"),
          sop("s_mov_b32", sGOF, "0"), sop("s_mov_b32", sQM, sSTG), sop("s_mov_b32", sCNT, "7"), valu("v_mov_b32", VDR, VDR0)]
    return o

def finalize(cfg):
    o = []
    a, b, c, d = LSV
    o += [swap("v_permlane32_swap_b32", a, b), swap("v_permlane32_swap_b32", c, d), valu("v_add_f32", a, a, b), valu("v_add_f32", c, c, d),
          swap("v_permlane16_swap_b32", a, c), valu("v_add_f32", a, a, c)]
    o += [sop("s_mov_b32", sT[4], f2h(cfg.thresh)), I(f"v_cmp_nge_f32 vcc, {sT[4]}, {a}", "V", [sT[4], a], ["vcc"]),
          valu("v_rcp_f32", a, a, kind="E"),
          salu("s_cmp_lg_u64 vcc, 0", ["vcc"], ["scc"]), sop("s_cselect_b32", sT[4], "1", "0"), sop("s_lshl_b32", sT[4], sT[4], sNN), sop("s_or_b32", sFLAG, sFLAG, sT[4])]
    o += [valu("v_mov_b32", c, a), swap("v_permlane16_swap_b32", a, c), valu("v_mov_b32", b, a), valu("v_mov_b32", d, c),
          swap("v_permlane32_swap_b32", a, b), swap("v_permlane32_swap_b32", c, d)]
    for qb in range(4):
        for b_ in range(12):
            rg = regs(Oreg(qb, b_))
            if b_ == 11:
                tmp = [Se(0, i) for i in range(4)]
                o += [I(f"v_accvgpr_read_b32 {tmp[i]}, {rg[i]}", "V", [rg[i]], [tmp[i]]) for i in range(4)]
                rg = tmp
            o += [valu("v_mul_f32", r, r, LSV[qb]) for r in rg]
            o += [valu("v_cvt_pk_bf16_f32", rg[0], rg[0], rg[1]), valu("v_cvt_pk_bf16_f32", rg[1], rg[2], rg[3])]
            o += [ds_write("ds_write_b64", OW[b_ & 3], R("v", int(rg[0][1:]), 2), qb * 6144 + (b_ >> 2) * 1024)]
    o += window_srd(20, sOP, sITEM) + [sop("s_mov_b32", "s22", "24576")]
    o += [sop("s_sub_u32", sLEFT, sLEFT, "1"), sop("s_add_u32", sITEM, sITEM, "32"), sop("s_add_u32", sNN, sNN, "1")]
    return o

def drain_all(cfg):
    o = [valu("v_mov_b32", VDR, VDR0), sop("s_mov_b32", sGOF, "0")]
    regsets = [R("a", 4 * i, 4) for i in range(24)]
    for i in range(24): o.append(ds_read("ds_read_b128", regsets[i], VDR, i * 1024))
    seq = o[:2]; rds = o[2:]
    seq += rds[:12]
    for i in range(24):
        left = min(11, 23 - i)
        seq.append(waitcnt(lgkm=left))
        if (i // 3) * 3072 + (i % 3) * 128 < 4096:
            seq.append(gstore(regsets[i], VOFF, SRO, sGOF, (i // 3) * 3072 + (i % 3) * 128, cfg.polo, tag="O"))
        else:
            if i % 3 == 0: seq.append(sop("s_mov_b32", sGOF, str((i // 3) * 3072)))
            seq.append(gstore(regsets[i], VOFF, SRO, sGOF, (i % 3) * 128, cfg.polo, tag="O"))
        if i + 12 < 24: seq.append(rds[i + 12])
    return seq

def setup(cfg):
    o = []
    x = lambda t: o.append(salu(t))
    x("s_cmp_ge_u32 s2, 256"); x("s_cbranch_scc1 L_end")
    if cfg.stamps: x("s_memtime s[60:61]"); x("s_memrealtime s[62:63]")
    x(f"s_load_dwordx4 s[4:7], s[0:1], 0"); x("s_load_dwordx2 s[12:13], s[0:1], 16"); x(f"s_load_dwordx2 s[{sOP}:{sOP+1}], s[0:1], 24")
    if cfg.stamps: x("s_load_dwordx2 s[56:57], s[0:1], 40")
    L, N, G, A, B_ = T
    o += [valu("v_lshrrev_b32", A, "6", "v0"), valu("v_and_b32", L, "63", "v0"), I(f"v_readfirstlane_b32 {sWAVE}, {A}", "V", [A], [sWAVE])]
    o += [valu("v_and_b32", N, "15", L), valu("v_lshrrev_b32", G, "4", L)]
    x("s_nop 2")
    o += [sop("s_mul_i32", sRB, sWAVE, "3072"), sop("s_mul_i32", sSTG, sWAVE, "24576"), sop("s_add_u32", sSTG, sSTG, str(STG)), sop("s_mov_b32", sC, f2h(CSCALE))]
    o += [sop("s_and_b32", sT[0], "s2", "7"), sop("s_mul_i32", sT[0], sT[0], "96"), sop("s_lshr_b32", sT[1], "s2", "3"), sop("s_add_u32", sXB, sT[0], sT[1])]
    o += [valu("v_lshrrev_b32", A, "3", N), valu("v_mul_u32_u24", "v0", "3072", A), valu("v_and_b32", "v1", "7", N), valu("v_lshl_add_u32", "v0", "v1", "7", "v0")]
    for e in range(2):
        o += [valu("v_add_u32", A, str(4 * e), G), valu("v_xor_b32", A, A, "v1"), valu("v_lshl_add_u32", KA[e], A, "4", "v0"), valu("v_add_u32", QA[e], sSTG, KA[e])]
    o += [valu("v_lshrrev_b32", "v2", "1", G), valu("v_and_b32", "v3", "1", G), valu("v_lshl_add_u32", "v3", "v3", "3", "v0"), valu("v_add_u32", "v3", sSTG, "v3")]
    for j in range(4):
        o += [valu("v_add_u32", A, str(2 * j), "v2"), valu("v_xor_b32", A, A, "v1"), valu("v_lshl_add_u32", OW[j], A, "4", "v3")]
    o += [valu("v_lshrrev_b32", B_, "2", L), valu("v_lshrrev_b32", A, "3", B_), valu("v_mul_u32_u24", "v0", "3072", A), valu("v_and_b32", "v1", "7", B_),
          valu("v_lshl_add_u32", "v0", "v1", "7", "v0"), valu("v_and_b32", A, "1", L), valu("v_lshl_add_u32", "v0", A, "3", "v0"), valu("v_bfe_u32", "v2", L, "1", "1")]
    for j in range(4):
        o += [valu("v_add_u32", A, str(2 * j), "v2"), valu("v_xor_b32", A, A, "v1"), valu("v_lshl_add_u32", VA[j], A, "4", "v0")]
    o += [valu("v_lshrrev_b32", A, "3", L), valu("v_and_b32", B_, "7", L), valu("v_xor_b32", B_, B_, A), valu("v_mul_u32_u24", A, "384", A), valu("v_lshl_add_u32", VOFF, B_, "4", A)]
    o += [valu("v_lshlrev_b32", A, "4", L), valu("v_add_u32", VDR0, sSTG, A)]
    x("s_waitcnt lgkmcnt(0)")
    x(f"s_mov_b32 s{sQP}, s4"); x(f"s_mov_b32 s{sQP+1}, s5"); x("s_mov_b32 s8, s6"); x("s_mov_b32 s9, s7")
    for lo in (8, 12): x(f"s_mov_b32 s{lo+2}, 50331648"); x(f"s_mov_b32 s{lo+3}, 0x20000")
    x("s_mov_b32 s19, 0x20000"); x("s_mov_b32 s23, 0x20000")
    if cfg.stamps: x("s_mov_b32 s58, 301989888"); x("s_mov_b32 s59, 0x20000")
    o += [sop("s_mov_b32", sITEM, sXB), sop("s_mov_b32", sLEFT, "3"), sop("s_mov_b32", sNN, "0"), sop("s_mov_b32", sFLAG, "0"), sop("s_mov_b32", sMODE, "0"), sop("s_mov_b32", sTODO, "0")]
    return o

def start_run(cfg):
    o = []
    o += head_base(sKOF, sITEM) + [sop("s_mov_b32", sVOF, sKOF)]
    for m0, d in kv_dma(cfg, "K", 0): o += [m0, nop(0), d]
    o += window_srd(16, sQP, sITEM) + [sop("s_mov_b32", "s18", "24576")]
    o += [sop("s_mov_b32", "s20", f"s{sOP}"), sop("s_mov_b32", "s21", f"s{sOP+1}"), sop("s_mov_b32", "s22", "0")]
    for rg in range(8):
        o += [sop("s_mov_b32", sGOF, str(rg * 3072))]
        for cb in range(3):
            o += [sop("s_add_u32", "m0", sSTG, str(rg * 3072 + cb * 896)), nop(0), dma(VOFF, SRQ, sGOF, cb * 128, cfg.polq, tag="Q")]
    for m0, d in kv_dma(cfg, "V", 0): o += [m0, nop(0), d]
    o += [sop("s_add_u32", sKOF, sKOF, "12288"), sop("s_mov_b32", sVOF, sKOF)]
    for m0, d in kv_dma(cfg, "K", 1): o += [m0, nop(0), d]
    o += [sop("s_add_u32", sKOF, sKOF, "12288")]
    o += next_item_setup()
    for qb in range(4): o += [valu("v_mov_b32", MC[qb], "0xff800000"), valu("v_mov_b32", LS[qb], "0")]
    o += [waitcnt(vm=6)]
    qr = q_reads()
    o += qr[:12] + [waitcnt(lgkm=4)] + qr[12:]
    return o

def max_pass(cfg):
    L, N, G, A, B_ = T
    o = [waitcnt(vm=0, lgkm=0), valu("v_mul_u32_u24", A, "384", N), valu("v_lshl_add_u32", A, G, "4", A)]
    o += [sop("s_mul_hi_u32", sT[5], sITEM, "0x55555556"), sop("s_mul_i32", sT[5], sT[5], "196608"), sop("s_mov_b32", sT[6], "16")]
    o += [label("L_maxloop")]
    body = []
    for kb in range(2):
        if kb: body.append(sop("s_add_u32", sT[5], sT[5], "6144"))
        for s in range(6): body.append(gload(Kreg(kb, s), A, SRK, sT[5], s * 64))
    body += [sop("s_add_u32", sT[5], sT[5], "6144"), waitcnt(vm=0)]
    body += qk_mfmas() + [nop(7)]
    for qb in range(4):
        for e in range(0, 8, 2): body.append(valu("v_max3_f32", MC[qb], MC[qb], Se(qb, e), Se(qb, e + 1)))
    body += [sop("s_sub_u32", sT[6], sT[6], "1"), salu(f"s_cmp_lg_u32 {sT[6]}, 0"), salu("s_cbranch_scc1 L_maxloop")]
    return o + body

def stamp(idx):
    return [salu(f"s_memtime s[{64+2*idx}:{65+2*idx}]")]

def build(cfg):
    blk = {}
    for k in "PZOEXYT": blk[k] = fixnops(iteration(cfg, k), k)
    blk["setup"] = fixnops(setup(cfg), "setup")
    blk["start"] = fixnops(start_run(cfg), "start")
    blk["max"] = max_pass(cfg)
    blk["k0"] = [salu("s_barrier")] + k_reads(0) + [waitcnt(lgkm=0)]
    blk["Tsave"] = [nop(0)] + [valu("v_mov_b32", LSV[q], LS[q]) for q in range(4)] + [nop(1)]
    blk["F"] = fixnops([nop(1)] + finalize(cfg), "F")
    blk["newitem"] = next_item_setup()
    blk["D"] = fixnops(drain_all(cfg), "D")
    br = lambda t: [salu(t)]
    def item(): return blk["Z"] + (blk["O"] + br("b") + blk["E"] + br("b")) * 6 + blk["O"] + br("b") + blk["X"] + br("b")
    mid = blk["Y"] + blk["F"] + br("b") + br("b") + blk["newitem"]
    end = blk["T"] + blk["Tsave"] + br("b") + blk["F"] + br("b") + br("b") + blk["D"]
    tr1 = blk["setup"] + blk["start"] + br("b") + br("b") + blk["k0"] + blk["P"] + br("b") + item() + mid + item() + mid + item() + end
    tr2 = blk["setup"] + blk["start"] + br("b") + br("b") + blk["max"] + blk["k0"] + blk["P"] + br("b") + item() + end
    best = {}
    for tr in (tr1, tr2):
        vm = []
        for ins in tr:
            if ins.kind == "G": vm.append(ins.tag)
            if getattr(ins, "need", None):
                tag, nb = ins.need
                seen = 0; cnt = None
                for j in range(len(vm) - 1, -1, -1):
                    if vm[j] == tag:
                        if seen == 3 * (nb - 1): cnt = len(vm) - 1 - j; break
                        seen += 1
                assert cnt is not None
                best[id(ins)] = (min(cnt, best.get(id(ins), (99,))[0]), ins)
    for cnt, ins in best.values():
        ins.vm = cnt; ins.text = f"s_waitcnt vmcnt({cnt}) lgkmcnt(0)"
    for tr, n in ((tr1, "tr1"), (tr2, "tr2")):
        p = check(tr, n)
        for x in sorted(set(p)): print("HAZARD", x, file=sys.stderr)
        assert not p
    out = []
    a = out.append
    def emit(seq):
        for i in seq: a(("" if i.kind == "L" else "    ") + i.text)
    a("; @launch grid=(256,1,1) block=(256,1,1) lds=163840")
    a('.amdgcn_target "amdgcn-amd-amdhsa--gfx950"'); a(".text"); a(f".globl {NAME}"); a(".p2align 8"); a(f".type {NAME},@function"); a(f"{NAME}:")
    emit(blk["setup"])
    a("L_run:")
    emit(blk["start"])
    a(f"    s_cmp_eq_u32 {sMODE}, 0"); a("    s_cbranch_scc1 L_k0")
    emit(blk["max"])
    a("L_k0:")
    emit(blk["k0"])
    if cfg.stamps: emit(stamp(2))
    emit(blk["P"])
    a("    s_branch L_Z")
    a(".p2align 6"); a("L_Y:")
    emit(blk["Y"])
    a("L_F:")
    emit(blk["F"])
    a(f"    s_cmp_eq_u32 {sLEFT}, 0"); a("    s_cbranch_scc1 L_D")
    emit(blk["newitem"])
    a(".p2align 3"); a("L_Z:")
    emit(blk["Z"])
    a(".p2align 3"); a("L_O:")
    emit(blk["O"])
    a("    s_cbranch_scc1 L_X")
    a(".p2align 3")
    emit(blk["E"])
    a("    s_branch L_O")
    a(".p2align 6"); a("L_X:")
    emit(blk["X"])
    a("    s_cbranch_scc0 L_Y")
    emit(blk["T"]); emit(blk["Tsave"])
    if cfg.stamps: emit(stamp(3))
    a("    s_branch L_F")
    a("L_D:")
    if cfg.stamps: emit(stamp(4))
    emit(blk["D"])
    a(f"    s_cmp_lg_u32 {sMODE}, 0"); a("    s_cbranch_scc1 L_todo")
    a(f"    v_mov_b32 v0, {sFLAG}"); a(f"    s_lshl_b32 {sT[0]}, {sWAVE}, 2"); a(f"    s_add_u32 {sT[0]}, {sT[0]}, {FLAGS_LDS}"); a(f"    v_mov_b32 v1, {sT[0]}")
    a("    ds_write_b32 v1, v0"); a("    s_waitcnt lgkmcnt(0)"); a("    s_barrier")
    a(f"    v_mov_b32 v1, {FLAGS_LDS}"); a("    ds_read_b128 v[4:7], v1"); a("    s_waitcnt lgkmcnt(0)")
    a("    v_or_b32 v4, v4, v5"); a("    v_or3_b32 v4, v4, v6, v7"); a("    s_nop 1"); a(f"    v_readfirstlane_b32 {sTODO}, v4"); a(f"    s_mov_b32 {sMODE}, 1"); a("    s_nop 3")
    a("L_todo:")
    a(f"    s_and_b32 {sTODO}, {sTODO}, 7")
    a(f"    s_cbranch_scc0 L_fin")
    a(f"    s_ff1_i32_b32 {sNN}, {sTODO}"); a(f"    s_bitset0_b32 {sTODO}, {sNN}")
    a(f"    s_lshl_b32 {sITEM}, {sNN}, 5"); a(f"    s_add_u32 {sITEM}, {sITEM}, {sXB}"); a(f"    s_mov_b32 {sLEFT}, 1")
    a("    s_waitcnt vmcnt(0) lgkmcnt(0)"); a("    s_barrier"); a("    s_branch L_run")
    a("L_fin:")
    if cfg.stamps:
        a("    s_waitcnt vmcnt(0)")
        a("    s_memtime s[64:65]"); a("    s_memrealtime s[66:67]"); a("    s_waitcnt lgkmcnt(0)")
        a(f"    s_cmp_lg_u32 {sWAVE}, 0"); a("    s_cbranch_scc1 L_end")
        src = [60, 61, 64, 65, 62, 63, 66, 67, 68, 69, 70, 71, 72, 73, 74, 75]
        for i, s in enumerate(src): a(f"    v_mov_b32 v{i}, s{s}")
        a("    s_lshl_b32 s41, s2, 6"); a("    v_mov_b32 v16, 0"); a("    s_mov_b64 exec, 1")
        for i in range(4): a(f"    buffer_store_dwordx4 v[{4*i}:{4*i+3}], v16, s[56:59], s41 offen offset:{16*i}")
    a("L_end:"); a("    s_endpgm")
    a('.section .rodata,"a"'); a(".p2align 6"); a(f".amdhsa_kernel {NAME}")
    for l in ["next_free_vgpr 512", "next_free_sgpr 102", "accum_offset 256", "group_segment_fixed_size 0", "kernarg_size 48", "user_sgpr_count 2",
              "user_sgpr_kernarg_segment_ptr 1", "system_sgpr_workgroup_id_x 1"]: a("  .amdhsa_" + l)
    a(".end_amdhsa_kernel")
    return "\n".join(out) + "\n"

if __name__ == "__main__":
    kw = {}
    for x in sys.argv[2:]:
        k, v = x.split("=", 1)
        kw[k] = (" " + v.replace("+", " ")) if k.startswith("pol") else eval(v)
    open(sys.argv[1], "w").write(build(Cfg(**kw)))
```

```python
import sys, struct, math
from asmlib import *

NAME = "standalone__gqa_softmax__near_ridge_kernel"
def f2h(x): return "0x%08x" % struct.unpack("<I", struct.pack("<f", x))[0]
CSCALE = (192 ** -0.5) * math.log2(math.e)

class Cfg:
    polkv = ""; polq = ""; polo = ""
    stamps = False
    thresh = 2.0 ** 64
    def __init__(s, **kw): s.__dict__.update(kw)

def Oreg(qb, b): return R("v", (qb * 11 + b) * 4, 4) if b < 11 else R("a", 192 + 4 * qb, 4)
SB = 176; PB = 208
def Sreg(qb, kb): return R("v", SB + qb * 8 + kb * 4, 4)
def Se(qb, e): return f"v{SB + qb * 8 + e}"
def Preg(qb): return R("v", PB + 4 * qb, 4)
KA = ["v224", "v225"]; VA = ["v226", "v227", "v228", "v229"]; VOFF = "v230"; VDR = "v231"
MC = [f"v{232+i}" for i in range(4)]; LS = [f"v{236+i}" for i in range(4)]; LSV = [f"v{240+i}" for i in range(4)]
QA = ["v244", "v245"]; OW = ["v246", "v247", "v248", "v249"]; VDR0 = "v250"
T = [f"v{251+i}" for i in range(5)]
def Qreg(qb, s): return R("a", (qb * 6 + s) * 4, 4)
def Kreg(kb, s): return R("a", 96 + (kb * 6 + s) * 4, 4)
def Vreg(b): return R("a", 144 + 4 * b, 4)
def Vhalf(b, x): return R("a", 144 + 4 * b + 2 * x, 2)
def DRreg(i): return R("a", 208 + 4 * i, 4)
SRK, SRV, SRQ, SRO = "s[8:11]", "s[12:15]", "s[16:19]", "s[20:23]"
sWAVE, sKOF, sVOF, sKEND, sKNX, sGOF, sC, sCNT, sLEFT, sITEM, sRB, sSTG, sQM, sFLAG = [f"s{i}" for i in range(24, 38)]
sT = [f"s{i}" for i in range(38, 46)]
sQP, sOP = 46, 48
sXB = "s50"
sNN = "s51"
sMODE = "s52"
sTODO = "s53"
KSLOT = [0, 12288]; VSLOT = [24576, 36864]; STG = 49152; FLAGS_LDS = 49152 + 98304
OOR = 0x40000000

def qk_mfmas():
    out = []
    for qb in range(4):
        for s in range(6):
            for kb in range(2):
                out.append(mfma(Sreg(qb, kb), Kreg(kb, s), Qreg(qb, s), "0" if s == 0 else Sreg(qb, kb)))
    return out
def pv_mfmas(c0):
    return [mfma(Oreg(qb, b), Vreg(b), Preg(qb), "0" if c0 else Oreg(qb, b)) for qb in range(4) for b in range(12)]
def k_reads(slot):
    return [ds_read("ds_read_b128", Kreg(kb, s), KA[s & 1], KSLOT[slot] + kb * 6144 + (s >> 1) * 1024) for s in range(6) for kb in range(2)]
def q_reads():
    return [ds_read("ds_read_b128", Qreg(qb, s), QA[s & 1], qb * 6144 + (s >> 1) * 1024) for qb in range(4) for s in range(6)]
def v_reads(slot):
    return [ds_read("ds_read_b64_tr_b16", Vhalf(b, x), VA[b & 3], VSLOT[slot] + x * 6144 + (b >> 2) * 1024) for b in range(12) for x in range(2)]
def kv_dma(cfg, which, slot):
    base = (KSLOT if which == "K" else VSLOT)[slot]
    srd, sof = (SRK, sKOF) if which == "K" else (SRV, sVOF)
    return [(sop("s_add_u32", "m0", sRB, str(base + cb * 896)), dma(VOFF, srd, sof, cb * 128, cfg.polkv, tag=which)) for cb in range(3)]

class Op:
    def __init__(s, ins, deps=(), lo=0, hi=95, fixed=None, samegap=()):
        s.ins = ins; s.deps = list(deps); s.lo = lo; s.hi = hi; s.fixed = fixed; s.gap = None; s.samegap = list(samegap)

NEXP_H = 22
def sm_ops(minit=None):
    H, Rr = [], []
    egaps = list(range(2, 96, 3))
    for qb in range(4):
        ready = 12 * qb + 11 + 4
        pre = []
        if minit:
            t, u = MC[qb], LS[qb]
            sv = Op(valu("v_mov_b32", LSV[qb], LS[qb]), lo=(0 if qb < 2 else 12 * qb))
            c = []
            def ch(ins, extra=()):
                o = Op(ins, deps=(c[-1:] if c else []) + list(extra), lo=ready); c.append(o); return o
            if minit == "P":
                ch(valu("v_max3_f32", t, t, Se(qb, 0), Se(qb, 1)))
                ch(valu("v_max3_f32", t, t, Se(qb, 2), Se(qb, 3)))
                ch(valu("v_max3_f32", t, t, Se(qb, 4), Se(qb, 5)))
                ch(valu("v_max3_f32", t, t, Se(qb, 6), Se(qb, 7)))
            else:
                ch(valu("v_max3_f32", t, Se(qb, 0), Se(qb, 1), Se(qb, 2)))
                ch(valu("v_max3_f32", t, t, Se(qb, 3), Se(qb, 4)))
                ch(valu("v_max3_f32", t, t, Se(qb, 5), Se(qb, 6)))
                ch(valu("v_max_f32", t, t, Se(qb, 7)))
            ch(valu("v_mov_b32", u, t), [sv])
            ch(swap("v_permlane32_swap_b32", t, u))
            ch(valu("v_max_f32", t, t, u))
            ch(valu("v_mov_b32", u, t))
            ch(swap("v_permlane16_swap_b32", t, u))
            ch(valu("v_max_f32", t, t, u))
            last = ch(valu("v_mul_f32", t, sC, t))
            z = Op(valu("v_mov_b32", u, "0"), deps=[c[-2]], lo=ready)
            H += [sv] + c + [z]
            pre = [last, z]
        prevadd = None
        ex = []
        for e in range(8):
            n = qb * 8 + e
            inH = n < NEXP_H
            f = Op(valu("v_fma_f32", Se(qb, e), Se(qb, e), sC, "-" + MC[qb]), deps=pre[:1])
            x = Op(valu("v_exp_f32", Se(qb, e), Se(qb, e), kind="E"), deps=[f])
            fH = qb < 3
            if fH: f.lo = ready
            else: f.deps = []
            (H if fH else Rr).append(f)
            x.fixed = egaps[(32 - NEXP_H) + n] if inH else egaps[n - NEXP_H]
            if not inH and fH: x.deps = []
            (H if inH else Rr).append(x)
            aH = n < NEXP_H - 2
            a = Op(valu("v_add_f32", LS[qb], LS[qb], Se(qb, e)), deps=([x] if (aH or not inH) else []) + (pre[1:] if aH else []))
            if prevadd is not None and prevadd[1] == aH: a.samegap = [prevadd[0]]
            if not aH: a.hi = 12 * qb - 1
            prevadd = (a, aH)
            (H if aH else Rr).append(a)
            ex.append((x, inH))
            if e & 1:
                cv = Op(valu("v_cvt_pk_bf16_f32", f"v{PB + 4*qb + (e >> 1)}", Se(qb, e - 1), Se(qb, e)),
                        deps=[y for (y, h) in ex[-2:] if h == aH])
                if aH: cv.lo = 48 + 12 * qb + 11
                else: cv.hi = 12 * qb - 1
                (H if aH else Rr).append(cv)
    return H, Rr

def schedule(mf, mem, sal, ops):
    cons = {id(o): [] for o in ops}
    for o in ops:
        for d in o.deps: cons[id(d)].append((o, 1))
        for d in o.samegap: cons[id(d)].append((o, 0))
    def dl(o, memo={}):
        if id(o) in memo: return memo[id(o)]
        v = o.fixed if o.fixed is not None else o.hi
        if o.fixed is None:
            for c, k in cons[id(o)]:
                v = min(v, dl(c, memo) - k - (1 if getattr(c.ins, "perm", False) else 0))
        memo[id(o)] = v
        return v
    memo = {}
    for o in ops: o.dl = dl(o, memo)
    for o in ops: assert o.dl >= o.lo, (o.ins, o.dl, o.lo)
    out = []; over = 0
    todo = [o for o in ops if o.fixed is None]
    fixed = {o.fixed: o for o in ops if o.fixed is not None}
    for g in range(96):
        if mf[g] is not None: out.append(mf[g])
        m = mem.get(g, []); s = sal.get(g, [])
        room = 2
        out += m; room -= len(m)
        out += s; room -= (len(s) if m else max(0, len(s) - 1))
        if g in fixed:
            o = fixed[g]
            assert all(d.gap is not None and d.gap < g for d in o.deps), o.ins
            o.gap = g; out.append(o.ins); room -= 2
        while True:
            rdy = [o for o in todo if o.lo <= g and all(d.gap is not None and d.gap + (1 if getattr(o.ins, "perm", False) else 0) < g for d in o.deps)
                   and all(d.gap is not None for d in o.samegap)]
            if not rdy: break
            o = min(rdy, key=lambda o: o.dl)
            if room <= 0 and o.dl > g: break
            o.gap = g; todo.remove(o); out.append(o.ins); room -= 1
        over += max(0, -room)
    assert not todo, [o.ins for o in todo]
    return out, over

def iteration(cfg, kind):
    par = {"P": 1, "Z": 0, "O": 1, "E": 0, "X": 0, "Y": 1, "T": 1}[kind]
    mf = (qk_mfmas() if kind != "T" else [None] * 48) + (pv_mfmas(kind == "Z") if kind != "P" else [None] * 48)
    mem = {}; sal = {}
    def M(g, i): mem.setdefault(g, []).append(i)
    def S(g, i): sal.setdefault(g, []).append(i)
    ops = []
    if kind != "P": ops += sm_ops()[1]
    if kind != "T": ops += sm_ops({"P": "P", "Y": "Y"}.get(kind))[0]
    npc = {"Z": 6, "E": 3}.get(kind, 0)
    S(0, salu("s_barrier"))
    if kind != "T":
        for j, (m0, d) in enumerate(kv_dma(cfg, "K", (par + 1) & 1)):
            S(2 + 3 * j, m0); M(3 + 3 * j, d)
        S(11, sop("s_mov_b32", sT[0], sKOF))
        S(14, sop("s_add_u32", sKOF, sKOF, "12288"))
        S(17, salu(f"s_cmp_eq_u32 {sKOF}, {sKEND}", [sKOF, sKEND], ["scc"]))
        S(20, sop("s_cselect_b32", sKOF, sKNX, sKOF))
    rd = []
    if kind != "P": rd += v_reads(par)
    dr = [ds_read("ds_read_b128", DRreg(i), VDR, i * 1024) for i in range(npc)]
    rd = rd + dr
    free = [g for g in range(1, 38) if g % 3 != 2 and g not in mem]
    n2 = max(0, len(rd) - len(free))
    dbl = set(free[int((k + 0.5) * len(free) / n2)] for k in range(n2)) if n2 else set()
    for g in free:
        for _ in range(2 if g in dbl else 1):
            if rd: M(g, rd.pop(0))
    assert not rd
    w = waitcnt(vm=0, lgkm=0) if kind != "T" else waitcnt(lgkm=0)
    w.need = ("K", 2) if kind != "T" else None
    S(47, w)
    if kind != "T":
        S(48, salu("s_barrier"))
        for j, (m0, d) in enumerate(kv_dma(cfg, "V", par)):
            S(50 + 3 * j, m0); M(51 + 3 * j, d)
        S(59, sop("s_mov_b32", sVOF, sT[0]))
        g = 60
        for i in range(npc):
            M(g, gstore(DRreg(i), VOFF, SRO, sGOF, (i // 3) * 3072 + (i % 3) * 128, cfg.polo, tag="O"))
            S(g + 2, sop("s_add_u32", "m0", sQM, str((i % 3) * 896)))
            M(g + 3, dma(VOFF, SRQ, sGOF, (i // 3) * 3072 + (i % 3) * 128, cfg.polq, tag="Q"))
            g += 6 if npc <= 3 else 3
            if npc > 3: g += 0
        if npc:
            S(89, sop("s_add_u32", sGOF, sGOF, str(npc * 1024)))
            S(92, sop("s_add_u32", sQM, sQM, str(npc * 1024)))
            ops.append(Op(valu("v_add_u32", VDR, str(npc * 1024), VDR), lo=48))
        rd = k_reads(par) + (q_reads() if kind == "X" else [])
        free = [g for g in range(49, 86) if g % 3 != 2 and g not in mem]
        if len(rd) <= 12: free = [g for g in free if g % 3 == 1]
        n2 = max(0, len(rd) - len(free))
        dbl = set(free[int((k + 0.5) * len(free) / n2)] for k in range(n2)) if n2 else set()
        for g in free:
            for _ in range(2 if g in dbl else 1):
                if rd: M(g, rd.pop(0))
        assert not rd
        w = waitcnt(vm=0, lgkm=0); w.need = ("V", 2)
        S(95, w)
        if kind == "O":
            S(83, sop("s_sub_u32", sCNT, sCNT, "1"))
            S(86, salu(f"s_cmp_eq_u32 {sCNT}, 0", [sCNT], ["scc"]))
        if kind == "X":
            S(86, salu(f"s_cmp_eq_u32 {sLEFT}, 1", [sLEFT], ["scc"]))
    out, over = schedule(mf, mem, sal, ops)
    print(f"iteration {kind}: {len(out)} instrs, overflow slots {over}", file=sys.stderr)
    return out

def fixnops(seq, name):
    import re
    for _ in range(400):
        p = [x for x in check(seq, name) if "dist" in x]
        if not p: return seq
        for k in range(1, len(seq) + 1):
            q = [x for x in check(seq[:k], name) if "dist" in x]
            if q:
                m = re.search(r"dist (\d+)(?: < (\d+))?", q[0])
                need = int(m.group(2) or 8) - int(m.group(1))
                seq = seq[:k - 1] + [nop(need - 1)] + seq[k - 1:]
                break
    raise RuntimeError("fixnops")

def window_srd(srd_lo, ptr, item):
    return [sop("s_mul_i32", sT[1], item, "98304"), sop("s_mul_i32", sT[2], sWAVE, "24576"), sop("s_add_u32", sT[1], sT[1], sT[2]),
            sop("s_add_u32", f"s{srd_lo}", f"s{ptr}", sT[1]), sop("s_addc_u32", f"s{srd_lo+1}", f"s{ptr+1}", "0")]

def head_base(dst, item):
    return [sop("s_mul_hi_u32", dst, item, "0x55555556"), sop("s_mul_i32", dst, dst, "196608"), sop("s_add_u32", dst, dst, sRB)]

def next_item_setup():
    o = []
    o += head_base(sKEND, sITEM) + [sop("s_add_u32", sKEND, sKEND, "196608")]
    o += [sop("s_add_u32", sT[3], sITEM, "32")]
    o += head_base(sKNX, sT[3])
    o += window_srd(16, sQP, sT[3])
    o += [salu(f"s_cmp_gt_u32 {sLEFT}, 1", [sLEFT], ["scc"]), sop("s_cselect_b32", sKNX, sKNX, str(OOR)), sop("s_cselect_b32", "s18", "24576", "0"),
          sop("s_mov_b32", sGOF, "0"), sop("s_mov_b32", sQM, sSTG), sop("s_mov_b32", sCNT, "7"), valu("v_mov_b32", VDR, VDR0)]
    return o

def finalize(cfg):
    o = []
    a, b, c, d = LSV
    o += [swap("v_permlane32_swap_b32", a, b), swap("v_permlane32_swap_b32", c, d), valu("v_add_f32", a, a, b), valu("v_add_f32", c, c, d),
          swap("v_permlane16_swap_b32", a, c), valu("v_add_f32", a, a, c)]
    o += [sop("s_mov_b32", sT[4], f2h(cfg.thresh)), I(f"v_cmp_nge_f32 vcc, {sT[4]}, {a}", "V", [sT[4], a], ["vcc"]),
          valu("v_rcp_f32", a, a, kind="E"),
          salu("s_cmp_lg_u64 vcc, 0", ["vcc"], ["scc"]), sop("s_cselect_b32", sT[4], "1", "0"), sop("s_lshl_b32", sT[4], sT[4], sNN), sop("s_or_b32", sFLAG, sFLAG, sT[4])]
    o += [valu("v_mov_b32", c, a), swap("v_permlane16_swap_b32", a, c), valu("v_mov_b32", b, a), valu("v_mov_b32", d, c),
          swap("v_permlane32_swap_b32", a, b), swap("v_permlane32_swap_b32", c, d)]
    for qb in range(4):
        for b_ in range(12):
            rg = regs(Oreg(qb, b_))
            if b_ == 11:
                tmp = [Se(0, i) for i in range(4)]
                o += [I(f"v_accvgpr_read_b32 {tmp[i]}, {rg[i]}", "V", [rg[i]], [tmp[i]]) for i in range(4)]
                rg = tmp
            o += [valu("v_mul_f32", r, r, LSV[qb]) for r in rg]
            o += [valu("v_cvt_pk_bf16_f32", rg[0], rg[0], rg[1]), valu("v_cvt_pk_bf16_f32", rg[1], rg[2], rg[3])]
            o += [ds_write("ds_write_b64", OW[b_ & 3], R("v", int(rg[0][1:]), 2), qb * 6144 + (b_ >> 2) * 1024)]
    o += window_srd(20, sOP, sITEM) + [sop("s_mov_b32", "s22", "24576")]
    o += [sop("s_sub_u32", sLEFT, sLEFT, "1"), sop("s_add_u32", sITEM, sITEM, "32"), sop("s_add_u32", sNN, sNN, "1")]
    return o

def drain_all(cfg):
    o = [valu("v_mov_b32", VDR, VDR0), sop("s_mov_b32", sGOF, "0")]
    regsets = [R("a", 4 * i, 4) for i in range(24)]
    for i in range(24): o.append(ds_read("ds_read_b128", regsets[i], VDR, i * 1024))
    seq = o[:2]; rds = o[2:]
    seq += rds[:12]
    for i in range(24):
        left = min(11, 23 - i)
        seq.append(waitcnt(lgkm=left))
        if (i // 3) * 3072 + (i % 3) * 128 < 4096:
            seq.append(gstore(regsets[i], VOFF, SRO, sGOF, (i // 3) * 3072 + (i % 3) * 128, cfg.polo, tag="O"))
        else:
            if i % 3 == 0: seq.append(sop("s_mov_b32", sGOF, str((i // 3) * 3072)))
            seq.append(gstore(regsets[i], VOFF, SRO, sGOF, (i % 3) * 128, cfg.polo, tag="O"))
        if i + 12 < 24: seq.append(rds[i + 12])
    return seq

def setup(cfg):
    o = []
    x = lambda t: o.append(salu(t))
    x("s_cmp_ge_u32 s2, 256"); x("s_cbranch_scc1 L_end")
    if cfg.stamps: x("s_memtime s[60:61]"); x("s_memrealtime s[62:63]")
    x(f"s_load_dwordx4 s[4:7], s[0:1], 0"); x("s_load_dwordx2 s[12:13], s[0:1], 16"); x(f"s_load_dwordx2 s[{sOP}:{sOP+1}], s[0:1], 24")
    if cfg.stamps: x(f"s_load_dwordx2 s[56:57], s[0:1], {32 if cfg.stamps == 2 else 40}")
    L, N, G, A, B_ = T
    o += [valu("v_lshrrev_b32", A, "6", "v0"), valu("v_and_b32", L, "63", "v0"), I(f"v_readfirstlane_b32 {sWAVE}, {A}", "V", [A], [sWAVE])]
    o += [valu("v_and_b32", N, "15", L), valu("v_lshrrev_b32", G, "4", L)]
    x("s_nop 2")
    o += [sop("s_mul_i32", sRB, sWAVE, "3072"), sop("s_mul_i32", sSTG, sWAVE, "24576"), sop("s_add_u32", sSTG, sSTG, str(STG)), sop("s_mov_b32", sC, f2h(CSCALE))]
    o += [sop("s_and_b32", sT[0], "s2", "7"), sop("s_mul_i32", sT[0], sT[0], "96"), sop("s_lshr_b32", sT[1], "s2", "3"), sop("s_add_u32", sXB, sT[0], sT[1])]
    o += [valu("v_lshrrev_b32", A, "3", N), valu("v_mul_u32_u24", "v0", "3072", A), valu("v_and_b32", "v1", "7", N), valu("v_lshl_add_u32", "v0", "v1", "7", "v0")]
    for e in range(2):
        o += [valu("v_add_u32", A, str(4 * e), G), valu("v_xor_b32", A, A, "v1"), valu("v_lshl_add_u32", KA[e], A, "4", "v0"), valu("v_add_u32", QA[e], sSTG, KA[e])]
    o += [valu("v_lshrrev_b32", "v2", "1", G), valu("v_and_b32", "v3", "1", G), valu("v_lshl_add_u32", "v3", "v3", "3", "v0"), valu("v_add_u32", "v3", sSTG, "v3")]
    for j in range(4):
        o += [valu("v_add_u32", A, str(2 * j), "v2"), valu("v_xor_b32", A, A, "v1"), valu("v_lshl_add_u32", OW[j], A, "4", "v3")]
    o += [valu("v_lshrrev_b32", B_, "2", L), valu("v_lshrrev_b32", A, "3", B_), valu("v_mul_u32_u24", "v0", "3072", A), valu("v_and_b32", "v1", "7", B_),
          valu("v_lshl_add_u32", "v0", "v1", "7", "v0"), valu("v_and_b32", A, "1", L), valu("v_lshl_add_u32", "v0", A, "3", "v0"), valu("v_bfe_u32", "v2", L, "1", "1")]
    for j in range(4):
        o += [valu("v_add_u32", A, str(2 * j), "v2"), valu("v_xor_b32", A, A, "v1"), valu("v_lshl_add_u32", VA[j], A, "4", "v0")]
    o += [valu("v_lshrrev_b32", A, "3", L), valu("v_and_b32", B_, "7", L), valu("v_xor_b32", B_, B_, A), valu("v_mul_u32_u24", A, "384", A), valu("v_lshl_add_u32", VOFF, B_, "4", A)]
    o += [valu("v_lshlrev_b32", A, "4", L), valu("v_add_u32", VDR0, sSTG, A)]
    x("s_waitcnt lgkmcnt(0)")
    x(f"s_mov_b32 s{sQP}, s4"); x(f"s_mov_b32 s{sQP+1}, s5"); x("s_mov_b32 s8, s6"); x("s_mov_b32 s9, s7")
    for lo in (8, 12): x(f"s_mov_b32 s{lo+2}, 50331648"); x(f"s_mov_b32 s{lo+3}, 0x20000")
    x("s_mov_b32 s19, 0x20000"); x("s_mov_b32 s23, 0x20000")
    if cfg.stamps: x(f"s_mov_b32 s58, {256 if cfg.stamps == 2 else 301989888}"); x("s_mov_b32 s59, 0x20000")
    o += [sop("s_mov_b32", sITEM, sXB), sop("s_mov_b32", sLEFT, "3"), sop("s_mov_b32", sNN, "0"), sop("s_mov_b32", sFLAG, "0"), sop("s_mov_b32", sMODE, "0"), sop("s_mov_b32", sTODO, "0")]
    return o

def start_run(cfg):
    o = []
    o += head_base(sKOF, sITEM) + [sop("s_mov_b32", sVOF, sKOF)]
    for m0, d in kv_dma(cfg, "K", 0): o += [m0, nop(0), d]
    o += window_srd(16, sQP, sITEM) + [sop("s_mov_b32", "s18", "24576")]
    o += [sop("s_mov_b32", "s20", f"s{sOP}"), sop("s_mov_b32", "s21", f"s{sOP+1}"), sop("s_mov_b32", "s22", "0")]
    for rg in range(8):
        o += [sop("s_mov_b32", sGOF, str(rg * 3072))]
        for cb in range(3):
            o += [sop("s_add_u32", "m0", sSTG, str(rg * 3072 + cb * 896)), nop(0), dma(VOFF, SRQ, sGOF, cb * 128, cfg.polq, tag="Q")]
    for m0, d in kv_dma(cfg, "V", 0): o += [m0, nop(0), d]
    o += [sop("s_add_u32", sKOF, sKOF, "12288"), sop("s_mov_b32", sVOF, sKOF)]
    for m0, d in kv_dma(cfg, "K", 1): o += [m0, nop(0), d]
    o += [sop("s_add_u32", sKOF, sKOF, "12288")]
    o += next_item_setup()
    for qb in range(4): o += [valu("v_mov_b32", MC[qb], "0xff800000"), valu("v_mov_b32", LS[qb], "0")]
    o += [waitcnt(vm=6)]
    qr = q_reads()
    o += qr[:12] + [waitcnt(lgkm=4)] + qr[12:]
    return o

def max_pass(cfg):
    L, N, G, A, B_ = T
    o = [waitcnt(vm=0, lgkm=0), valu("v_mul_u32_u24", A, "384", N), valu("v_lshl_add_u32", A, G, "4", A)]
    o += [sop("s_mul_hi_u32", sT[5], sITEM, "0x55555556"), sop("s_mul_i32", sT[5], sT[5], "196608"), sop("s_mov_b32", sT[6], "16")]
    o += [label("L_maxloop")]
    body = []
    for kb in range(2):
        if kb: body.append(sop("s_add_u32", sT[5], sT[5], "6144"))
        for s in range(6): body.append(gload(Kreg(kb, s), A, SRK, sT[5], s * 64))
    body += [sop("s_add_u32", sT[5], sT[5], "6144"), waitcnt(vm=0)]
    body += qk_mfmas() + [nop(7)]
    for qb in range(4):
        for e in range(0, 8, 2): body.append(valu("v_max3_f32", MC[qb], MC[qb], Se(qb, e), Se(qb, e + 1)))
    body += [sop("s_sub_u32", sT[6], sT[6], "1"), salu(f"s_cmp_lg_u32 {sT[6]}, 0"), salu("s_cbranch_scc1 L_maxloop")]
    return o + body

def stamp(idx):
    return [salu(f"s_memtime s[{64+2*idx}:{65+2*idx}]")]

def build(cfg):
    blk = {}
    for k in "PZOEXYT": blk[k] = fixnops(iteration(cfg, k), k)
    blk["setup"] = fixnops(setup(cfg), "setup")
    blk["start"] = fixnops(start_run(cfg), "start")
    blk["max"] = max_pass(cfg)
    blk["k0"] = [salu("s_barrier")] + k_reads(0) + [waitcnt(lgkm=0)]
    blk["Tsave"] = [nop(0)] + [valu("v_mov_b32", LSV[q], LS[q]) for q in range(4)] + [nop(1)]
    blk["F"] = fixnops([nop(1)] + finalize(cfg), "F")
    blk["newitem"] = next_item_setup()
    blk["D"] = fixnops(drain_all(cfg), "D")
    br = lambda t: [salu(t)]
    def item(): return blk["Z"] + (blk["O"] + br("b") + blk["E"] + br("b")) * 6 + blk["O"] + br("b") + blk["X"] + br("b")
    mid = blk["Y"] + blk["F"] + br("b") + br("b") + blk["newitem"]
    end = blk["T"] + blk["Tsave"] + br("b") + blk["F"] + br("b") + br("b") + blk["D"]
    tr1 = blk["setup"] + blk["start"] + br("b") + br("b") + blk["k0"] + blk["P"] + br("b") + item() + mid + item() + mid + item() + end
    tr2 = blk["setup"] + blk["start"] + br("b") + br("b") + blk["max"] + blk["k0"] + blk["P"] + br("b") + item() + end
    best = {}
    for tr in (tr1, tr2):
        vm = []
        for ins in tr:
            if ins.kind == "G": vm.append(ins.tag)
            if getattr(ins, "need", None):
                tag, nb = ins.need
                seen = 0; cnt = None
                for j in range(len(vm) - 1, -1, -1):
                    if vm[j] == tag:
                        if seen == 3 * (nb - 1): cnt = len(vm) - 1 - j; break
                        seen += 1
                assert cnt is not None
                best[id(ins)] = (min(cnt, best.get(id(ins), (99,))[0]), ins)
    for cnt, ins in best.values():
        ins.vm = cnt; ins.text = f"s_waitcnt vmcnt({cnt}) lgkmcnt(0)"
    for tr, n in ((tr1, "tr1"), (tr2, "tr2")):
        p = check(tr, n)
        for x in sorted(set(p)): print("HAZARD", x, file=sys.stderr)
        assert not p
    out = []
    a = out.append
    def emit(seq):
        for i in seq: a(("" if i.kind == "L" else "    ") + i.text)
    a("; @launch grid=(256,1,1) block=(256,1,1) lds=163840")
    a('.amdgcn_target "amdgcn-amd-amdhsa--gfx950"'); a(".text"); a(f".globl {NAME}"); a(".p2align 8"); a(f".type {NAME},@function"); a(f"{NAME}:")
    emit(blk["setup"])
    a("L_run:")
    emit(blk["start"])
    a(f"    s_cmp_eq_u32 {sMODE}, 0"); a("    s_cbranch_scc1 L_k0")
    emit(blk["max"])
    a("L_k0:")
    emit(blk["k0"])
    if cfg.stamps: emit(stamp(2))
    emit(blk["P"])
    a("    s_branch L_Z")
    a(".p2align 6"); a("L_Y:")
    emit(blk["Y"])
    a("L_F:")
    emit(blk["F"])
    a(f"    s_cmp_eq_u32 {sLEFT}, 0"); a("    s_cbranch_scc1 L_D")
    emit(blk["newitem"])
    a(".p2align 3"); a("L_Z:")
    emit(blk["Z"])
    a(".p2align 3"); a("L_O:")
    emit(blk["O"])
    a("    s_cbranch_scc1 L_X")
    a(".p2align 3")
    emit(blk["E"])
    a("    s_branch L_O")
    a(".p2align 6"); a("L_X:")
    emit(blk["X"])
    a("    s_cbranch_scc0 L_Y")
    emit(blk["T"]); emit(blk["Tsave"])
    if cfg.stamps: emit(stamp(3))
    a("    s_branch L_F")
    a("L_D:")
    if cfg.stamps: emit(stamp(4))
    emit(blk["D"])
    a(f"    s_cmp_lg_u32 {sMODE}, 0"); a("    s_cbranch_scc1 L_todo")
    a(f"    v_mov_b32 v0, {sFLAG}"); a(f"    s_lshl_b32 {sT[0]}, {sWAVE}, 2"); a(f"    s_add_u32 {sT[0]}, {sT[0]}, {FLAGS_LDS}"); a(f"    v_mov_b32 v1, {sT[0]}")
    a("    ds_write_b32 v1, v0"); a("    s_waitcnt lgkmcnt(0)"); a("    s_barrier")
    a(f"    v_mov_b32 v1, {FLAGS_LDS}"); a("    ds_read_b128 v[4:7], v1"); a("    s_waitcnt lgkmcnt(0)")
    a("    v_or_b32 v4, v4, v5"); a("    v_or3_b32 v4, v4, v6, v7"); a("    s_nop 1"); a(f"    v_readfirstlane_b32 {sTODO}, v4"); a(f"    s_mov_b32 {sMODE}, 1"); a("    s_nop 3")
    a("L_todo:")
    a(f"    s_and_b32 {sTODO}, {sTODO}, 7")
    a(f"    s_cbranch_scc0 L_fin")
    a(f"    s_ff1_i32_b32 {sNN}, {sTODO}"); a(f"    s_bitset0_b32 {sTODO}, {sNN}")
    a(f"    s_lshl_b32 {sITEM}, {sNN}, 5"); a(f"    s_add_u32 {sITEM}, {sITEM}, {sXB}"); a(f"    s_mov_b32 {sLEFT}, 1")
    a("    s_waitcnt vmcnt(0) lgkmcnt(0)"); a("    s_barrier"); a("    s_branch L_run")
    a("L_fin:")
    if cfg.stamps:
        a("    s_waitcnt vmcnt(0)")
        a("    s_memtime s[64:65]"); a("    s_memrealtime s[66:67]"); a("    s_waitcnt lgkmcnt(0)")
        a(f"    s_cmp_lg_u32 {sWAVE}, 0"); a("    s_cbranch_scc1 L_end")
        if cfg.stamps == 2:
            a("    s_not_b32 s76, s62"); a("    s_sub_u32 s77, s64, s60"); a("    s_sub_u32 s78, s68, s60"); a("    s_sub_u32 s79, s70, s60"); a("    s_sub_u32 s80, s72, s60")
            a("    s_sub_u32 s81, s66, s62"); a("    s_not_b32 s82, s66"); a("    s_not_b32 s83, s77"); a("    s_not_b32 s84, s78")
            srcs = [66, 76, 62, 82, 77, 83, 78, 84, 79, 80, 81]
            for i, s in enumerate(srcs): a(f"    v_mov_b32 v{i}, s{s}")
            a("    v_mov_b32 v16, 0"); a("    s_mov_b64 exec, 1")
            for i in range(len(srcs)): a(f"    buffer_atomic_umax v{i}, v16, s[56:59], 0 offen offset:{4*i}")
        else:
            src = [60, 61, 64, 65, 62, 63, 66, 67, 68, 69, 70, 71, 72, 73, 74, 75]
            for i, s in enumerate(src): a(f"    v_mov_b32 v{i}, s{s}")
            a("    s_lshl_b32 s41, s2, 6"); a("    v_mov_b32 v16, 0"); a("    s_mov_b64 exec, 1")
            for i in range(4): a(f"    buffer_store_dwordx4 v[{4*i}:{4*i+3}], v16, s[56:59], s41 offen offset:{16*i}")
    a("L_end:"); a("    s_endpgm")
    a('.section .rodata,"a"'); a(".p2align 6"); a(f".amdhsa_kernel {NAME}")
    for l in ["next_free_vgpr 512", "next_free_sgpr 102", "accum_offset 256", "group_segment_fixed_size 0", "kernarg_size 48", "user_sgpr_count 2",
              "user_sgpr_kernarg_segment_ptr 1", "system_sgpr_workgroup_id_x 1"]: a("  .amdhsa_" + l)
    a(".end_amdhsa_kernel")
    return "\n".join(out) + "\n"

if __name__ == "__main__":
    kw = {}
    for x in sys.argv[2:]:
        k, v = x.split("=", 1)
        kw[k] = (" " + v.replace("+", " ")) if k.startswith("pol") else eval(v)
    open(sys.argv[1], "w").write(build(Cfg(**kw)))
```

```python
import sys
NAME = "standalone__gqa_softmax__near_ridge_kernel"
def wrap(asm, metric):
    asm = asm.replace("; @launch grid=(256,1,1) block=(256,1,1) lds=163840",
        f"; @launch kernel={NAME} grid=(256,1,1) block=(256,1,1) lds=163840\n; @launch kernel=probe_kernel grid=(1,1,1) block=(256,1,1) lds=256")
    L = []; a = L.append
    a(".text"); a(".globl probe_kernel"); a(".p2align 8"); a(".type probe_kernel,@function"); a("probe_kernel:")
    a("s_cmp_ge_u32 s2, 1"); a("s_cbranch_scc1 LP_end")
    a("s_load_dwordx2 s[4:5], s[0:1], 40"); a("s_memrealtime s[10:11]"); a("s_waitcnt lgkmcnt(0)")
    a("s_mov_b32 s6, 301989888"); a("s_mov_b32 s7, 0x20000")
    a("v_lshlrev_b32 v1, 7, v0"); a("v_mov_b32 v2, 0"); a("v_mov_b32 v3, -1")
    a("ds_write_b32 v2, v2"); a("ds_write_b32 v2, v3 offset:4")
    if metric[0] == "span":
        a("buffer_load_dword v4, v1, s[4:7], 0 offen offset:24"); a("buffer_load_dword v5, v1, s[4:7], 0 offen offset:16")
        a("s_waitcnt vmcnt(0) lgkmcnt(0)"); a("s_barrier")
        a("ds_max_u32 v2, v4"); a("ds_min_u32 v2, v5 offset:4"); a("s_waitcnt lgkmcnt(0)"); a("s_barrier")
        a("ds_read_b64 v[6:7], v2"); a("s_waitcnt lgkmcnt(0)"); a("v_sub_u32 v6, v6, v7"); a("v_mul_u32_u24 v6, 10, v6")
    elif metric[0] == "gap":
        a("buffer_load_dword v4, v1, s[4:7], 0 offen offset:24")
        a("s_waitcnt vmcnt(0) lgkmcnt(0)"); a("s_barrier")
        a("ds_max_u32 v2, v4"); a("s_waitcnt lgkmcnt(0)"); a("s_barrier")
        a("ds_read_b32 v6, v2"); a("s_waitcnt lgkmcnt(0)"); a("v_sub_u32 v6, s10, v6"); a("v_mul_u32_u24 v6, 10, v6")
    elif metric[0] == "none":
        a("v_mov_b32 v6, 0")
    else:
        _, hi, lo, sh = metric
        a(f"buffer_load_dword v4, v1, s[4:7], 0 offen offset:{8*hi}"); a(f"buffer_load_dword v5, v1, s[4:7], 0 offen offset:{8*lo}")
        a("s_waitcnt vmcnt(0) lgkmcnt(0)"); a("s_barrier")
        a("v_sub_u32 v4, v4, v5"); a("ds_add_u32 v2, v4"); a("s_waitcnt lgkmcnt(0)"); a("s_barrier")
        a("ds_read_b32 v6, v2"); a("s_waitcnt lgkmcnt(0)"); a(f"v_lshrrev_b32 v6, {sh}, v6")
    a("s_nop 1"); a("v_readfirstlane_b32 s8, v6"); a("s_nop 3"); a("s_min_u32 s8, s8, 200000")
    a("LP_spin:"); a("s_memrealtime s[12:13]"); a("s_waitcnt lgkmcnt(0)"); a("s_sub_u32 s14, s12, s10"); a("s_cmp_lt_u32 s14, s8"); a("s_cbranch_scc1 LP_spin")
    a("LP_end:"); a("s_endpgm")
    kd = ['.p2align 6', '.amdhsa_kernel probe_kernel'] + ["  .amdhsa_" + l for l in ["next_free_vgpr 16", "next_free_sgpr 32", "accum_offset 16", "group_segment_fixed_size 0", "kernarg_size 48", "user_sgpr_count 2",
              "user_sgpr_kernarg_segment_ptr 1", "system_sgpr_workgroup_id_x 1"]] + [".end_amdhsa_kernel"]
    i = asm.index('.section .rodata,"a"')
    return asm[:i] + "\n".join(L) + "\n" + asm[i:] + "\n".join(kd) + "\n"
if __name__ == "__main__":
    src = open(sys.argv[1]).read()
    m = sys.argv[3].split(",")
    m = [m[0]] + [int(x) for x in m[1:]]
    open(sys.argv[2], "w").write(wrap(src, m))
```

```python
import sys, struct, math
from asmlib import *

NAME = "standalone__gqa_softmax__near_ridge_kernel"
def f2h(x): return "0x%08x" % struct.unpack("<I", struct.pack("<f", x))[0]
CSCALE = (192 ** -0.5) * math.log2(math.e)

class Cfg:
    polkv = ""; polq = ""; polo = ""
    stamps = False
    nomem = False
    kill = ""
    vsp = 6
    rdend = 38
    q_early = 6
    nfw = 12
    zwend = 72
    thresh = 2.0 ** 64
    def __init__(s, **kw): s.__dict__.update(kw)

def Oreg(qb, b): return R("v", (qb * 11 + b) * 4, 4) if b < 11 else R("a", 192 + 4 * qb, 4)
SB = 176; PB = 208
def Sreg(qb, kb): return R("v", SB + qb * 8 + kb * 4, 4)
def Se(qb, e): return f"v{SB + qb * 8 + e}"
def Preg(qb): return R("v", PB + 4 * qb, 4)
KA = ["v224", "v225"]; VA = ["v226", "v227", "v228", "v229"]; VOFF = "v230"; VDR = "v231"
MC = [f"v{232+i}" for i in range(4)]; LS = [f"v{236+i}" for i in range(4)]; LSV = [f"v{240+i}" for i in range(4)]
QA = ["v244", "v245"]; OW = ["v246", "v247", "v248", "v249"]; VDR0 = "v250"
T = [f"v{251+i}" for i in range(5)]
def Qreg(qb, s): return R("a", (qb * 6 + s) * 4, 4)
def Kreg(kb, s): return R("a", 96 + (kb * 6 + s) * 4, 4)
def Vreg(b): return R("a", 144 + 4 * b, 4)
def Vhalf(b, x): return R("a", 144 + 4 * b + 2 * x, 2)
def DRreg(i): return R("a", 208 + 4 * i, 4)
SRK, SRV, SRQ, SRO = "s[8:11]", "s[12:15]", "s[16:19]", "s[20:23]"
sWAVE, sKEND, sVEND, sNR, sGOF, sC, sCNT, sLEFT, sITEM, sRB, sSTG, sQM, sFLAG = [f"s{i}" for i in range(24, 37)]
sT = [f"s{i}" for i in range(38, 46)]
sQP, sOP = 46, 48
sXB = "s50"
sNN = "s51"
sMODE = "s52"
sTODO = "s53"
sKP, sVP = 6, 54
sKNX, sVNX = 88, 90
sM0 = 4
M0TAB = {("K", 0): 92, ("K", 1): 95, ("V", 0): 98}
def m0reg(which, slot, cb):
    if (which, slot) == ("V", 1): return ["s101", "s37", "s3"][cb]
    return f"s{M0TAB[(which, slot)] + cb}"
KSLOT = [0, 12288]; VSLOT = [24576, 36864]; STG = 49152; FLAGS_LDS = 49152 + 98304
OOR = 0x40000000

def qk_mfmas():
    out = []
    for qb in range(4):
        for s in range(6):
            for kb in range(2):
                out.append(mfma(Sreg(qb, kb), Kreg(kb, s), Qreg(qb, s), "0" if s == 0 else Sreg(qb, kb)))
    return out
def pv_mfmas(c0):
    return [mfma(Oreg(qb, b), Vreg(b), Preg(qb), "0" if c0 else Oreg(qb, b)) for qb in range(4) for b in range(12)]
def k_reads(slot):
    return [ds_read("ds_read_b128", Kreg(kb, s), KA[s & 1], KSLOT[slot] + kb * 6144 + (s >> 1) * 1024) for s in range(6) for kb in range(2)]
def q_reads():
    return [ds_read("ds_read_b128", Qreg(qb, s), QA[s & 1], qb * 6144 + (s >> 1) * 1024) for qb in range(4) for s in range(6)]
def v_reads(slot):
    return [ds_read("ds_read_b64_tr_b16", Vhalf(b, x), VA[b & 3], VSLOT[slot] + x * 6144 + (b >> 2) * 1024) for b in range(12) for x in range(2)]
def kv_dma(cfg, which, slot, tag=None):
    srd = SRK if which == "K" else SRV
    return [(sop("s_mov_b32", "m0", m0reg(which, slot, cb)), dma(VOFF, srd, "0", cb * 128, cfg.polkv, tag=tag or which)) for cb in range(3)]
def kv_advance(which, wrap=True):
    lo, end, nx = (8, sKEND, sKNX) if which == "K" else (12, sVEND, sVNX)
    o = [sop("s_add_u32", f"s{lo}", f"s{lo}", "12288"), sop("s_addc_u32", f"s{lo+1}", f"s{lo+1}", "0")]
    if wrap:
        o += [salu(f"s_cmp_eq_u32 s{lo}, {end}", [f"s{lo}", end], ["scc"]),
              sop("s_cselect_b64", R("s", lo, 2), R("s", nx, 2), R("s", lo, 2)), sop("s_cselect_b32", f"s{lo+2}", sNR, f"s{lo+2}")]
    return o

class Op:
    def __init__(s, ins, deps=(), lo=0, hi=95, fixed=None, samegap=()):
        s.ins = ins; s.deps = list(deps); s.lo = lo; s.hi = hi; s.fixed = fixed; s.gap = None; s.samegap = list(samegap)

NEXP_H = 22
def sm_ops(minit=None):
    H, Rr = [], []
    egaps = list(range(2, 96, 3))
    for qb in range(4):
        ready = 12 * qb + 11 + 4
        pre = []
        if minit:
            t, u = MC[qb], LS[qb]
            sv = Op(valu("v_mov_b32", LSV[qb], LS[qb]), lo=(0 if qb < 2 else 12 * qb))
            c = []
            def ch(ins, extra=()):
                o = Op(ins, deps=(c[-1:] if c else []) + list(extra), lo=ready); c.append(o); return o
            if minit == "P":
                ch(valu("v_max3_f32", t, t, Se(qb, 0), Se(qb, 1)))
                ch(valu("v_max3_f32", t, t, Se(qb, 2), Se(qb, 3)))
                ch(valu("v_max3_f32", t, t, Se(qb, 4), Se(qb, 5)))
                ch(valu("v_max3_f32", t, t, Se(qb, 6), Se(qb, 7)))
            else:
                ch(valu("v_max3_f32", t, Se(qb, 0), Se(qb, 1), Se(qb, 2)))
                ch(valu("v_max3_f32", t, t, Se(qb, 3), Se(qb, 4)))
                ch(valu("v_max3_f32", t, t, Se(qb, 5), Se(qb, 6)))
                ch(valu("v_max_f32", t, t, Se(qb, 7)))
            ch(valu("v_mov_b32", u, t), [sv])
            ch(swap("v_permlane32_swap_b32", t, u))
            ch(valu("v_max_f32", t, t, u))
            ch(valu("v_mov_b32", u, t))
            ch(swap("v_permlane16_swap_b32", t, u))
            ch(valu("v_max_f32", t, t, u))
            last = ch(valu("v_mul_f32", t, sC, t))
            z = Op(valu("v_mov_b32", u, "0"), deps=[c[-2]], lo=ready)
            H += [sv] + c + [z]
            pre = [last, z]
        prevadd = None
        ex = []
        for e in range(8):
            n = qb * 8 + e
            inH = n < NEXP_H
            f = Op(valu("v_fma_f32", Se(qb, e), Se(qb, e), sC, "-" + MC[qb]), deps=pre[:1])
            x = Op(valu("v_exp_f32", Se(qb, e), Se(qb, e), kind="E"), deps=[f])
            fH = True
            if fH: f.lo = ready
            else: f.deps = []
            (H if fH else Rr).append(f)
            x.fixed = egaps[(32 - NEXP_H) + n] if inH else egaps[n - NEXP_H]
            if not inH and fH: x.deps = []
            (H if inH else Rr).append(x)
            aH = n < NEXP_H - 2
            a = Op(valu("v_add_f32", LS[qb], LS[qb], Se(qb, e)), deps=([x] if (aH or not inH) else []) + (pre[1:] if aH else []))
            if prevadd is not None and prevadd[1] == aH: a.samegap = [prevadd[0]]
            if not aH: a.hi = 12 * qb - 1
            prevadd = (a, aH)
            (H if aH else Rr).append(a)
            ex.append((x, inH))
            if e & 1:
                cv = Op(valu("v_cvt_pk_bf16_f32", f"v{PB + 4*qb + (e >> 1)}", Se(qb, e - 1), Se(qb, e)),
                        deps=[y for (y, h) in ex[-2:] if h == aH])
                if aH: cv.lo = 48 + 12 * qb + 11
                else: cv.hi = 12 * qb - 1
                (H if aH else Rr).append(cv)
        for o in H + Rr:
            if not hasattr(o, "qb"): o.qb = qb
    return H, Rr

def schedule(mf, mem, sal, ops, sq=()):
    sq = list(sq)
    for g in range(96):
        while sq and sq[0][0] <= g and ((g not in mem and g not in sal) or sq[0][1] <= g):
            sal.setdefault(g, []).append(sq.pop(0)[2])
    assert not sq
    cons = {id(o): [] for o in ops}
    for o in ops:
        for d in o.deps: cons[id(d)].append((o, 1))
        for d in o.samegap: cons[id(d)].append((o, 0))
    def dl(o, memo={}):
        if id(o) in memo: return memo[id(o)]
        v = o.fixed if o.fixed is not None else o.hi
        if o.fixed is None:
            for c, k in cons[id(o)]:
                v = min(v, dl(c, memo) - k - (1 if getattr(c.ins, "perm", False) else 0))
        memo[id(o)] = v
        return v
    memo = {}
    for o in ops: o.dl = dl(o, memo)
    for o in ops: assert o.dl >= o.lo, (o.ins, o.dl, o.lo)
    out = []; over = 0
    todo = [o for o in ops if o.fixed is None]
    fixed = {o.fixed: o for o in ops if o.fixed is not None}
    for g in range(96):
        if mf[g] is not None: out.append(mf[g])
        m = mem.get(g, []); s = sal.get(g, [])
        room = 2
        out += m; room -= sum(2 if x.kind == 'W' else 1 for x in m)
        out += s; room -= (len(s) if m else max(0, len(s) - 1))
        if g in fixed:
            o = fixed[g]
            assert all(d.gap is not None and d.gap < g for d in o.deps), o.ins
            o.gap = g; out.append(o.ins); room -= 2
        while True:
            rdy = [o for o in todo if o.lo <= g and all(d.gap is not None and d.gap + (1 if getattr(o.ins, "perm", False) else 0) < g for d in o.deps)
                   and all(d.gap is not None for d in o.samegap)]
            if not rdy: break
            o = min(rdy, key=lambda o: o.dl)
            if room <= 0 and o.dl > g: break
            o.gap = g; todo.remove(o); out.append(o.ins); room -= 1
        over += max(0, -room)
    assert not todo, [o.ins for o in todo]
    return out, over

def spread(rd, free, M):
    n = len(rd)
    for k, g in enumerate(free):
        while rd and (n - len(rd)) < (n * (k + 1) + len(free) - 1) // len(free) if n > len(free) else (rd and n - len(rd) <= k):
            M(g, rd.pop(0))
    assert not rd

def drain_reads(n=3): return [ds_read("ds_read_b128", DRreg(i), VDR, i * 1024) for i in range(n)]
def pc_off(i): return (i // 3) * 3072 + (i % 3) * 128
def o_store(cfg, i): return gstore(DRreg(i), VOFF, SRO, sGOF, pc_off(i), cfg.polo, tag="O")
def q_dma(cfg, i, tag="Q"): return (sop("s_add_u32", "m0", sQM, str((i % 3) * 896)), dma(VOFF, SRQ, "0", pc_off(i), cfg.polq, tag=tag))
def stage_advance(n):
    return [sop("s_add_u32", "s16", "s16", str(n)), sop("s_addc_u32", "s17", "s17", "0"), sop("s_add_u32", sGOF, sGOF, str(n)), sop("s_add_u32", sQM, sQM, str(n))]

def fin_order():
    g = []
    for q0 in (0, 2):
        g += [((q0, j), (q0, j + 4)) for j in range(4)] + [((q0, j + 8), (q0 + 1, j)) for j in range(4)] + [((q0 + 1, j + 4), (q0 + 1, j + 8)) for j in range(4)]
    return g

def iteration(cfg, kind):
    par = {"A": 0, "Z": 0, "O": 1, "E": 0, "X": 0, "Y": 1}[kind]
    mf = qk_mfmas() + pv_mfmas(kind in "AZ")
    mem = {}; sal = {}; sq = []
    def M(g, i):
        l = mem.setdefault(g, [])
        l.insert(len([x for x in l if x.kind != "W"]), i) if i.kind == "D" else l.append(i)
    def busy(g): return g in mem and any(x.kind != "W" for x in mem[g])
    def S(g, i): sal.setdefault(g, []).append(i)
    def Q(lo, hi, lst): sq.extend((lo, hi, x) for x in lst)
    ops = sm_ops()[1] + sm_ops({"Y": "Y"}.get(kind))[0]
    sp = cfg.vsp
    nq = {"A": 6, "Z": 6, "E": 3}.get(kind, 0)
    S(0, salu("s_barrier"))
    for j, (m0, d) in enumerate(kv_dma(cfg, "K", (par + 1) & 1)):
        S(2 + sp * j, m0); M(3 + sp * j, d)
    if kind == "E":
        for i in range(3): M(21 + 12 * i, o_store(cfg, i))
    if kind == "Z":
        wr = [fin_pair(x, y)[1] for x, y in fin_order()][cfg.nfw:]
        cand = list(range(1, cfg.zwend, 3))
        wg = [cand[int(k * len(cand) / len(wr))] for k in range(len(wr))]
        for g, w in zip(wg, wr): M(g, w)
        assert cfg.nfw >= 8
        for k, d in enumerate(drain_reads(6)): M([6, 6, 12, 12, 18, 18][k], d)
        w = waitcnt(lgkm=0); w.needlg = mem[6][-1]; S(20, w)
        w = waitcnt(lgkm=0); w.needlg = mem[18][-1]; S(32, w)
        for i, g in enumerate([21, 33, 45, 60, 72, 91]): M(g, o_store(cfg, i))
        ops.append(Op(valu("v_add_u32", VDR, "6144", VDR), lo=19))
    spread(v_reads(par), [g for g in range(1, cfg.rdend + (5 if kind == "Z" else 0)) if g % 3 != 2 and not busy(g)], M)
    w = waitcnt(vm=0, lgkm=0); w.need = ("K", 2)
    if kind == "Z": w.lgkm = sum(1 for g in range(cfg.rdend + 5, 48) for x in mem.get(g, []) if x.kind == "W")
    S(47, w)
    if kind == "Y": Q(1, 40, newitem_a())
    Q(4 + 2 * sp, 46, kv_advance("K"))
    if kind == "X": Q(4, 46, window_srd(20, sOP, sITEM) + [sop("s_mov_b32", "s22", WIN)])
    S(48, salu("s_barrier"))
    for j, (m0, d) in enumerate(kv_dma(cfg, "V", par)):
        S(50 + sp * j, m0); M(51 + sp * j, d)
    if kind == "Y": Q(49, 80, newitem_b())
    qg = [69, 75, 81] if nq == 3 else [66, 69, 75, 78, 84, 87]
    adv = kv_advance("V")
    if nq == 6: Q(64, 64, adv[:2])
    for i in range(nq):
        m0, d = q_dma(cfg, i)
        Q(qg[i] - 1, qg[i] - 1, [m0]); M(qg[i], d)
        if nq == 3 and i == 0: Q(70, 73, adv[:2])
        if nq == 3 and i == 1: Q(76, 79, adv[2:])
    if nq == 6: Q(88, 94, adv[2:])
    if nq == 0: Q(52 + 2 * sp, 90, adv)
    if nq: Q(qg[-1] + 1, 94, stage_advance(nq * 1024))
    rd = k_reads(par) + (q_reads() if kind == "X" else []) + (drain_reads() if kind == "O" else [])
    free = [g for g in range(49, 48 + cfg.rdend) if g % 3 != 2 and not busy(g)]
    if len(rd) <= 12 and kind != "Z": free = [g for g in free if g % 3 == 1]
    elif len(rd) < len(free): free = [free[int(k * len(free) / len(rd))] for k in range(len(rd))]
    spread(rd, free, M)
    if kind == "O": ops.append(Op(valu("v_add_u32", VDR, "3072", VDR), lo=48 + cfg.rdend))
    if kind == "Y": ops.append(Op(valu("v_mov_b32", VDR, VDR0)))
    w = waitcnt(vm=0, lgkm=0); w.need = ("V", 2)
    S(95, w)
    if kind == "O": Q(80, 94, [sop("s_sub_u32", sCNT, sCNT, "1"), salu(f"s_cmp_eq_u32 {sCNT}, 0", [sCNT], ["scc"])])
    if kind == "X": Q(80, 94, [salu(f"s_cmp_eq_u32 {sLEFT}, 1", [sLEFT], ["scc"])])
    out, over = schedule(mf, mem, sal, ops, sq)
    for k, i in enumerate(out):
        if hasattr(i, "needlg"):
            n = sum(1 for x in out[out.index(i.needlg) + 1:k] if x.kind in "DW")
            i.lgkm = n; i.text = f"s_waitcnt lgkmcnt({n})"
    for i in out:
        if "bar" in cfg.kill and i.text == "s_barrier": i.text = "s_nop 0"
        if "dma" in cfg.kill and i.kind == "G": i.text = "s_nop 0"
        if "ds" in cfg.kill and i.kind == "D": i.text = "s_nop 0"
    print(f"iteration {kind}: {len(out)} instrs, overflow slots {over}", file=sys.stderr)
    return out

def linear(ops):
    ops = list(ops); ids = set(id(o) for o in ops); done = {}; out = []
    while ops:
        def rdy(o, slack):
            return all(id(d) not in ids or (id(d) in done and len(out) - done[id(d)] > slack) for d in o.deps + o.samegap)
        o = next((o for o in ops if rdy(o, 2)), None) or next((o for o in ops if rdy(o, 1)), None) or next(o for o in ops if rdy(o, 0))
        ops.remove(o); done[id(o)] = len(out); out.append(o.ins)
    return out

def weave(mf, fill, per=2):
    out = []; fill = list(fill)
    for m in mf:
        out.append(m)
        if m.kind != "M": continue
        room = per
        while fill and room >= (2 if fill[0].kind == "E" else 1):
            f = fill.pop(0); out.append(f); room -= 2 if f.kind == "E" else 1
    return out, fill

def vw(tag, n=1, lgkm=None):
    w = waitcnt(vm=0, lgkm=lgkm); w.need = (tag, n); return w

def q0_dma(cfg, rg):
    o = []
    for cb in range(3):
        o += [sop("s_add_u32", "m0", sSTG, str(rg * 3072 + cb * 896)), nop(0), dma(VOFF, SRQ, "0", cb * 128, cfg.polq, tag=f"Q{rg}")]
    return o + [sop("s_add_u32", "s16", "s16", "3072"), sop("s_addc_u32", "s17", "s17", "0")]

def prologue(cfg):
    H = sm_ops("P")[0]
    per = [[o for o in H if o.qb == qb] for qb in range(4)]
    qr = q_reads(); mf = qk_mfmas()
    def kv(which, slot, tag=None):
        o = []
        for m0, d in kv_dma(cfg, which, slot, tag): o += [m0, nop(0), d]
        return o + kv_advance(which, wrap=False)
    o = [vw("K0"), salu("s_barrier")] + k_reads(0)
    for qb in range(4):
        o += [vw(f"Q{2*qb+1}")] + qr[6 * qb:6 * qb + 6]
        for s in range(6):
            o += [waitcnt(lgkm=5 - s)] + mf[12 * qb + 2 * s:12 * qb + 2 * s + 2]
        if qb == 0: o += [label("L_skipq6")] if False else []
        if qb == 0: o += late_q(cfg)
        if qb == 1: o += kv("K", 1, "K1") + kv("V", 0, "V0")
        if qb == 2: o += [salu("s_barrier")] + kv("K", 0) + kv("V", 1) + newitem_a(first=True) + newitem_b()
        if qb == 3: o += [vw("K1"), salu("s_barrier")] + k_reads(1)
        o += linear(per[qb])
    o += [vw("V0", lgkm=0)]
    return o

def late_q(cfg):
    o = []
    for rg in range(cfg.q_early, 8): o += q0_dma(cfg, rg)
    return o

def pkmul(r2, l):
    n = int(l[1:]); pair = R("v", n & ~1, 2)
    sel = " op_sel:[0,1] op_sel_hi:[1,1]" if n & 1 else " op_sel_hi:[1,0]"
    return I(f"v_pk_mul_f32 {r2}, {r2}, {pair}{sel}", "V", [r2, l], [r2])

def fin_block(qb, b, tmp):
    rg = regs(Oreg(qb, b)); o = []
    if rg[0][0] == "a":
        o += [I(f"v_accvgpr_read_b32 {tmp[i]}, {rg[i]}", "V", [rg[i]], [tmp[i]]) for i in range(4)]
        rg = tmp
    n = int(rg[0][1:])
    o += [pkmul(R("v", n, 2), LSV[qb]), pkmul(R("v", n + 2, 2), LSV[qb])]
    d = n if b < 11 else int(regs(Oreg(qb, 10))[2][1:])
    c = [valu("v_cvt_pk_bf16_f32", f"v{d}", rg[0], rg[1]), valu("v_cvt_pk_bf16_f32", f"v{d+1}", rg[2], rg[3])]
    return o, c, R("v", d, 2)

def ow_off(qb, b): return qb * 6144 + (b >> 2) * 1024
FT = {0: ["v240", "v241"], 1: ["v242", "v243"], 2: ["v252", "v253"], 3: ["v254", "v255"]}
def fin_pair(x, y):
    tx = [Se(0, i) for i in range(4)]; ty = [Se(0, 4 + i) for i in range(4)]
    ax, cx, px = fin_block(*x, tx)
    if y is None: return ax + cx, ds_write("ds_write_b64", OW[x[1] & 3], px, ow_off(*x))
    ay, cy, py = fin_block(*y, ty)
    assert x[1] & 3 == y[1] & 3
    a = OW[x[1] & 3]
    return ax + ay + cx + cy, I(f"ds_write2st64_b64 {a}, {px}, {py} offset0:{ow_off(*x)//512} offset1:{ow_off(*y)//512}", "W", [a, px, py], [])

def flag_check(cfg, v):
    return [sop("s_mov_b32", sT[4], f2h(cfg.thresh)), I(f"v_cmp_nge_f32 vcc, {sT[4]}, {v}", "V", [sT[4], v], ["vcc"]),
            salu("s_cmp_lg_u64 vcc, 0", ["vcc"], ["scc"]), sop("s_cselect_b32", sT[4], "1", "0"), sop("s_lshl_b32", sT[4], sT[4], sNN), sop("s_or_b32", sFLAG, sFLAG, sT[4])]

def finalize(cfg):
    a, b, c, d = LSV
    o = [swap("v_permlane32_swap_b32", a, b), swap("v_permlane32_swap_b32", c, d), valu("v_add_f32", a, a, b), valu("v_add_f32", c, c, d)]
    fc = flag_check(cfg, a)
    o += [fc[0], nop(0), swap("v_permlane16_swap_b32", a, c), valu("v_add_f32", a, a, c)]
    o += fc[1:2] + [valu("v_rcp_f32", a, a, kind="E")] + fc[2:4]
    o += [valu("v_mov_b32", c, a)] + fc[4:] + [swap("v_permlane16_swap_b32", a, c), valu("v_mov_b32", b, a), valu("v_mov_b32", d, c), sop("s_add_u32", sNN, sNN, "1"),
          nop(0), swap("v_permlane32_swap_b32", a, b), swap("v_permlane32_swap_b32", c, d), I(".p2align 3", "L")]
    pend = []; done = 0
    for k, (x, y) in enumerate(fin_order()):
        v, w = fin_pair(x, y)
        o += v; pend.append(w)
        while done < cfg.nfw and done < (k + 1) * cfg.nfw // 24:
            o.append(pend[done]); done += 1
    return o

def tail(cfg):
    Rr = linear(sm_ops()[1])
    mf = pv_mfmas(False); vr = v_reads(1)
    def linv(q0):
        a, b = LSV[q0], LSV[q0 + 1]
        fc = flag_check(cfg, a)
        return [valu("v_mov_b32", a, LS[q0]), valu("v_mov_b32", b, LS[q0 + 1]), nop(0), swap("v_permlane32_swap_b32", a, b), valu("v_add_f32", a, a, b), valu("v_mov_b32", b, a), nop(1),
                swap("v_permlane16_swap_b32", a, b), valu("v_add_f32", a, a, b)] + fc[:2] + [valu("v_rcp_f32", a, a, kind="E")] + fc[2:4] + [valu("v_mov_b32", b, a)] + fc[4:] + [swap("v_permlane32_swap_b32", a, b)]
    o = [salu("s_barrier")] + vr[:14] + [valu("v_mov_b32", VDR, VDR0)] + vr[14:] + linv(0)
    buf = [R("a", 4 * i, 4) for i in range(24)]
    stores = []
    def st(i):
        return [sop("s_mov_b32", sGOF, str((i // 3) * 3072)), gstore(buf[i], VOFF, SRO, sGOF, (i % 3) * 128, cfg.polo, tag="O")]
    o += [waitcnt(lgkm=0)]
    for qb in range(4):
        m = mf[12 * qb:12 * qb + 12]
        if qb == 2:
            o += Rr + linv(2); Rr = []
        if stores:
            w1, _ = weave(m[:6], [])
            seq = m[:5] + [waitcnt(lgkm=0)] + m[5:6] + st(stores.pop(0)) + m[6:]
        else:
            seq = m
        w, Rr = weave(seq, Rr)
        o += w + [nop(7)]
        grp = [fin_pair((qb, j), (qb, j + 4)) for j in range(4)] + [fin_pair((qb, j + 8), None) for j in range(4)]
        for k, g in enumerate(grp):
            o += g[0] + [g[1]]
            if k in (0, 3, 6) and stores: o += st(stores.pop(0))
        for i in range(6 * qb, 6 * qb + 6):
            o.append(ds_read("ds_read_b128", buf[i], VDR, i * 1024)); stores.append(i)
    o += [waitcnt(lgkm=0)]
    for i in stores: o += st(i)
    return o

def fixnops(seq, name):
    import re
    for _ in range(400):
        p = [x for x in check(seq, name) if "dist" in x]
        if not p: return seq
        for k in range(1, len(seq) + 1):
            q = [x for x in check(seq[:k], name) if "dist" in x]
            if q:
                m = re.search(r"dist (\d+)(?: < (\d+))?", q[0])
                need = int(m.group(2) or 8) - int(m.group(1))
                seq = seq[:k - 1] + [nop(need - 1)] + seq[k - 1:]
                break
    raise RuntimeError("fixnops")

def window_srd(srd_lo, ptr, item):
    return [sop("s_mul_i32", sT[1], item, "98304"), sop("s_mul_i32", sT[2], sWAVE, "24576"), sop("s_add_u32", sT[1], sT[1], sT[2]),
            sop("s_add_u32", f"s{srd_lo}", f"s{ptr}", sT[1]), sop("s_addc_u32", f"s{srd_lo+1}", f"s{ptr+1}", "0")]

def head_base(dst, item):
    return [sop("s_mul_hi_u32", dst, item, "0x55555556"), sop("s_mul_i32", dst, dst, "196608"), sop("s_add_u32", dst, dst, sRB)]

def newitem_a(first=False):
    o = [] if first else [sop("s_sub_u32", sLEFT, sLEFT, "1"), sop("s_add_u32", sITEM, sITEM, "32")]
    o += head_base(sT[0], sITEM) + [sop("s_add_u32", sT[0], sT[0], "196608"), sop("s_add_u32", sKEND, f"s{sKP}", sT[0]), sop("s_add_u32", sVEND, f"s{sVP}", sT[0])]
    o += [sop("s_add_u32", sT[3], sITEM, "32"), sop("s_min_u32", sT[3], sT[3], "767")]
    o += head_base(sT[0], sT[3])
    o += [sop("s_add_u32", f"s{sKNX}", f"s{sKP}", sT[0]), sop("s_addc_u32", f"s{sKNX+1}", f"s{sKP+1}", "0")]
    return o
def newitem_b():
    o = [sop("s_add_u32", f"s{sVNX}", f"s{sVP}", sT[0]), sop("s_addc_u32", f"s{sVNX+1}", f"s{sVP+1}", "0")]
    o += window_srd(16, sQP, sT[3])
    o += [salu(f"s_cmp_gt_u32 {sLEFT}, 1", [sLEFT], ["scc"]), sop("s_cselect_b32", sNR, KVWIN, "0"), sop("s_cselect_b32", "s18", QWIN, "0"),
          sop("s_mov_b32", sGOF, "0"), sop("s_mov_b32", sQM, sSTG), sop("s_mov_b32", sCNT, "7")]
    return o

def setup(cfg):
    o = []
    x = lambda t: o.append(salu(t))
    x("s_cmp_ge_u32 s2, 256"); x("s_cbranch_scc1 L_end")
    x(f"s_load_dwordx4 s[4:7], s[0:1], 0"); x(f"s_load_dwordx2 s[{sVP}:{sVP+1}], s[0:1], 16"); x(f"s_load_dwordx2 s[{sOP}:{sOP+1}], s[0:1], 24")
    if cfg.stamps: x("s_memtime s[60:61]"); x("s_memrealtime s[62:63]")
    if cfg.stamps: x(f"s_load_dwordx2 s[56:57], s[0:1], {32 if cfg.stamps == 2 else 40}")
    L, N, G, A, B_ = T
    o += [valu("v_lshrrev_b32", A, "6", "v0"), valu("v_and_b32", L, "63", "v0"), I(f"v_readfirstlane_b32 {sWAVE}, {A}", "V", [A], [sWAVE])]
    o += [valu("v_lshrrev_b32", A, "3", L), valu("v_and_b32", B_, "7", L), valu("v_xor_b32", B_, B_, A), valu("v_mul_u32_u24", A, "384", A), valu("v_lshl_add_u32", VOFF, B_, "4", A)]
    o += [sop("s_mul_i32", sRB, sWAVE, "3072"), sop("s_mul_i32", sSTG, sWAVE, "24576"), sop("s_add_u32", sSTG, sSTG, str(STG)), sop("s_mov_b32", sC, f2h(CSCALE))]
    o += [sop("s_and_b32", sT[0], "s2", "7"), sop("s_mul_i32", sT[0], sT[0], "96"), sop("s_lshr_b32", sT[1], "s2", "3"), sop("s_add_u32", sXB, sT[0], sT[1])]
    for lo in (8, 12): x(f"s_mov_b32 s{lo+3}, 0x20000")
    for which, tab in (("K", KSLOT), ("V", VSLOT)):
        for slot in range(2):
            for cb in range(3): o.append(sop("s_add_u32", m0reg(which, slot, cb), sRB, str(tab[slot] + cb * 896)))
    x("s_mov_b32 s19, 0x20000"); x("s_mov_b32 s23, 0x20000")
    if cfg.stamps: x(f"s_mov_b32 s58, {256 if cfg.stamps == 2 else 301989888}"); x("s_mov_b32 s59, 0x20000")
    o += [sop("s_mov_b32", sITEM, sXB), sop("s_mov_b32", sLEFT, "3"), sop("s_mov_b32", sNN, "0"), sop("s_mov_b32", sFLAG, "0"), sop("s_mov_b32", sMODE, "0"), sop("s_mov_b32", sTODO, "0")]
    x("s_waitcnt lgkmcnt(0)")
    x(f"s_mov_b32 s{sQP}, s4"); x(f"s_mov_b32 s{sQP+1}, s5")
    return o

def addr_setup():
    L, N, G, A, B_ = T
    o = [valu("v_and_b32", N, "15", L), valu("v_lshrrev_b32", G, "4", L)]
    o += [valu("v_lshrrev_b32", A, "3", N), valu("v_mul_u32_u24", "v0", "3072", A), valu("v_and_b32", "v1", "7", N), valu("v_lshl_add_u32", "v0", "v1", "7", "v0")]
    for e in range(2):
        o += [valu("v_add_u32", A, str(4 * e), G), valu("v_xor_b32", A, A, "v1"), valu("v_lshl_add_u32", KA[e], A, "4", "v0"), valu("v_add_u32", QA[e], sSTG, KA[e])]
    o += [valu("v_lshrrev_b32", "v2", "1", G), valu("v_and_b32", "v3", "1", G), valu("v_lshl_add_u32", "v3", "v3", "3", "v0"), valu("v_add_u32", "v3", sSTG, "v3")]
    for j in range(4):
        o += [valu("v_add_u32", A, str(2 * j), "v2"), valu("v_xor_b32", A, A, "v1"), valu("v_lshl_add_u32", OW[j], A, "4", "v3")]
    o += [valu("v_lshrrev_b32", B_, "2", L), valu("v_lshrrev_b32", A, "3", B_), valu("v_mul_u32_u24", "v0", "3072", A), valu("v_and_b32", "v1", "7", B_),
          valu("v_lshl_add_u32", "v0", "v1", "7", "v0"), valu("v_and_b32", A, "1", L), valu("v_lshl_add_u32", "v0", A, "3", "v0"), valu("v_bfe_u32", "v2", L, "1", "1")]
    for j in range(4):
        o += [valu("v_add_u32", A, str(2 * j), "v2"), valu("v_xor_b32", A, A, "v1"), valu("v_lshl_add_u32", VA[j], A, "4", "v0")]
    o += [valu("v_lshlrev_b32", A, "4", L), valu("v_add_u32", VDR0, sSTG, A)]
    for qb in range(4): o += [valu("v_mov_b32", MC[qb], "0xff800000"), valu("v_mov_b32", LS[qb], "0")]
    return o

def start_run(cfg):
    o = head_base(sT[0], sITEM)
    o += [sop("s_add_u32", "s8", f"s{sKP}", sT[0]), sop("s_addc_u32", "s9", f"s{sKP+1}", "0"), sop("s_mov_b32", "s10", KVWIN)]
    for m0, d in kv_dma(cfg, "K", 0, "K0"): o += [m0, nop(0), d]
    o += window_srd(16, sQP, sITEM) + [sop("s_mov_b32", "s18", QWIN)]
    for rg in range(cfg.q_early): o += q0_dma(cfg, rg)
    fill = addr_setup(); mixed = []
    for x in o:
        if x.text == "s_nop 0" and fill:
            mixed += fill[:3]; del fill[:3]
        else: mixed.append(x)
    o = mixed + fill
    o += kv_advance("K", wrap=False)
    o += [sop("s_add_u32", "s12", f"s{sVP}", sT[0]), sop("s_addc_u32", "s13", f"s{sVP+1}", "0"), sop("s_mov_b32", "s14", KVWIN)]
    o += [sop("s_mov_b32", "s20", f"s{sOP}"), sop("s_mov_b32", "s21", f"s{sOP+1}"), sop("s_mov_b32", "s22", "0"), valu("v_add_u32", VDR, "6144", VDR0)]
    return o

def max_pass(cfg):
    L, N, G, A, B_ = T
    o = [valu("v_and_b32", N, "15", L), valu("v_lshrrev_b32", G, "4", L), valu("v_mul_u32_u24", A, "384", N), valu("v_lshl_add_u32", A, G, "4", A)]
    o += window_srd(20, sQP, sITEM) + [sop("s_mov_b32", "s22", WIN)]
    for qb in range(4):
        o.append(sop("s_mov_b32", sT[5], str(qb * 6144)))
        for s in range(6): o.append(gload(Qreg(qb, s), A, SRO, sT[5], s * 64))
    o += [sop("s_mul_hi_u32", sT[5], sITEM, "0x55555556"), sop("s_mul_i32", sT[5], sT[5], "196608"), sop("s_mov_b32", sT[6], "16")]
    o += [sop("s_mov_b32", "s20", f"s{sKP}"), sop("s_mov_b32", "s21", f"s{sKP+1}"), sop("s_mov_b32", "s22", "0" if cfg.nomem else "50331648")]
    o += [label("L_maxloop")]
    body = []
    for kb in range(2):
        if kb: body.append(sop("s_add_u32", sT[5], sT[5], "6144"))
        for s in range(6): body.append(gload(Kreg(kb, s), A, SRO, sT[5], s * 64))
    body += [sop("s_add_u32", sT[5], sT[5], "6144"), waitcnt(vm=0)]
    body += qk_mfmas() + [nop(7)]
    for qb in range(4):
        for e in range(0, 8, 2): body.append(valu("v_max3_f32", MC[qb], MC[qb], Se(qb, e), Se(qb, e + 1)))
    body += [sop("s_sub_u32", sT[6], sT[6], "1"), salu(f"s_cmp_lg_u32 {sT[6]}, 0"), salu("s_cbranch_scc1 L_maxloop")]
    return o + body + [sop("s_mov_b32", "s20", f"s{sOP}"), sop("s_mov_b32", "s21", f"s{sOP+1}"), sop("s_mov_b32", "s22", "0")]

def stamp(idx):
    return [salu(f"s_memtime s[{64+2*idx}:{65+2*idx}]")]

def build(cfg):
    global WIN, KVWIN, QWIN
    WIN = "0" if cfg.nomem else "24576"
    KVWIN = "0" if cfg.nomem else "3072"
    QWIN = "0" if cfg.nomem else "6144"
    blk = {}
    for k in "AZOEXY": blk[k] = fixnops(iteration(cfg, k), k)
    blk["setup"] = fixnops(setup(cfg), "setup")
    blk["start"] = fixnops(start_run(cfg), "start")
    blk["max"] = max_pass(cfg)
    blk["P"] = fixnops(prologue(cfg), "P")
    blk["F"] = fixnops(finalize(cfg), "F")
    blk["T"] = fixnops(tail(cfg), "T")
    br = lambda t: [salu(t)]
    def item(z="Z"): return blk[z] + (br("b") if z == "A" else []) + (blk["O"] + br("b") + blk["E"] + br("b")) * 6 + blk["O"] + br("b") + blk["X"] + br("b")
    mid = blk["Y"] + blk["F"]
    tr1 = blk["setup"] + blk["start"] + br("b") + br("b") + blk["P"] + item("A") + mid + item() + mid + item() + blk["T"]
    tr2 = blk["setup"] + blk["start"] + br("b") + br("b") + blk["max"] + blk["P"] + item("A") + blk["T"]
    best = {}
    for tr in (tr1, tr2):
        vm = []
        for ins in tr:
            if ins.kind == "G": vm.append(ins.tag)
            if getattr(ins, "need", None):
                tag, nb = ins.need
                seen = 0; cnt = None
                for j in range(len(vm) - 1, -1, -1):
                    if vm[j] == tag:
                        if seen == 3 * (nb - 1): cnt = len(vm) - 1 - j; break
                        seen += 1
                assert cnt is not None
                best[id(ins)] = (min(cnt, best.get(id(ins), (99,))[0]), ins)
    for cnt, ins in best.values():
        ins.vm = cnt; ins.text = f"s_waitcnt vmcnt({cnt})" + (f" lgkmcnt({ins.lgkm})" if ins.lgkm is not None else "")
    for tr, n in ((tr1, "tr1"), (tr2, "tr2")):
        p = check(tr, n)
        for x in sorted(set(p)): print("HAZARD", x, file=sys.stderr)
        assert not p
    out = []
    a = out.append
    def emit(seq):
        for i in seq: a(("" if i.kind == "L" else "    ") + i.text)
    a("; @launch grid=(256,1,1) block=(256,1,1) lds=163840")
    a('.amdgcn_target "amdgcn-amd-amdhsa--gfx950"'); a(".text"); a(f".globl {NAME}"); a(".p2align 8"); a(f".type {NAME},@function"); a(f"{NAME}:")
    emit(blk["setup"])
    a("L_run:")
    emit(blk["start"])
    a(f"    s_cmp_eq_u32 {sMODE}, 0"); a("    s_cbranch_scc1 L_k0")
    emit(blk["max"])
    a("L_k0:")
    if cfg.stamps: emit(stamp(2))
    emit(blk["P"])
    if cfg.stamps: emit(stamp(11))
    a(".p2align 3")
    emit(blk["A"])
    a("    s_branch L_O")
    a(".p2align 6"); a("L_Y:")
    if cfg.stamps: emit(stamp(5))
    emit(blk["Y"])
    if cfg.stamps: emit(stamp(6))
    emit(blk["F"])
    a(".p2align 3"); a("L_Z:")
    if cfg.stamps: emit(stamp(7))
    emit(blk["Z"])
    if cfg.stamps: emit(stamp(8))
    a(".p2align 3"); a("L_O:")
    emit(blk["O"])
    a("    s_cbranch_scc1 L_X")
    a(".p2align 3")
    emit(blk["E"])
    a("    s_branch L_O")
    a(".p2align 6"); a("L_X:")
    if cfg.stamps: emit(stamp(9))
    emit(blk["X"])
    a("    s_cbranch_scc0 L_Y")
    if cfg.stamps: emit(stamp(10))
    emit(blk["T"])
    if cfg.stamps: emit(stamp(3))
    a(f"    s_cmp_lg_u32 {sMODE}, 0"); a("    s_cbranch_scc1 L_todo")
    a(f"    v_mov_b32 v0, {sFLAG}"); a(f"    s_lshl_b32 {sT[0]}, {sWAVE}, 2"); a(f"    s_add_u32 {sT[0]}, {sT[0]}, {FLAGS_LDS}"); a(f"    v_mov_b32 v1, {sT[0]}")
    a("    ds_write_b32 v1, v0"); a("    s_waitcnt lgkmcnt(0)"); a("    s_barrier")
    a(f"    v_mov_b32 v1, {FLAGS_LDS}"); a("    ds_read_b128 v[4:7], v1"); a("    s_waitcnt lgkmcnt(0)")
    a("    v_or_b32 v4, v4, v5"); a("    v_or3_b32 v4, v4, v6, v7"); a("    s_nop 1"); a(f"    v_readfirstlane_b32 {sTODO}, v4"); a(f"    s_mov_b32 {sMODE}, 1"); a("    s_nop 3")
    a("L_todo:")
    a(f"    s_and_b32 {sTODO}, {sTODO}, 7")
    a(f"    s_cbranch_scc0 L_fin")
    a(f"    s_ff1_i32_b32 {sNN}, {sTODO}"); a(f"    s_bitset0_b32 {sTODO}, {sNN}")
    a(f"    s_lshl_b32 {sITEM}, {sNN}, 5"); a(f"    s_add_u32 {sITEM}, {sITEM}, {sXB}"); a(f"    s_mov_b32 {sLEFT}, 1")
    a("    s_waitcnt vmcnt(0) lgkmcnt(0)"); a("    s_barrier"); a("    s_branch L_run")
    a("L_fin:")
    if cfg.stamps:
        a("    s_waitcnt vmcnt(0)")
        a("    s_memtime s[64:65]"); a("    s_memrealtime s[66:67]"); a("    s_waitcnt lgkmcnt(0)")
        a(f"    s_cmp_lg_u32 {sWAVE}, 0"); a("    s_cbranch_scc1 L_end")
        if cfg.stamps == 2:
            a("    s_not_b32 s76, s62"); a("    s_sub_u32 s77, s64, s60"); a("    s_sub_u32 s78, s68, s60"); a("    s_sub_u32 s79, s70, s60"); a("    s_sub_u32 s80, s72, s60")
            a("    s_sub_u32 s81, s66, s62"); a("    s_not_b32 s82, s66"); a("    s_not_b32 s83, s77"); a("    s_not_b32 s84, s78")
            srcs = [66, 76, 62, 82, 77, 83, 78, 84, 79, 80, 81]
            for i, s in enumerate(srcs): a(f"    v_mov_b32 v{i}, s{s}")
            a("    v_mov_b32 v16, 0"); a("    s_mov_b64 exec, 1")
            for i in range(len(srcs)): a(f"    buffer_atomic_umax v{i}, v16, s[56:59], 0 offen offset:{4*i}")
        else:
            order = [2, 11, 5, 6, 7, 8, 9, 10, 3, 0, 0, 0]
            src = [60, 61, 64, 65, 62, 63, 66, 67] + [x for k in order for x in (64 + 2 * k, 65 + 2 * k)]
            for i, s in enumerate(src): a(f"    v_mov_b32 v{i}, s{s}")
            a("    s_lshl_b32 s41, s2, 7"); a("    v_mov_b32 v32, 0"); a("    s_mov_b64 exec, 1")
            for i in range(8): a(f"    buffer_store_dwordx4 v[{4*i}:{4*i+3}], v32, s[56:59], s41 offen offset:{16*i}")
    a("L_end:"); a("    s_endpgm")
    a('.section .rodata,"a"'); a(".p2align 6"); a(f".amdhsa_kernel {NAME}")
    for l in ["next_free_vgpr 512", "next_free_sgpr 102", "accum_offset 256", "group_segment_fixed_size 0", "kernarg_size 48", "user_sgpr_count 2",
              "user_sgpr_kernarg_segment_ptr 1", "system_sgpr_workgroup_id_x 1"]: a("  .amdhsa_" + l)
    a(".end_amdhsa_kernel")
    return "\n".join(out) + "\n"

if __name__ == "__main__":
    kw = {}
    for x in sys.argv[2:]:
        k, v = x.split("=", 1)
        kw[k] = (" " + v.replace("+", " ")) if k.startswith("pol") else eval(v)
    open(sys.argv[1], "w").write(build(Cfg(**kw)))
```

```python
import sys
from probe import wrap, NAME
def reader(which, pol, part=(0, 1)):
    slot, nbytes = {"q": (0, 75497472), "k": (8, 50331648), "v": (16, 50331648), "o": (24, 75497472)}[which]
    per = nbytes // 256 // part[1]
    n = per // 4096
    L = []; a = L.append
    a(".text"); a(".globl rd_kernel"); a(".p2align 8"); a(".type rd_kernel,@function"); a("rd_kernel:")
    a("s_cmp_ge_u32 s2, 256"); a("s_cbranch_scc1 LR_end")
    a(f"s_load_dwordx2 s[4:5], s[0:1], {slot}"); a("s_load_dwordx2 s[8:9], s[0:1], 40"); a("s_memrealtime s[12:13]"); a("s_waitcnt lgkmcnt(0)")
    a(f"s_mov_b32 s6, {nbytes}"); a("s_mov_b32 s7, 0x20000"); a("s_mov_b32 s10, 301989888"); a("s_mov_b32 s11, 0x20000")
    a("v_lshlrev_b32 v1, 4, v0"); a(f"s_mul_i32 s16, s2, {per}"); a(f"s_add_u32 s16, s16, {part[0] * (nbytes // part[1])}")
    for r in range(4): a(f"v_mov_b32 v{4+r}, 0")
    for i in range(n):
        if which == "o": a(f"buffer_store_dwordx4 v[4:7], v1, s[4:7], s16 offen{pol}")
        else: a(f"buffer_load_dwordx4 v[{8+4*(i%32)}:{11+4*(i%32)}], v1, s[4:7], s16 offen{pol}")
        a("s_add_u32 s16, s16, 4096")
        a("s_waitcnt vmcnt(30)")
    a("s_waitcnt vmcnt(0)"); a("s_barrier"); a("s_memrealtime s[14:15]"); a("s_waitcnt lgkmcnt(0)")
    a("v_mov_b32 v4, s12"); a("v_mov_b32 v5, s13"); a("v_mov_b32 v6, s14"); a("v_mov_b32 v7, s15"); a("v_mov_b32 v2, 0"); a("s_lshl_b32 s17, s2, 7")
    a("buffer_store_dwordx4 v[4:7], v2, s[8:11], s17 offen offset:16")
    a("LR_end:"); a("s_endpgm")
    kd = ['.p2align 6', '.amdhsa_kernel rd_kernel'] + ["  .amdhsa_" + l for l in ["next_free_vgpr 144", "next_free_sgpr 32", "accum_offset 144", "group_segment_fixed_size 0", "kernarg_size 48", "user_sgpr_count 2",
              "user_sgpr_kernarg_segment_ptr 1", "system_sgpr_workgroup_id_x 1"]] + [".end_amdhsa_kernel"]
    return "\n".join(L) + "\n", "\n".join(kd) + "\n"
if __name__ == "__main__":
    src = open(sys.argv[1]).read()
    which = sys.argv[3]; pol = (" " + sys.argv[4].replace("+", " ")) if len(sys.argv) > 4 and sys.argv[4] != "-" else ""
    part = tuple(int(x) for x in sys.argv[5].split("/")) if len(sys.argv) > 5 else (0, 1)
    asm = wrap(src, ["span"])
    asm = asm.replace(f"; @launch kernel={NAME}", f"; @launch kernel=rd_kernel grid=(256,1,1) block=(256,1,1) lds=0\n; @launch kernel={NAME}")
    code, kd = reader(which, pol, part)
    i = asm.index('.section .rodata,"a"')
    open(sys.argv[2], "w").write(asm[:i] + code + asm[i:] + kd)
```

```python
import sys, struct, math
from asmlib import *

NAME = "standalone__gqa_softmax__near_ridge_kernel"
def f2h(x): return "0x%08x" % struct.unpack("<I", struct.pack("<f", x))[0]
CSCALE = (192 ** -0.5) * math.log2(math.e)

class Cfg:
    polkv = ""; polq = ""; polo = ""
    stamps = False
    nomem = False
    kill = ""
    vsp = 6
    rdend = 38
    q_early = 6
    touch = 0
    trace = 0
    pf = 0
    pfbytes = 24576
    polpf = ''
    exp = ''
    nfw = 24
    zwend = 72
    thresh = 2.0 ** 64
    def __init__(s, **kw): s.__dict__.update(kw)

def Oreg(qb, b): return R("v", (qb * 11 + b) * 4, 4) if b < 11 else R("a", 192 + 4 * qb, 4)
SB = 176; PB = 208
def Sreg(qb, kb): return R("v", SB + qb * 8 + kb * 4, 4)
def Se(qb, e): return f"v{SB + qb * 8 + e}"
def Preg(qb): return R("v", PB + 4 * qb, 4)
KA = ["v224", "v225"]; VA = ["v226", "v227", "v228", "v229"]; VOFF = "v230"; VDR = "v231"
MC = [f"v{232+i}" for i in range(4)]; LS = [f"v{236+i}" for i in range(4)]; LSV = [f"v{240+i}" for i in range(4)]
QA = ["v244", "v245"]; OW = ["v246", "v247", "v248", "v249"]; VDR0 = "v250"
T = [f"v{251+i}" for i in range(5)]
def Qreg(qb, s): return R("a", (qb * 6 + s) * 4, 4)
def Kreg(kb, s): return R("a", 96 + (kb * 6 + s) * 4, 4)
def Vreg(b): return R("a", 144 + 4 * b, 4)
def Vhalf(b, x): return R("a", 144 + 4 * b + 2 * x, 2)
def DRreg(i): return R("a", 208 + 4 * i, 4)
SRK, SRV, SRQ, SRO = "s[8:11]", "s[12:15]", "s[16:19]", "s[20:23]"
sWAVE, sKEND, sVEND, sNR, sGOF, sC, sCNT, sLEFT, sITEM, sRB, sSTG, sQM, sFLAG = [f"s{i}" for i in range(24, 37)]
sT = [f"s{i}" for i in range(38, 46)]
sQP, sOP = 46, 48
sXB = "s50"
sNN = "s51"
sMODE = "s52"
sTODO = "s53"
sKP, sVP = 6, 54
sKNX, sVNX = 88, 90
sM0 = 4
M0TAB = {("K", 0): 92, ("K", 1): 95, ("V", 0): 98}
def m0reg(which, slot, cb):
    if (which, slot) == ("V", 1): return ["s101", "s37", "s3"][cb]
    return f"s{M0TAB[(which, slot)] + cb}"
KSLOT = [0, 12288]; VSLOT = [24576, 36864]; STG = 49152; FLAGS_LDS = 49152 + 98304
OOR = 0x40000000

def qk_mfmas():
    out = []
    for qb in range(4):
        for kb in range(2):
            for s in range(6):
                out.append(mfma(Sreg(qb, kb), Kreg(kb, s), Qreg(qb, s), "0" if s == 0 else Sreg(qb, kb)))
    return out
def pv_mfmas(c0):
    return [mfma(Oreg(qb, b), Vreg(b), Preg(qb), "0" if c0 else Oreg(qb, b)) for qb in range(4) for b in range(12)]
def k_reads(slot):
    return [ds_read("ds_read_b128", Kreg(kb, s), KA[s & 1], KSLOT[slot] + kb * 6144 + (s >> 1) * 1024) for kb in range(2) for s in range(6)]
def q_reads():
    return [ds_read("ds_read_b128", Qreg(qb, s), QA[s & 1], qb * 6144 + (s >> 1) * 1024) for qb in range(4) for s in range(6)]
def v_reads(slot):
    return [ds_read("ds_read_b64_tr_b16", Vhalf(b, x), VA[b & 3], VSLOT[slot] + x * 6144 + (b >> 2) * 1024) for b in range(12) for x in range(2)]
def kv_dma(cfg, which, slot, tag=None):
    srd = SRK if which == "K" else SRV
    return [(sop("s_mov_b32", "m0", m0reg(which, slot, cb)), dma(VOFF, srd, "0", cb * 128, cfg.polkv, tag=tag or which)) for cb in range(3)]
def kv_advance(which, wrap=True):
    lo, end, nx = (8, sKEND, sKNX) if which == "K" else (12, sVEND, sVNX)
    o = [sop("s_add_u32", f"s{lo}", f"s{lo}", "12288"), sop("s_addc_u32", f"s{lo+1}", f"s{lo+1}", "0")]
    if wrap:
        o += [salu(f"s_cmp_eq_u32 s{lo}, {end}", [f"s{lo}", end], ["scc"]),
              sop("s_cselect_b64", R("s", lo, 2), R("s", nx, 2), R("s", lo, 2)), sop("s_cselect_b32", f"s{lo+2}", sNR, f"s{lo+2}")]
    return o

class Op:
    def __init__(s, ins, deps=(), lo=0, hi=95, fixed=None, samegap=()):
        s.ins = ins; s.deps = list(deps); s.lo = lo; s.hi = hi; s.fixed = fixed; s.gap = None; s.samegap = list(samegap)

NEXP_H = 22
def sm_ops(minit=None):
    H, Rr = [], []
    egaps = list(range(2, 96, 3))
    for qb in range(4):
        ready = 12 * qb + 11 + 4
        pre = []
        if minit:
            t, u = MC[qb], LS[qb]
            sv = Op(valu("v_mov_b32", LSV[qb], LS[qb]), lo=(0 if qb < 2 else 12 * qb))
            c = []
            def ch(ins, extra=()):
                o = Op(ins, deps=(c[-1:] if c else []) + list(extra), lo=ready); c.append(o); return o
            if minit == "P":
                ch(valu("v_max3_f32", t, t, Se(qb, 0), Se(qb, 1)))
                ch(valu("v_max3_f32", t, t, Se(qb, 2), Se(qb, 3)))
                ch(valu("v_max3_f32", t, t, Se(qb, 4), Se(qb, 5)))
                ch(valu("v_max3_f32", t, t, Se(qb, 6), Se(qb, 7)))
            else:
                ch(valu("v_max3_f32", t, Se(qb, 0), Se(qb, 1), Se(qb, 2)))
                ch(valu("v_max3_f32", t, t, Se(qb, 3), Se(qb, 4)))
                ch(valu("v_max3_f32", t, t, Se(qb, 5), Se(qb, 6)))
                ch(valu("v_max_f32", t, t, Se(qb, 7)))
            ch(valu("v_mov_b32", u, t), [sv])
            ch(swap("v_permlane32_swap_b32", t, u))
            ch(valu("v_max_f32", t, t, u))
            ch(valu("v_mov_b32", u, t))
            ch(swap("v_permlane16_swap_b32", t, u))
            ch(valu("v_max_f32", t, t, u))
            last = ch(valu("v_mul_f32", t, sC, t))
            z = Op(valu("v_mov_b32", u, "0"), deps=[c[-2]], lo=ready)
            H += [sv] + c + [z]
            pre = [last, z]
        prevadd = None
        ex = []
        for e in range(8):
            n = qb * 8 + e
            inH = n < NEXP_H
            f = Op(valu("v_fma_f32", Se(qb, e), Se(qb, e), sC, "-" + MC[qb]), deps=pre[:1])
            x = Op(valu("v_exp_f32", Se(qb, e), Se(qb, e), kind="E"), deps=[f])
            fH = True
            if fH: f.lo = ready
            else: f.deps = []
            (H if fH else Rr).append(f)
            x.fixed = egaps[(32 - NEXP_H) + n] if inH else egaps[n - NEXP_H]
            if not inH and fH: x.deps = []
            (H if inH else Rr).append(x)
            aH = n < NEXP_H - 2
            a = Op(valu("v_add_f32", LS[qb], LS[qb], Se(qb, e)), deps=([x] if (aH or not inH) else []) + (pre[1:] if aH else []))
            if prevadd is not None and prevadd[1] == aH: a.samegap = [prevadd[0]]
            if not aH: a.hi = 12 * qb - 1
            prevadd = (a, aH)
            (H if aH else Rr).append(a)
            ex.append((x, inH))
            if e & 1:
                cv = Op(valu("v_cvt_pk_bf16_f32", f"v{PB + 4*qb + (e >> 1)}", Se(qb, e - 1), Se(qb, e)),
                        deps=[y for (y, h) in ex[-2:] if h == aH])
                if aH: cv.lo = 48 + 12 * qb + 11
                else: cv.hi = 12 * qb - 1
                (H if aH else Rr).append(cv)
        for o in H + Rr:
            if not hasattr(o, "qb"): o.qb = qb
    return H, Rr

def schedule(mf, mem, sal, ops, sq=()):
    sq = list(sq)
    for g in range(96):
        while sq and sq[0][0] <= g and ((g not in mem and g not in sal) or sq[0][1] <= g):
            sal.setdefault(g, []).append(sq.pop(0)[2])
    assert not sq
    cons = {id(o): [] for o in ops}
    for o in ops:
        for d in o.deps: cons[id(d)].append((o, 1))
        for d in o.samegap: cons[id(d)].append((o, 0))
    def dl(o, memo={}):
        if id(o) in memo: return memo[id(o)]
        v = o.fixed if o.fixed is not None else o.hi
        if o.fixed is None:
            for c, k in cons[id(o)]:
                v = min(v, dl(c, memo) - k - (1 if getattr(c.ins, "perm", False) else 0))
        memo[id(o)] = v
        return v
    memo = {}
    for o in ops: o.dl = dl(o, memo)
    for o in ops: assert o.dl >= o.lo, (o.ins, o.dl, o.lo)
    out = []; over = 0
    todo = [o for o in ops if o.fixed is None]
    fixed = {o.fixed: o for o in ops if o.fixed is not None}
    for g in range(96):
        if mf[g] is not None: out.append(mf[g])
        m = mem.get(g, []); s = sal.get(g, [])
        room = 2
        out += m; room -= sum(2 if x.kind == 'W' else 1 for x in m)
        out += s; room -= (len(s) if m else max(0, len(s) - 1))
        if g in fixed:
            o = fixed[g]
            assert all(d.gap is not None and d.gap < g for d in o.deps), o.ins
            o.gap = g; out.append(o.ins); room -= 2
        while True:
            rdy = [o for o in todo if o.lo <= g and all(d.gap is not None and d.gap + (1 if getattr(o.ins, "perm", False) else 0) < g for d in o.deps)
                   and all(d.gap is not None for d in o.samegap)]
            if not rdy: break
            o = min(rdy, key=lambda o: o.dl)
            if room <= 0 and o.dl > g: break
            o.gap = g; todo.remove(o); out.append(o.ins); room -= 1
        over += max(0, -room)
    assert not todo, [o.ins for o in todo]
    return out, over

def spread(rd, free, M):
    n = len(rd)
    for k, g in enumerate(free):
        while rd and (n - len(rd)) < (n * (k + 1) + len(free) - 1) // len(free) if n > len(free) else (rd and n - len(rd) <= k):
            M(g, rd.pop(0))
    assert not rd

def drain_reads(n=3): return [ds_read("ds_read_b128", DRreg(i), VDR, i * 1024) for i in range(n)]
def pc_off(i): return (i // 3) * 3072 + (i % 3) * 128
def o_store(cfg, i): return gstore(DRreg(i), VOFF, SRO, sGOF, pc_off(i), cfg.polo, tag="O")
def q_dma(cfg, i, tag="Q"): return (sop("s_add_u32", "m0", sQM, str((i % 3) * 896)), dma(VOFF, SRQ, "0", pc_off(i), cfg.polq, tag=tag))
def stage_advance(n):
    return [sop("s_add_u32", "s16", "s16", str(n)), sop("s_addc_u32", "s17", "s17", "0"), sop("s_add_u32", sGOF, sGOF, str(n)), sop("s_add_u32", sQM, sQM, str(n))]

def fin_order():
    g = []
    for q0 in (0, 2):
        g += [((q0, j), (q0, j + 4)) for j in range(4)] + [((q0, j + 8), (q0 + 1, j)) for j in range(4)] + [((q0 + 1, j + 4), (q0 + 1, j + 8)) for j in range(4)]
    return g

def iteration(cfg, kind):
    par = {"A": 0, "Z": 0, "O": 1, "E": 0, "X": 0, "Y": 1}[kind]
    mf = qk_mfmas() + pv_mfmas(kind in "AZ")
    mem = {}; sal = {}; sq = []
    def M(g, i):
        l = mem.setdefault(g, [])
        l.insert(len([x for x in l if x.kind != "W"]), i) if i.kind == "D" else l.append(i)
    def busy(g): return g in mem and any(x.kind != "W" for x in mem[g])
    def S(g, i): sal.setdefault(g, []).append(i)
    def Q(lo, hi, lst): sq.extend((lo, hi, x) for x in lst)
    ops = sm_ops()[1] + sm_ops({"Y": "Y"}.get(kind))[0]
    sp = cfg.vsp
    nq = {"A": 6, "Z": 6, "E": 3}.get(kind, 0)
    S(0, salu("s_barrier"))
    for j, (m0, d) in enumerate(kv_dma(cfg, "K", (par + 1) & 1)):
        S(2 + sp * j, m0); M(3 + sp * j, d)
    if kind == "E":
        for i in range(3): M(21 + 12 * i, o_store(cfg, i))
    if kind == "O" and cfg.pf:
        M(21, I(f"buffer_load_dword v252, v253, s[84:87], 0 offen{cfg.polpf}", "G", ["v253", "s[84:87]"], [], tag="PF"))
    if kind == "Z":
        wr = [fin_pair(x, y)[1] for x, y in fin_order()][cfg.nfw:]
        cand = list(range(1, cfg.zwend, 3))
        wg = [cand[int(k * len(cand) / len(wr))] for k in range(len(wr))]
        for g, w in zip(wg, wr): M(g, w)
        assert cfg.nfw >= 8
        for k, d in enumerate(drain_reads(6)): M([6, 6, 12, 12, 18, 18][k], d)
        w = waitcnt(lgkm=0); w.needlg = mem[6][-1]; S(20, w)
        w = waitcnt(lgkm=0); w.needlg = mem[18][-1]; S(32, w)
        for i, g in enumerate([21, 33, 45, 60, 72, 91]): M(g, o_store(cfg, i))
        ops.append(Op(valu("v_add_u32", VDR, "6144", VDR), lo=19))
    spread(v_reads(par), [g for g in range(1, cfg.rdend + (5 if kind == "Z" else 0)) if g % 3 != 2 and not busy(g)], M)
    w = waitcnt(vm=0, lgkm=0); w.need = ("K", 2)
    if kind == "Z": w.lgkm = sum(1 for g in range(cfg.rdend + 5, 48) for x in mem.get(g, []) if x.kind == "W")
    S(47, w)
    if kind == "Y": Q(1, 40, newitem_a())
    Q(4 + 2 * sp, 46, kv_advance("K"))
    if kind == "O" and cfg.pf: ops.append(Op(valu("v_add_u32", "v253", "4096", "v253"), lo=22))
    if kind == "X" and cfg.pf: Q(4, 46, [sop("s_mov_b32", "s86", "0")])
    if kind == "X": Q(4, 46, window_srd(20, sOP, sITEM) + [sop("s_mov_b32", "s22", WIN)])
    S(48, salu("s_barrier"))
    for j, (m0, d) in enumerate(kv_dma(cfg, "V", par)):
        S(50 + sp * j, m0); M(51 + sp * j, d)
    if kind == "Y": Q(49, 80, newitem_b())
    qg = [69, 75, 81] if nq == 3 else [66, 69, 75, 78, 84, 87]
    adv = kv_advance("V")
    if nq == 6: Q(64, 64, adv[:2])
    for i in range(nq):
        m0, d = q_dma(cfg, i)
        Q(qg[i] - 1, qg[i] - 1, [m0]); M(qg[i], d)
        if nq == 3 and i == 0: Q(70, 73, adv[:2])
        if nq == 3 and i == 1: Q(76, 79, adv[2:])
    if nq == 6: Q(88, 94, adv[2:])
    if nq == 0: Q(52 + 2 * sp, 90, adv)
    if nq: Q(qg[-1] + 1, 94, stage_advance(nq * 1024))
    rd = k_reads(par) + (q_reads() if kind == "X" else []) + (drain_reads() if kind == "O" else [])
    free = [g for g in range(49, 48 + cfg.rdend) if g % 3 != 2 and not busy(g)]
    if len(rd) <= 12 and kind != "Z": free = [g for g in free if g % 3 == 1]
    elif len(rd) < len(free): free = [free[int(k * len(free) / len(rd))] for k in range(len(rd))]
    spread(rd, free, M)
    if kind == "O": ops.append(Op(valu("v_add_u32", VDR, "3072", VDR), lo=48 + cfg.rdend))
    if kind == "Y": ops.append(Op(valu("v_mov_b32", VDR, VDR0)))
    w = waitcnt(vm=0, lgkm=0); w.need = ("V", 2)
    S(95, w)
    if kind == "O": Q(80, 94, [sop("s_sub_u32", sCNT, sCNT, "1"), salu(f"s_cmp_eq_u32 {sCNT}, 0", [sCNT], ["scc"])])
    if kind == "X": Q(80, 94, [salu(f"s_cmp_eq_u32 {sLEFT}, 1", [sLEFT], ["scc"])])
    out, over = schedule(mf, mem, sal, ops, sq)
    for k, i in enumerate(out):
        if hasattr(i, "needlg"):
            n = sum(1 for x in out[out.index(i.needlg) + 1:k] if x.kind in "DW")
            i.lgkm = n; i.text = f"s_waitcnt lgkmcnt({n})"
    for i in out:
        if "bar" in cfg.kill and i.text == "s_barrier": i.text = "s_nop 0"
        if "dma" in cfg.kill and i.kind == "G": i.text = "s_nop 0"
        if "ds" in cfg.kill and i.kind == "D": i.text = "s_nop 0"
    print(f"iteration {kind}: {len(out)} instrs, overflow slots {over}", file=sys.stderr)
    return out

def linear(ops):
    ops = list(ops); ids = set(id(o) for o in ops); done = {}; out = []
    while ops:
        def rdy(o, slack):
            return all(id(d) not in ids or (id(d) in done and len(out) - done[id(d)] > slack) for d in o.deps + o.samegap)
        o = next((o for o in ops if rdy(o, 2)), None) or next((o for o in ops if rdy(o, 1)), None) or next(o for o in ops if rdy(o, 0))
        ops.remove(o); done[id(o)] = len(out); out.append(o.ins)
    return out

def weave(mf, fill, per=2):
    out = []; fill = list(fill)
    for m in mf:
        out.append(m)
        if m.kind != "M": continue
        room = per
        while fill and room >= (2 if fill[0].kind == "E" else 1):
            f = fill.pop(0); out.append(f); room -= 2 if f.kind == "E" else 1
    return out, fill

def vw(tag, n=1, lgkm=None):
    w = waitcnt(vm=0, lgkm=lgkm); w.need = (tag, n); return w

def q0_dma(cfg, rg):
    o = []
    for cb in range(3):
        o += [sop("s_add_u32", "m0", sSTG, str(rg * 3072 + cb * 896)), nop(0), dma(VOFF, SRQ, "0", cb * 128, cfg.polq, tag=f"Q{rg}")]
    return o + [sop("s_add_u32", "s16", "s16", "3072"), sop("s_addc_u32", "s17", "s17", "0")]

def prologue(cfg):
    H = sm_ops("P")[0]
    per = [[o for o in H if o.qb == qb] for qb in range(4)]
    qr = q_reads(); mf = qk_mfmas()
    def kv(which, slot, tag=None):
        o = []
        for m0, d in kv_dma(cfg, which, slot, tag): o += [m0, nop(0), d]
        return o + kv_advance(which, wrap=False)
    o = [vw("K0", lgkm=0), salu("s_barrier")] + k_reads(0)
    if cfg.pf:
        o += [valu("v_lshlrev_b32", "v253", "7", T[0]), valu("v_mov_b32", "v252", "0x40000000"), I(f"v_cmp_gt_u32 vcc, {cfg.pf}, {T[0]}", "V", [T[0]], ["vcc"]), nop(1),
              I("v_cndmask_b32 v253, v252, v253, vcc", "V", ["v252", "v253", "vcc"], ["v253"])]
    for qb in range(4):
        o += [vw(f"Q{2*qb+1}")] + qr[6 * qb:6 * qb + 6]
        for s in range(6):
            o += [waitcnt(lgkm=5 - s), mf[12 * qb + s]]
        o += mf[12 * qb + 6:12 * qb + 12]
        if qb == 0: o += [label("L_skipq6")] if False else []
        if qb == 0: o += late_q(cfg)
        if qb == 1: o += kv("K", 1, "K1") + kv("V", 0, "V0")
        if qb == 2: o += [salu("s_barrier")] + kv("K", 0) + kv("V", 1) + newitem_a(first=True) + newitem_b()
        if qb == 3: o += [vw("K1"), salu("s_barrier")] + k_reads(1)
        o += linear(per[qb])
    o += [vw("V0", lgkm=0)]
    return o

def late_q(cfg):
    o = []
    for rg in range(cfg.q_early, 8): o += q0_dma(cfg, rg)
    return o

def pkmul(r2, l):
    n = int(l[1:]); pair = R("v", n & ~1, 2)
    sel = " op_sel:[0,1] op_sel_hi:[1,1]" if n & 1 else " op_sel_hi:[1,0]"
    return I(f"v_pk_mul_f32 {r2}, {r2}, {pair}{sel}", "V", [r2, l], [r2])

def fin_block(qb, b, tmp):
    rg = regs(Oreg(qb, b)); o = []
    if rg[0][0] == "a":
        o += [I(f"v_accvgpr_read_b32 {tmp[i]}, {rg[i]}", "V", [rg[i]], [tmp[i]]) for i in range(4)]
        rg = tmp
    n = int(rg[0][1:])
    o += [pkmul(R("v", n, 2), LSV[qb]), pkmul(R("v", n + 2, 2), LSV[qb])]
    d = n if b < 11 else int(regs(Oreg(qb, 10))[2][1:])
    c = [valu("v_cvt_pk_bf16_f32", f"v{d}", rg[0], rg[1]), valu("v_cvt_pk_bf16_f32", f"v{d+1}", rg[2], rg[3])]
    return o, c, R("v", d, 2)

def ow_off(qb, b): return qb * 6144 + (b >> 2) * 1024
FT = {0: ["v240", "v241"], 1: ["v242", "v243"], 2: ["v252", "v253"], 3: ["v254", "v255"]}
def fin_pair(x, y):
    tx = [Se(0, i) for i in range(4)]; ty = [Se(0, 4 + i) for i in range(4)]
    ax, cx, px = fin_block(*x, tx)
    if y is None: return ax + cx, ds_write("ds_write_b64", OW[x[1] & 3], px, ow_off(*x))
    ay, cy, py = fin_block(*y, ty)
    assert x[1] & 3 == y[1] & 3
    a = OW[x[1] & 3]
    return ax + ay + cx + cy, I(f"ds_write2st64_b64 {a}, {px}, {py} offset0:{ow_off(*x)//512} offset1:{ow_off(*y)//512}", "W", [a, px, py], [])

def flag_check(cfg, v):
    return [sop("s_mov_b32", sT[4], f2h(cfg.thresh)), I(f"v_cmp_nge_f32 vcc, {sT[4]}, {v}", "V", [sT[4], v], ["vcc"]),
            salu("s_cmp_lg_u64 vcc, 0", ["vcc"], ["scc"]), sop("s_cselect_b32", sT[4], "1", "0"), sop("s_lshl_b32", sT[4], sT[4], sNN), sop("s_or_b32", sFLAG, sFLAG, sT[4])]

def finalize(cfg):
    a, b, c, d = LSV
    o = [swap("v_permlane32_swap_b32", a, b), swap("v_permlane32_swap_b32", c, d), valu("v_add_f32", a, a, b), valu("v_add_f32", c, c, d)]
    fc = flag_check(cfg, a)
    o += [fc[0], nop(0), swap("v_permlane16_swap_b32", a, c), valu("v_add_f32", a, a, c)]
    o += fc[1:2] + [valu("v_rcp_f32", a, a, kind="E")] + fc[2:4]
    o += [valu("v_mov_b32", c, a)] + fc[4:] + [swap("v_permlane16_swap_b32", a, c), valu("v_mov_b32", b, a), valu("v_mov_b32", d, c), sop("s_add_u32", sNN, sNN, "1"),
          nop(0), swap("v_permlane32_swap_b32", a, b), swap("v_permlane32_swap_b32", c, d), I(".p2align 3", "L")]
    pend = []; done = 0
    for k, (x, y) in enumerate(fin_order()):
        v, w = fin_pair(x, y)
        o += v; pend.append(w)
        while done < cfg.nfw and done < (k + 1) * cfg.nfw // 24:
            o.append(pend[done]); done += 1
    return o

def tail(cfg):
    Rr = linear(sm_ops()[1])
    mf = pv_mfmas(False); vr = v_reads(1)
    def linv(q0):
        a, b = LSV[q0], LSV[q0 + 1]
        fc = flag_check(cfg, a)
        return [valu("v_mov_b32", a, LS[q0]), valu("v_mov_b32", b, LS[q0 + 1]), nop(0), swap("v_permlane32_swap_b32", a, b), valu("v_add_f32", a, a, b), valu("v_mov_b32", b, a), nop(1),
                swap("v_permlane16_swap_b32", a, b), valu("v_add_f32", a, a, b)] + fc[:2] + [valu("v_rcp_f32", a, a, kind="E")] + fc[2:4] + [valu("v_mov_b32", b, a)] + fc[4:] + [swap("v_permlane32_swap_b32", a, b)]
    o = [salu("s_barrier")] + vr[:14] + [valu("v_mov_b32", VDR, VDR0)] + vr[14:] + linv(0)
    buf = [R("a", 4 * i, 4) for i in range(24)]
    stores = []
    def st(i):
        return [sop("s_mov_b32", sGOF, str((i // 3) * 3072)), gstore(buf[i], VOFF, SRO, sGOF, (i % 3) * 128, cfg.polo, tag="O")]
    o += [waitcnt(lgkm=0)]
    for qb in range(4):
        m = mf[12 * qb:12 * qb + 12]
        if qb == 2:
            o += Rr + linv(2); Rr = []
        if stores:
            w1, _ = weave(m[:6], [])
            seq = m[:5] + [waitcnt(lgkm=0)] + m[5:6] + st(stores.pop(0)) + m[6:]
        else:
            seq = m
        w, Rr = weave(seq, Rr)
        o += w + [nop(7)]
        grp = [fin_pair((qb, j), (qb, j + 4)) for j in range(4)] + [fin_pair((qb, j + 8), None) for j in range(4)]
        for k, g in enumerate(grp):
            o += g[0] + [g[1]]
            if k in (0, 3, 6) and stores: o += st(stores.pop(0))
        for i in range(6 * qb, 6 * qb + 6):
            o.append(ds_read("ds_read_b128", buf[i], VDR, i * 1024)); stores.append(i)
    o += [waitcnt(lgkm=0)]
    for i in stores: o += st(i)
    return o

def fixnops(seq, name):
    import re
    for _ in range(400):
        p = [x for x in check(seq, name) if "dist" in x]
        if not p: return seq
        for k in range(1, len(seq) + 1):
            q = [x for x in check(seq[:k], name) if "dist" in x]
            if q:
                m = re.search(r"dist (\d+)(?: < (\d+))?", q[0])
                need = int(m.group(2) or 8) - int(m.group(1))
                seq = seq[:k - 1] + [nop(need - 1)] + seq[k - 1:]
                break
    raise RuntimeError("fixnops")

def window_srd(srd_lo, ptr, item):
    return [sop("s_mul_i32", sT[1], item, "98304"), sop("s_mul_i32", sT[2], sWAVE, "24576"), sop("s_add_u32", sT[1], sT[1], sT[2]),
            sop("s_add_u32", f"s{srd_lo}", f"s{ptr}", sT[1]), sop("s_addc_u32", f"s{srd_lo+1}", f"s{ptr+1}", "0")]

def head_base(dst, item):
    return [sop("s_mul_hi_u32", dst, item, "0x55555556"), sop("s_mul_i32", dst, dst, "196608"), sop("s_add_u32", dst, dst, sRB)]

def newitem_a(first=False):
    o = [] if first else [sop("s_sub_u32", sLEFT, sLEFT, "1"), sop("s_add_u32", sITEM, sITEM, "32")]
    o += head_base(sT[0], sITEM) + [sop("s_add_u32", sT[0], sT[0], "196608"), sop("s_add_u32", sKEND, f"s{sKP}", sT[0]), sop("s_add_u32", sVEND, f"s{sVP}", sT[0])]
    o += [sop("s_add_u32", sT[3], sITEM, "32"), sop("s_min_u32", sT[3], sT[3], "767")]
    o += head_base(sT[0], sT[3])
    o += [sop("s_add_u32", f"s{sKNX}", f"s{sKP}", sT[0]), sop("s_addc_u32", f"s{sKNX+1}", f"s{sKP+1}", "0")]
    return o
def newitem_b():
    o = [sop("s_add_u32", f"s{sVNX}", f"s{sVP}", sT[0]), sop("s_addc_u32", f"s{sVNX+1}", f"s{sVP+1}", "0")]
    o += window_srd(16, sQP, sT[3])
    o += [salu(f"s_cmp_gt_u32 {sLEFT}, 1", [sLEFT], ["scc"]), sop("s_cselect_b32", sNR, KVWIN, "0"), sop("s_cselect_b32", "s18", QWIN, "0"),
          sop("s_mov_b32", sGOF, "0"), sop("s_mov_b32", sQM, sSTG), sop("s_mov_b32", sCNT, "7")]
    return o

def setup(cfg):
    o = []
    x = lambda t: o.append(salu(t))
    x("s_cmp_ge_u32 s2, 256"); x("s_cbranch_scc1 L_end")
    x(f"s_load_dwordx4 s[4:7], s[0:1], 0"); x(f"s_load_dwordx2 s[{sVP}:{sVP+1}], s[0:1], 16"); x(f"s_load_dwordx2 s[{sOP}:{sOP+1}], s[0:1], 24")
    if cfg.stamps: x("s_memtime s[60:61]"); x("s_memrealtime s[62:63]")
    if cfg.stamps: x(f"s_load_dwordx2 s[56:57], s[0:1], {32 if cfg.stamps == 2 else 40}")
    L, N, G, A, B_ = T
    o += [valu("v_lshrrev_b32", A, "6", "v0"), valu("v_and_b32", L, "63", "v0"), I(f"v_readfirstlane_b32 {sWAVE}, {A}", "V", [A], [sWAVE])]
    o += [valu("v_lshrrev_b32", A, "3", L), valu("v_and_b32", B_, "7", L), valu("v_xor_b32", B_, B_, A), valu("v_mul_u32_u24", A, "384", A), valu("v_lshl_add_u32", VOFF, B_, "4", A)]
    o += [sop("s_mul_i32", sRB, sWAVE, "3072"), sop("s_mul_i32", sSTG, sWAVE, "24576"), sop("s_add_u32", sSTG, sSTG, str(STG)), sop("s_mov_b32", sC, f2h(CSCALE))]
    o += [sop("s_and_b32", sT[0], "s2", "7"), sop("s_mul_i32", sT[0], sT[0], "96"), sop("s_lshr_b32", sT[1], "s2", "3"), sop("s_add_u32", sXB, sT[0], sT[1])]
    for lo in (8, 12): x(f"s_mov_b32 s{lo+3}, 0x20000")
    for which, tab in (("K", KSLOT), ("V", VSLOT)):
        for slot in range(2):
            for cb in range(3): o.append(sop("s_add_u32", m0reg(which, slot, cb), sRB, str(tab[slot] + cb * 896)))
    x("s_mov_b32 s19, 0x20000"); x("s_mov_b32 s23, 0x20000")
    if cfg.stamps: x(f"s_mov_b32 s58, {256 if cfg.stamps == 2 else 301989888}"); x("s_mov_b32 s59, 0x20000")
    o += [sop("s_mov_b32", sITEM, sXB), sop("s_mov_b32", sLEFT, "3"), sop("s_mov_b32", sNN, "0"), sop("s_mov_b32", sFLAG, "0"), sop("s_mov_b32", sMODE, "0"), sop("s_mov_b32", sTODO, "0")]
    x("s_waitcnt lgkmcnt(0)")
    x(f"s_mov_b32 s{sQP}, s4"); x(f"s_mov_b32 s{sQP+1}, s5")
    return o

def addr_setup():
    L, N, G, A, B_ = T
    o = [valu("v_and_b32", N, "15", L), valu("v_lshrrev_b32", G, "4", L)]
    o += [valu("v_lshrrev_b32", A, "3", N), valu("v_mul_u32_u24", "v0", "3072", A), valu("v_and_b32", "v1", "7", N), valu("v_lshl_add_u32", "v0", "v1", "7", "v0")]
    for e in range(2):
        o += [valu("v_add_u32", A, str(4 * e), G), valu("v_xor_b32", A, A, "v1"), valu("v_lshl_add_u32", KA[e], A, "4", "v0"), valu("v_add_u32", QA[e], sSTG, KA[e])]
    o += [valu("v_lshrrev_b32", "v2", "1", G), valu("v_and_b32", "v3", "1", G), valu("v_lshl_add_u32", "v3", "v3", "3", "v0"), valu("v_add_u32", "v3", sSTG, "v3")]
    for j in range(4):
        o += [valu("v_add_u32", A, str(2 * j), "v2"), valu("v_xor_b32", A, A, "v1"), valu("v_lshl_add_u32", OW[j], A, "4", "v3")]
    o += [valu("v_lshrrev_b32", B_, "2", L), valu("v_lshrrev_b32", A, "3", B_), valu("v_mul_u32_u24", "v0", "3072", A), valu("v_and_b32", "v1", "7", B_),
          valu("v_lshl_add_u32", "v0", "v1", "7", "v0"), valu("v_and_b32", A, "1", L), valu("v_lshl_add_u32", "v0", A, "3", "v0"), valu("v_bfe_u32", "v2", L, "1", "1")]
    for j in range(4):
        o += [valu("v_add_u32", A, str(2 * j), "v2"), valu("v_xor_b32", A, A, "v1"), valu("v_lshl_add_u32", VA[j], A, "4", "v0")]
    o += [valu("v_lshlrev_b32", A, "4", L), valu("v_add_u32", VDR0, sSTG, A)]
    for qb in range(4): o += [valu("v_mov_b32", MC[qb], "0xff800000"), valu("v_mov_b32", LS[qb], "0")]
    return o

def touch_pages(cfg):
    o = []
    def ld(ptr, off): o.append(salu(f"s_load_dword s4, s[{ptr}:{ptr+1}], {off}"))
    o += [sop("s_min_u32", sT[1], sWAVE, "2"), sop("s_lshl_b32", sT[1], sT[1], "5"), sop("s_add_u32", sT[1], sT[1], sXB), sop("s_mul_i32", sT[2], sT[1], "98304")]
    ld(sOP, sT[2])
    if cfg.touch > 1: ld(sQP, sT[2])
    o += [sop("s_add_u32", sT[3], sT[2], "98300")]
    ld(sOP, sT[3])
    if cfg.touch > 1:
        ld(sQP, sT[3])
        o += [sop("s_mul_hi_u32", sT[4], sT[1], "0x55555556"), sop("s_mul_i32", sT[4], sT[4], "196608")]
        ld(sKP, sT[4]); ld(sVP, sT[4])
        o += [sop("s_add_u32", sT[5], sT[4], "196604")]
        ld(sKP, sT[5]); ld(sVP, sT[5])
    return o

def start_run(cfg):
    o = head_base(sT[0], sITEM)
    o += [sop("s_add_u32", "s8", f"s{sKP}", sT[0]), sop("s_addc_u32", "s9", f"s{sKP+1}", "0"), sop("s_mov_b32", "s10", KVWIN)]
    for m0, d in kv_dma(cfg, "K", 0, "K0"): o += [m0, nop(0), d]
    o += window_srd(16, sQP, sITEM) + [sop("s_mov_b32", "s18", QWIN)]
    for rg in range(cfg.q_early): o += q0_dma(cfg, rg)
    fill = addr_setup(); mixed = []
    for x in o:
        if x.text == "s_nop 0" and fill:
            mixed += fill[:3]; del fill[:3]
        else: mixed.append(x)
    o = mixed + fill
    if cfg.touch: o += touch_pages(cfg)
    o += kv_advance("K", wrap=False)
    o += [sop("s_add_u32", "s12", f"s{sVP}", sT[0]), sop("s_addc_u32", "s13", f"s{sVP+1}", "0"), sop("s_mov_b32", "s14", KVWIN)]
    o += [sop("s_mov_b32", "s20", f"s{sOP}"), sop("s_mov_b32", "s21", f"s{sOP+1}"), sop("s_mov_b32", "s22", "0"), valu("v_add_u32", VDR, "6144", VDR0)]
    if cfg.pf:
        o += [sop("s_add_u32", sT[4], sXB, "64")] + window_srd(84, sQP, sT[4])
        o += [salu(f"s_cmp_eq_u32 {sLEFT}, 3", [sLEFT], ["scc"]), sop("s_cselect_b32", "s86", "0" if cfg.nomem else str(cfg.pfbytes), "0"), sop("s_mov_b32", "s87", "0x20000")]
    if cfg.exp == "early_o":
        o += [sop("s_add_u32", sT[4], sITEM, "64")] + window_srd(20, sOP, sT[4]) + [sop("s_mov_b32", "s22", WIN)]
    return o

def max_pass(cfg):
    L, N, G, A, B_ = T
    o = [valu("v_and_b32", N, "15", L), valu("v_lshrrev_b32", G, "4", L), valu("v_mul_u32_u24", A, "384", N), valu("v_lshl_add_u32", A, G, "4", A)]
    o += window_srd(20, sQP, sITEM) + [sop("s_mov_b32", "s22", WIN)]
    for qb in range(4):
        o.append(sop("s_mov_b32", sT[5], str(qb * 6144)))
        for s in range(6): o.append(gload(Qreg(qb, s), A, SRO, sT[5], s * 64))
    o += [sop("s_mul_hi_u32", sT[5], sITEM, "0x55555556"), sop("s_mul_i32", sT[5], sT[5], "196608"), sop("s_mov_b32", sT[6], "16")]
    o += [sop("s_mov_b32", "s20", f"s{sKP}"), sop("s_mov_b32", "s21", f"s{sKP+1}"), sop("s_mov_b32", "s22", "0" if cfg.nomem else "50331648")]
    o += [label("L_maxloop")]
    body = []
    for kb in range(2):
        if kb: body.append(sop("s_add_u32", sT[5], sT[5], "6144"))
        for s in range(6): body.append(gload(Kreg(kb, s), A, SRO, sT[5], s * 64))
    body += [sop("s_add_u32", sT[5], sT[5], "6144"), waitcnt(vm=0)]
    body += qk_mfmas() + [nop(7)]
    for qb in range(4):
        for e in range(0, 8, 2): body.append(valu("v_max3_f32", MC[qb], MC[qb], Se(qb, e), Se(qb, e + 1)))
    body += [sop("s_sub_u32", sT[6], sT[6], "1"), salu(f"s_cmp_lg_u32 {sT[6]}, 0"), salu("s_cbranch_scc1 L_maxloop")]
    return o + body + [sop("s_mov_b32", "s20", f"s{sOP}"), sop("s_mov_b32", "s21", f"s{sOP+1}"), sop("s_mov_b32", "s22", "0")]

def stamp(idx):
    return [salu(f"s_memtime s[{64+2*idx}:{65+2*idx}]")]

def build(cfg):
    global WIN, KVWIN, QWIN
    WIN = "0" if cfg.nomem else "24576"
    KVWIN = "0" if cfg.nomem else "3072"
    QWIN = "0" if cfg.nomem else "6144"
    blk = {}
    for k in "AZOEXY": blk[k] = fixnops(iteration(cfg, k), k)
    blk["setup"] = fixnops(setup(cfg), "setup")
    blk["start"] = fixnops(start_run(cfg), "start")
    blk["max"] = max_pass(cfg)
    blk["P"] = fixnops(prologue(cfg), "P")
    blk["F"] = fixnops(finalize(cfg), "F")
    blk["T"] = fixnops(tail(cfg), "T")
    br = lambda t: [salu(t)]
    def item(z="Z"): return blk[z] + (br("b") if z == "A" else []) + (blk["O"] + br("b") + blk["E"] + br("b")) * 6 + blk["O"] + br("b") + blk["X"] + br("b")
    mid = blk["Y"] + blk["F"]
    tr1 = blk["setup"] + blk["start"] + br("b") + br("b") + blk["P"] + item("A") + mid + item() + mid + item() + blk["T"]
    tr2 = blk["setup"] + blk["start"] + br("b") + br("b") + blk["max"] + blk["P"] + item("A") + blk["T"]
    best = {}
    for tr in (tr1, tr2):
        vm = []
        for ins in tr:
            if ins.kind == "G": vm.append(ins.tag)
            if getattr(ins, "need", None):
                tag, nb = ins.need
                seen = 0; cnt = None
                for j in range(len(vm) - 1, -1, -1):
                    if vm[j] == tag:
                        if seen == 3 * (nb - 1): cnt = len(vm) - 1 - j; break
                        seen += 1
                assert cnt is not None
                best[id(ins)] = (min(cnt, best.get(id(ins), (99,))[0]), ins)
    for cnt, ins in best.values():
        ins.vm = cnt; ins.text = f"s_waitcnt vmcnt({cnt})" + (f" lgkmcnt({ins.lgkm})" if ins.lgkm is not None else "")
    for tr, n in ((tr1, "tr1"), (tr2, "tr2")):
        p = check(tr, n)
        for x in sorted(set(p)): print("HAZARD", x, file=sys.stderr)
        assert not p
    out = []
    a = out.append
    def emit(seq):
        if cfg.trace and any(seq is blk[k] for k in "AZOEXYT"):
            a("    s_mov_b32 m0, s45"); a("    s_nop 0"); a("    v_writelane_b32 v255, s4, m0"); a("    s_add_u32 s45, s45, 1"); a("    s_nop 0"); a("    s_memtime s[4:5]")
        for i in seq: a(("" if i.kind == "L" else "    ") + i.text)
    a("; @launch grid=(256,1,1) block=(256,1,1) lds=163840")
    a('.amdgcn_target "amdgcn-amd-amdhsa--gfx950"'); a(".text"); a(f".globl {NAME}"); a(".p2align 8"); a(f".type {NAME},@function"); a(f"{NAME}:")
    emit(blk["setup"])
    a("L_run:")
    emit(blk["start"])
    a(f"    s_cmp_eq_u32 {sMODE}, 0"); a("    s_cbranch_scc1 L_k0")
    emit(blk["max"])
    a("L_k0:")
    if cfg.trace: a("    s_mov_b32 s45, 0"); a("    s_mov_b32 s4, s60")
    if cfg.stamps: emit(stamp(2))
    emit(blk["P"])
    if cfg.stamps: emit(stamp(8))
    a(".p2align 3")
    emit(blk["A"])
    a("    s_branch L_O")
    a(".p2align 6"); a("L_Y:")
    if cfg.stamps: a("    s_mov_b64 s[72:73], s[74:75]"); a("    s_nop 0"); emit(stamp(5))
    emit(blk["Y"])
    emit(blk["F"])
    a(".p2align 3"); a("L_Z:")
    if cfg.stamps: emit(stamp(7))
    emit(blk["Z"])
    a(".p2align 3"); a("L_O:")
    emit(blk["O"])
    a("    s_cbranch_scc1 L_X")
    a(".p2align 3")
    emit(blk["E"])
    a("    s_branch L_O")
    a(".p2align 6"); a("L_X:")
    if cfg.stamps: emit(stamp(9))
    emit(blk["X"])
    a("    s_cbranch_scc0 L_Y")
    if cfg.stamps: emit(stamp(6))
    emit(blk["T"])
    if cfg.stamps: emit(stamp(3))
    a(f"    s_cmp_lg_u32 {sMODE}, 0"); a("    s_cbranch_scc1 L_todo")
    a(f"    v_mov_b32 v0, {sFLAG}"); a(f"    s_lshl_b32 {sT[0]}, {sWAVE}, 2"); a(f"    s_add_u32 {sT[0]}, {sT[0]}, {FLAGS_LDS}"); a(f"    v_mov_b32 v1, {sT[0]}")
    a("    ds_write_b32 v1, v0"); a("    s_waitcnt lgkmcnt(0)"); a("    s_barrier")
    a(f"    v_mov_b32 v1, {FLAGS_LDS}"); a("    ds_read_b128 v[4:7], v1"); a("    s_waitcnt lgkmcnt(0)")
    a("    v_or_b32 v4, v4, v5"); a("    v_or3_b32 v4, v4, v6, v7"); a("    s_nop 1"); a(f"    v_readfirstlane_b32 {sTODO}, v4"); a(f"    s_mov_b32 {sMODE}, 1"); a("    s_nop 3")
    a("L_todo:")
    a(f"    s_and_b32 {sTODO}, {sTODO}, 7")
    a(f"    s_cbranch_scc0 L_fin")
    a(f"    s_ff1_i32_b32 {sNN}, {sTODO}"); a(f"    s_bitset0_b32 {sTODO}, {sNN}")
    a(f"    s_lshl_b32 {sITEM}, {sNN}, 5"); a(f"    s_add_u32 {sITEM}, {sITEM}, {sXB}"); a(f"    s_mov_b32 {sLEFT}, 1")
    a("    s_waitcnt vmcnt(0) lgkmcnt(0)"); a("    s_barrier"); a("    s_branch L_run")
    a("L_fin:")
    if cfg.stamps:
        a("    s_waitcnt vmcnt(0)")
        a("    s_memtime s[64:65]"); a("    s_memrealtime s[66:67]"); a("    s_waitcnt lgkmcnt(0)")
        a(f"    s_cmp_lg_u32 {sWAVE}, 0"); a("    s_cbranch_scc1 L_end")
        if cfg.stamps == 2:
            a("    s_not_b32 s76, s62"); a("    s_sub_u32 s77, s64, s60"); a("    s_sub_u32 s78, s68, s60"); a("    s_sub_u32 s79, s70, s60"); a("    s_sub_u32 s80, s72, s60")
            a("    s_sub_u32 s81, s66, s62"); a("    s_not_b32 s82, s66"); a("    s_not_b32 s83, s77"); a("    s_not_b32 s84, s78")
            srcs = [66, 76, 62, 82, 77, 83, 78, 84, 79, 80, 81]
            for i, s in enumerate(srcs): a(f"    v_mov_b32 v{i}, s{s}")
            a("    v_mov_b32 v16, 0"); a("    s_mov_b64 exec, 1")
            for i in range(len(srcs)): a(f"    buffer_atomic_umax v{i}, v16, s[56:59], 0 offen offset:{4*i}")
        else:
            order = [2, 8, 4, 5, 7, 9, 6, 3, 0, 0, 0, 0]
            src = [60, 61, 64, 65, 62, 63, 66, 67] + [x for k in order for x in (64 + 2 * k, 65 + 2 * k)]
            for i, s in enumerate(src): a(f"    v_mov_b32 v{i}, s{s}")
            if cfg.trace:
                a("    s_mov_b32 m0, s45"); a("    s_nop 0"); a("    v_writelane_b32 v255, s4, m0"); a("    v_lshlrev_b32 v33, 2, v251"); a("    s_lshl_b32 s41, s2, 8"); a("    s_add_u32 s41, s41, 0x100000")
                a("    buffer_store_dword v255, v33, s[56:59], s41 offen")
            a("    s_lshl_b32 s41, s2, 7"); a("    v_mov_b32 v32, 0"); a("    s_mov_b64 exec, 1")
            for i in range(8): a(f"    buffer_store_dwordx4 v[{4*i}:{4*i+3}], v32, s[56:59], s41 offen offset:{16*i}")
    a("L_end:"); a("    s_endpgm")
    a('.section .rodata,"a"'); a(".p2align 6"); a(f".amdhsa_kernel {NAME}")
    for l in ["next_free_vgpr 512", "next_free_sgpr 102", "accum_offset 256", "group_segment_fixed_size 0", "kernarg_size 48", "user_sgpr_count 2",
              "user_sgpr_kernarg_segment_ptr 1", "system_sgpr_workgroup_id_x 1"]: a("  .amdhsa_" + l)
    a(".end_amdhsa_kernel")
    return "\n".join(out) + "\n"

if __name__ == "__main__":
    kw = {}
    for x in sys.argv[2:]:
        k, v = x.split("=", 1)
        kw[k] = (" " + v.replace("+", " ")) if k.startswith("pol") else eval(v)
    open(sys.argv[1], "w").write(build(Cfg(**kw)))
```

```python
import sys, struct, math
from asmlib import *

NAME = "standalone__gqa_softmax__near_ridge_kernel"
def f2h(x): return "0x%08x" % struct.unpack("<I", struct.pack("<f", x))[0]
CSCALE = (192 ** -0.5) * math.log2(math.e)

class Cfg:
    polkv = " nt"; polq = " nt"; polo = " sc1"
    stamps = False
    nomem = False
    kill = ""
    vsp = 6
    rdend = 38
    q_early = 6
    touch = 0
    trace = 0
    lfin = 3
    lw = 4
    pf = 0
    pfbytes = 24576
    polpf = ''
    exp = ''
    nfw = 24
    zwend = 72
    thresh = 2.0 ** 64
    def __init__(s, **kw): s.__dict__.update(kw)

def Oreg(qb, b): return R("v", (qb * 11 + b) * 4, 4) if b < 11 else R("a", 192 + 4 * qb, 4)
SB = 176; PB = 208
def Sreg(qb, kb): return R("v", SB + qb * 8 + kb * 4, 4)
def Se(qb, e): return f"v{SB + qb * 8 + e}"
def Preg(qb): return R("v", PB + 4 * qb, 4)
KA = ["v224", "v225"]; VA = ["v226", "v227", "v228", "v229"]; VOFF = "v230"; VDR = "v231"
MC = [f"v{232+i}" for i in range(4)]; LS = [f"v{236+i}" for i in range(4)]; LSV = [f"v{240+i}" for i in range(4)]
QA = ["v244", "v245"]; OW = ["v246", "v247", "v248", "v249"]; VDR0 = "v250"
T = [f"v{251+i}" for i in range(5)]
def Qreg(qb, s): return R("a", (qb * 6 + s) * 4, 4)
def Kreg(kb, s): return R("a", 96 + (kb * 6 + s) * 4, 4)
def Vreg(b): return R("a", 144 + 4 * b, 4)
def Vhalf(b, x): return R("a", 144 + 4 * b + 2 * x, 2)
def DRreg(i): return R("a", 208 + 4 * i, 4)
SRK, SRV, SRQ, SRO = "s[8:11]", "s[12:15]", "s[16:19]", "s[20:23]"
sWAVE, sKEND, sVEND, sNR, sGOF, sC, sCNT, sLEFT, sITEM, sRB, sSTG, sQM, sFLAG = [f"s{i}" for i in range(24, 37)]
sT = [f"s{i}" for i in range(38, 46)]
sQP, sOP = 46, 48
sXB = "s50"
sNN = "s51"
sMODE = "s52"
sTODO = "s53"
sKP, sVP = 6, 54
sKNX, sVNX = 88, 90
sM0 = 4
M0TAB = {("K", 0): 92, ("K", 1): 95, ("V", 0): 98}
def m0reg(which, slot, cb):
    if (which, slot) == ("V", 1): return ["s101", "s37", "s3"][cb]
    return f"s{M0TAB[(which, slot)] + cb}"
KSLOT = [0, 12288]; VSLOT = [24576, 36864]; STG = 49152; FLAGS_LDS = 49152 + 98304
OOR = 0x40000000

def qk_mfmas():
    out = []
    for qb in range(4):
        for kb in range(2):
            for s in range(6):
                out.append(mfma(Sreg(qb, kb), Kreg(kb, s), Qreg(qb, s), "0" if s == 0 else Sreg(qb, kb)))
    return out
def pv_mfmas(c0):
    return [mfma(Oreg(qb, b), Vreg(b), Preg(qb), "0" if c0 else Oreg(qb, b)) for qb in range(4) for b in range(12)]
def k_reads(slot):
    return [ds_read("ds_read_b128", Kreg(kb, s), KA[s & 1], KSLOT[slot] + kb * 6144 + (s >> 1) * 1024) for kb in range(2) for s in range(6)]
def q_reads():
    return [ds_read("ds_read_b128", Qreg(qb, s), QA[s & 1], qb * 6144 + (s >> 1) * 1024) for qb in range(4) for s in range(6)]
def v_reads(slot):
    return [ds_read("ds_read_b64_tr_b16", Vhalf(b, x), VA[b & 3], VSLOT[slot] + x * 6144 + (b >> 2) * 1024) for b in range(12) for x in range(2)]
def kv_dma(cfg, which, slot, tag=None):
    srd = SRK if which == "K" else SRV
    return [(sop("s_mov_b32", "m0", m0reg(which, slot, cb)), dma(VOFF, srd, "0", cb * 128, cfg.polkv, tag=tag or which)) for cb in range(3)]
def kv_advance(which, wrap=True):
    lo, end, nx = (8, sKEND, sKNX) if which == "K" else (12, sVEND, sVNX)
    o = [sop("s_add_u32", f"s{lo}", f"s{lo}", "12288"), sop("s_addc_u32", f"s{lo+1}", f"s{lo+1}", "0")]
    if wrap:
        o += [salu(f"s_cmp_eq_u32 s{lo}, {end}", [f"s{lo}", end], ["scc"]),
              sop("s_cselect_b64", R("s", lo, 2), R("s", nx, 2), R("s", lo, 2)), sop("s_cselect_b32", f"s{lo+2}", sNR, f"s{lo+2}")]
    return o

class Op:
    def __init__(s, ins, deps=(), lo=0, hi=95, fixed=None, samegap=()):
        s.ins = ins; s.deps = list(deps); s.lo = lo; s.hi = hi; s.fixed = fixed; s.gap = None; s.samegap = list(samegap)

NEXP_H = 22
def sm_ops(minit=None):
    H, Rr = [], []
    egaps = list(range(2, 96, 3))
    for qb in range(4):
        ready = 12 * qb + 11 + 4
        pre = []
        if minit:
            t, u = MC[qb], LS[qb]
            sv = Op(valu("v_mov_b32", LSV[qb], LS[qb]), lo=(0 if qb < 2 else 12 * qb))
            c = []
            def ch(ins, extra=()):
                o = Op(ins, deps=(c[-1:] if c else []) + list(extra), lo=ready); c.append(o); return o
            if minit == "P":
                ch(valu("v_max3_f32", t, t, Se(qb, 0), Se(qb, 1)))
                ch(valu("v_max3_f32", t, t, Se(qb, 2), Se(qb, 3)))
                ch(valu("v_max3_f32", t, t, Se(qb, 4), Se(qb, 5)))
                ch(valu("v_max3_f32", t, t, Se(qb, 6), Se(qb, 7)))
            else:
                ch(valu("v_max3_f32", t, Se(qb, 0), Se(qb, 1), Se(qb, 2)))
                ch(valu("v_max3_f32", t, t, Se(qb, 3), Se(qb, 4)))
                ch(valu("v_max3_f32", t, t, Se(qb, 5), Se(qb, 6)))
                ch(valu("v_max_f32", t, t, Se(qb, 7)))
            ch(valu("v_mov_b32", u, t), [sv])
            ch(swap("v_permlane32_swap_b32", t, u))
            ch(valu("v_max_f32", t, t, u))
            ch(valu("v_mov_b32", u, t))
            ch(swap("v_permlane16_swap_b32", t, u))
            ch(valu("v_max_f32", t, t, u))
            last = ch(valu("v_mul_f32", t, sC, t))
            z = Op(valu("v_mov_b32", u, "0"), deps=[c[-2]], lo=ready)
            H += [sv] + c + [z]
            pre = [last, z]
        prevadd = None
        ex = []
        for e in range(8):
            n = qb * 8 + e
            inH = n < NEXP_H
            f = Op(valu("v_fma_f32", Se(qb, e), Se(qb, e), sC, "-" + MC[qb]), deps=pre[:1])
            x = Op(valu("v_exp_f32", Se(qb, e), Se(qb, e), kind="E"), deps=[f])
            fH = True
            if fH: f.lo = ready
            else: f.deps = []
            (H if fH else Rr).append(f)
            x.fixed = egaps[(32 - NEXP_H) + n] if inH else egaps[n - NEXP_H]
            if not inH and fH: x.deps = []
            (H if inH else Rr).append(x)
            aH = n < NEXP_H - 2
            a = Op(valu("v_add_f32", LS[qb], LS[qb], Se(qb, e)), deps=([x] if (aH or not inH) else []) + (pre[1:] if aH else []))
            if prevadd is not None and prevadd[1] == aH: a.samegap = [prevadd[0]]
            if not aH: a.hi = 12 * qb - 1
            prevadd = (a, aH)
            (H if aH else Rr).append(a)
            ex.append((x, inH))
            if e & 1:
                cv = Op(valu("v_cvt_pk_bf16_f32", f"v{PB + 4*qb + (e >> 1)}", Se(qb, e - 1), Se(qb, e)),
                        deps=[y for (y, h) in ex[-2:] if h == aH])
                if aH: cv.lo = 48 + 12 * qb + 11
                else: cv.hi = 12 * qb - 1
                (H if aH else Rr).append(cv)
        for o in H + Rr:
            if not hasattr(o, "qb"): o.qb = qb
    return H, Rr

def schedule(mf, mem, sal, ops, sq=(), post={}):
    sq = list(sq)
    for g in range(len(mf)):
        while sq and sq[0][0] <= g and ((g not in mem and g not in sal) or sq[0][1] <= g):
            sal.setdefault(g, []).append(sq.pop(0)[2])
    assert not sq
    cons = {id(o): [] for o in ops}
    for o in ops:
        for d in o.deps: cons[id(d)].append((o, 1))
        for d in o.samegap: cons[id(d)].append((o, 0))
    def dl(o, memo={}):
        if id(o) in memo: return memo[id(o)]
        v = o.fixed if o.fixed is not None else o.hi
        if o.fixed is None:
            for c, k in cons[id(o)]:
                v = min(v, dl(c, memo) - k - (1 if getattr(c.ins, "perm", False) else 0))
        memo[id(o)] = v
        return v
    memo = {}
    for o in ops: o.dl = dl(o, memo)
    for o in ops: assert o.dl >= o.lo, (o.ins, o.dl, o.lo)
    out = []; over = 0
    todo = [o for o in ops if o.fixed is None]
    fixed = {o.fixed: o for o in ops if o.fixed is not None}
    for g in range(len(mf)):
        if mf[g] is not None: out.append(mf[g])
        m = mem.get(g, []); s = sal.get(g, [])
        room = 2
        out += m; room -= sum(2 if x.kind == 'W' else 1 for x in m)
        out += s; room -= (len(s) if m else max(0, len(s) - 1))
        if g in fixed:
            o = fixed[g]
            assert all(d.gap is not None and d.gap < g for d in o.deps), o.ins
            o.gap = g; out.append(o.ins); room -= 2
        while True:
            rdy = [o for o in todo if o.lo <= g and all(d.gap is not None and d.gap + (1 if getattr(o.ins, "perm", False) else 0) < g for d in o.deps)
                   and all(d.gap is not None for d in o.samegap)]
            if not rdy: break
            o = min(rdy, key=lambda o: o.dl)
            if room <= 0 and o.dl > g: break
            o.gap = g; todo.remove(o); out.append(o.ins); room -= 1
        over += max(0, -room)
        out += post.get(g, [])
    assert not todo, [o.ins for o in todo]
    return out, over

def spread(rd, free, M):
    n = len(rd)
    for k, g in enumerate(free):
        while rd and (n - len(rd)) < (n * (k + 1) + len(free) - 1) // len(free) if n > len(free) else (rd and n - len(rd) <= k):
            M(g, rd.pop(0))
    assert not rd

def drain_reads(n=3): return [ds_read("ds_read_b128", DRreg(i), VDR, i * 1024) for i in range(n)]
def pc_off(i): return (i // 3) * 3072 + (i % 3) * 128
def o_store(cfg, i): return gstore(DRreg(i), VOFF, SRO, sGOF, pc_off(i), cfg.polo, tag="O")
def q_dma(cfg, i, tag="Q"): return (sop("s_add_u32", "m0", sQM, str((i % 3) * 896)), dma(VOFF, SRQ, "0", pc_off(i), cfg.polq, tag=tag))
def stage_advance(n):
    return [sop("s_add_u32", "s16", "s16", str(n)), sop("s_addc_u32", "s17", "s17", "0"), sop("s_add_u32", sGOF, sGOF, str(n)), sop("s_add_u32", sQM, sQM, str(n))]

def fin_order():
    g = []
    for q0 in (0, 2):
        g += [((q0, j), (q0, j + 4)) for j in range(4)] + [((q0, j + 8), (q0 + 1, j)) for j in range(4)] + [((q0 + 1, j + 4), (q0 + 1, j + 8)) for j in range(4)]
    return g

def iteration(cfg, kind):
    par = {"A": 0, "Z": 0, "O": 1, "E": 0, "X": 0, "Y": 1}[kind]
    mf = qk_mfmas() + pv_mfmas(kind in "AZ")
    mem = {}; sal = {}; sq = []
    def M(g, i):
        l = mem.setdefault(g, [])
        l.insert(len([x for x in l if x.kind != "W"]), i) if i.kind == "D" else l.append(i)
    def busy(g): return g in mem and any(x.kind != "W" for x in mem[g])
    def S(g, i): sal.setdefault(g, []).append(i)
    def Q(lo, hi, lst): sq.extend((lo, hi, x) for x in lst)
    ops = sm_ops()[1] + sm_ops({"Y": "Y"}.get(kind))[0]
    sp = cfg.vsp
    nq = {"A": 6, "Z": 6, "E": 3}.get(kind, 0)
    S(0, salu("s_barrier"))
    for j, (m0, d) in enumerate(kv_dma(cfg, "K", (par + 1) & 1)):
        S(2 + sp * j, m0); M(3 + sp * j, d)
    if kind == "E":
        for i in range(3): M(21 + 12 * i, o_store(cfg, i))
    if kind == "O" and cfg.pf:
        M(21, I(f"buffer_load_dword v252, v253, s[84:87], 0 offen{cfg.polpf}", "G", ["v253", "s[84:87]"], [], tag="PF"))
    if kind == "Z":
        wr = [fin_pair(x, y)[1] for x, y in fin_order()][cfg.nfw:]
        cand = list(range(1, cfg.zwend, 3))
        wg = [cand[int(k * len(cand) / len(wr))] for k in range(len(wr))]
        for g, w in zip(wg, wr): M(g, w)
        assert cfg.nfw >= 8
        for k, d in enumerate(drain_reads(6)): M([6, 6, 12, 12, 18, 18][k], d)
        w = waitcnt(lgkm=0); w.needlg = mem[6][-1]; S(20, w)
        w = waitcnt(lgkm=0); w.needlg = mem[18][-1]; S(32, w)
        for i, g in enumerate([21, 33, 45, 60, 72, 91]): M(g, o_store(cfg, i))
        ops.append(Op(valu("v_add_u32", VDR, "6144", VDR), lo=19))
    spread(v_reads(par), [g for g in range(1, cfg.rdend + (5 if kind == "Z" else 0)) if g % 3 != 2 and not busy(g)], M)
    w = waitcnt(vm=0, lgkm=0); w.need = ("K", 2)
    if kind == "Z": w.lgkm = sum(1 for g in range(cfg.rdend + 5, 48) for x in mem.get(g, []) if x.kind == "W")
    S(47, w)
    if kind == "Y": Q(1, 40, newitem_a())
    Q(4 + 2 * sp, 46, kv_advance("K"))
    if kind == "O" and cfg.pf: ops.append(Op(valu("v_add_u32", "v253", "4096", "v253"), lo=22))
    if kind == "X" and cfg.pf: Q(4, 46, [sop("s_mov_b32", "s86", "0")])
    if kind == "X": Q(4, 46, window_srd(20, sOP, sITEM) + [sop("s_mov_b32", "s22", WIN)])
    S(48, salu("s_barrier"))
    for j, (m0, d) in enumerate(kv_dma(cfg, "V", par)):
        S(50 + sp * j, m0); M(51 + sp * j, d)
    if kind == "Y": Q(49, 80, newitem_b())
    qg = [69, 75, 81] if nq == 3 else [66, 69, 75, 78, 84, 87]
    adv = kv_advance("V")
    if nq == 6: Q(64, 64, adv[:2])
    for i in range(nq):
        m0, d = q_dma(cfg, i)
        Q(qg[i] - 1, qg[i] - 1, [m0]); M(qg[i], d)
        if nq == 3 and i == 0: Q(70, 73, adv[:2])
        if nq == 3 and i == 1: Q(76, 79, adv[2:])
    if nq == 6: Q(88, 94, adv[2:])
    if nq == 0: Q(52 + 2 * sp, 90, adv)
    if nq: Q(qg[-1] + 1, 94, stage_advance(nq * 1024))
    rd = k_reads(par) + (q_reads() if kind == "X" else []) + (drain_reads() if kind == "O" else [])
    free = [g for g in range(49, 48 + cfg.rdend) if g % 3 != 2 and not busy(g)]
    if len(rd) <= 12 and kind != "Z": free = [g for g in free if g % 3 == 1]
    elif len(rd) < len(free): free = [free[int(k * len(free) / len(rd))] for k in range(len(rd))]
    spread(rd, free, M)
    if kind == "O": ops.append(Op(valu("v_add_u32", VDR, "3072", VDR), lo=48 + cfg.rdend))
    if kind == "Y": ops.append(Op(valu("v_mov_b32", VDR, VDR0)))
    w = waitcnt(vm=0, lgkm=0); w.need = ("V", 2)
    S(95, w)
    if kind == "O": Q(80, 94, [sop("s_sub_u32", sCNT, sCNT, "1"), salu(f"s_cmp_eq_u32 {sCNT}, 0", [sCNT], ["scc"])])
    out, over = schedule(mf, mem, sal, ops, sq)
    for k, i in enumerate(out):
        if hasattr(i, "needlg"):
            n = sum(1 for x in out[out.index(i.needlg) + 1:k] if x.kind in "DW")
            i.lgkm = n; i.text = f"s_waitcnt lgkmcnt({n})"
    for i in out:
        if "bar" in cfg.kill and i.text == "s_barrier": i.text = "s_nop 0"
        if "dma" in cfg.kill and i.kind == "G": i.text = "s_nop 0"
        if "ds" in cfg.kill and i.kind == "D": i.text = "s_nop 0"
    print(f"iteration {kind}: {len(out)} instrs, overflow slots {over}", file=sys.stderr)
    return out

def linear(ops):
    ops = list(ops); ids = set(id(o) for o in ops); done = {}; out = []
    while ops:
        def rdy(o, slack):
            return all(id(d) not in ids or (id(d) in done and len(out) - done[id(d)] > slack) for d in o.deps + o.samegap)
        o = next((o for o in ops if rdy(o, 2)), None) or next((o for o in ops if rdy(o, 1)), None) or next(o for o in ops if rdy(o, 0))
        ops.remove(o); done[id(o)] = len(out); out.append(o.ins)
    return out

def weave(mf, fill, per=2):
    out = []; fill = list(fill)
    for m in mf:
        out.append(m)
        if m.kind != "M": continue
        room = per
        while fill and room >= (2 if fill[0].kind == "E" else 1):
            f = fill.pop(0); out.append(f); room -= 2 if f.kind == "E" else 1
    return out, fill

def vw(tag, n=1, lgkm=None):
    w = waitcnt(vm=0, lgkm=lgkm); w.need = (tag, n); return w

def q0_dma(cfg, rg):
    o = []
    for cb in range(3):
        o += [sop("s_add_u32", "m0", sSTG, str(rg * 3072 + cb * 896)), nop(0), dma(VOFF, SRQ, "0", cb * 128, cfg.polq, tag=f"Q{rg}")]
    return o + [sop("s_add_u32", "s16", "s16", "3072"), sop("s_addc_u32", "s17", "s17", "0")]

def prologue(cfg):
    H = sm_ops("P")[0]
    per = [[o for o in H if o.qb == qb] for qb in range(4)]
    qr = q_reads(); mf = qk_mfmas()
    def kv(which, slot, tag=None):
        o = []
        for m0, d in kv_dma(cfg, which, slot, tag): o += [m0, nop(0), d]
        return o + kv_advance(which, wrap=False)
    o = [vw("K0", lgkm=0), salu("s_barrier")] + k_reads(0)
    if cfg.pf:
        o += [valu("v_lshlrev_b32", "v253", "7", T[0]), valu("v_mov_b32", "v252", "0x40000000"), I(f"v_cmp_gt_u32 vcc, {cfg.pf}, {T[0]}", "V", [T[0]], ["vcc"]), nop(1),
              I("v_cndmask_b32 v253, v252, v253, vcc", "V", ["v252", "v253", "vcc"], ["v253"])]
    for qb in range(4):
        o += [vw(f"Q{2*qb+1}")] + qr[6 * qb:6 * qb + 6]
        for s in range(6):
            o += [waitcnt(lgkm=5 - s), mf[12 * qb + s]]
        o += mf[12 * qb + 6:12 * qb + 12]
        if qb == 0: o += [label("L_skipq6")] if False else []
        if qb == 0: o += late_q(cfg)
        if qb == 1: o += kv("K", 1, "K1") + kv("V", 0, "V0")
        if qb == 2: o += [salu("s_barrier")] + kv("K", 0) + kv("V", 1) + newitem_a(first=True) + newitem_b()
        if qb == 3: o += [vw("K1"), salu("s_barrier")] + k_reads(1)
        o += linear(per[qb])
    o += [vw("V0", lgkm=0)]
    return o

def late_q(cfg):
    o = []
    for rg in range(cfg.q_early, 8): o += q0_dma(cfg, rg)
    return o

def pkmul(r2, l):
    n = int(l[1:]); pair = R("v", n & ~1, 2)
    sel = " op_sel:[0,1] op_sel_hi:[1,1]" if n & 1 else " op_sel_hi:[1,0]"
    return I(f"v_pk_mul_f32 {r2}, {r2}, {pair}{sel}", "V", [r2, l], [r2])

def fin_block(qb, b, tmp):
    rg = regs(Oreg(qb, b)); o = []
    if rg[0][0] == "a":
        o += [I(f"v_accvgpr_read_b32 {tmp[i]}, {rg[i]}", "V", [rg[i]], [tmp[i]]) for i in range(4)]
        rg = tmp
    n = int(rg[0][1:])
    o += [pkmul(R("v", n, 2), LSV[qb]), pkmul(R("v", n + 2, 2), LSV[qb])]
    d = n if b < 11 else int(regs(Oreg(qb, 10))[2][1:])
    c = [valu("v_cvt_pk_bf16_f32", f"v{d}", rg[0], rg[1]), valu("v_cvt_pk_bf16_f32", f"v{d+1}", rg[2], rg[3])]
    return o, c, R("v", d, 2)

def ow_off(qb, b): return qb * 6144 + (b >> 2) * 1024
FT = {0: ["v240", "v241"], 1: ["v242", "v243"], 2: ["v252", "v253"], 3: ["v254", "v255"]}
def fin_pair(x, y):
    tx = [Se(0, i) for i in range(4)]; ty = [Se(0, 4 + i) for i in range(4)]
    ax, cx, px = fin_block(*x, tx)
    if y is None: return ax + cx, ds_write("ds_write_b64", OW[x[1] & 3], px, ow_off(*x))
    ay, cy, py = fin_block(*y, ty)
    assert x[1] & 3 == y[1] & 3
    a = OW[x[1] & 3]
    return ax + ay + cx + cy, I(f"ds_write2st64_b64 {a}, {px}, {py} offset0:{ow_off(*x)//512} offset1:{ow_off(*y)//512}", "W", [a, px, py], [])

def flag_check(cfg, v):
    return [sop("s_mov_b32", sT[4], f2h(cfg.thresh)), I(f"v_cmp_nge_f32 vcc, {sT[4]}, {v}", "V", [sT[4], v], ["vcc"]),
            salu("s_cmp_lg_u64 vcc, 0", ["vcc"], ["scc"]), sop("s_cselect_b32", sT[4], "1", "0"), sop("s_lshl_b32", sT[4], sT[4], sNN), sop("s_or_b32", sFLAG, sFLAG, sT[4])]

def finalize(cfg):
    a, b, c, d = LSV
    o = [swap("v_permlane32_swap_b32", a, b), swap("v_permlane32_swap_b32", c, d), valu("v_add_f32", a, a, b), valu("v_add_f32", c, c, d)]
    fc = flag_check(cfg, a)
    o += [fc[0], nop(0), swap("v_permlane16_swap_b32", a, c), valu("v_add_f32", a, a, c)]
    o += fc[1:2] + [valu("v_rcp_f32", a, a, kind="E")] + fc[2:4]
    o += [valu("v_mov_b32", c, a)] + fc[4:] + [swap("v_permlane16_swap_b32", a, c), valu("v_mov_b32", b, a), valu("v_mov_b32", d, c), sop("s_add_u32", sNN, sNN, "1"),
          nop(0), swap("v_permlane32_swap_b32", a, b), swap("v_permlane32_swap_b32", c, d), I(".p2align 3", "L")]
    pend = []; done = 0
    for k, (x, y) in enumerate(fin_order()):
        v, w = fin_pair(x, y)
        o += v; pend.append(w)
        while done < cfg.nfw and done < (k + 1) * cfg.nfw // 24:
            o.append(pend[done]); done += 1
    return o

def last_block(cfg):
    V2 = lambda b: R("a", 96 + 4 * b, 4)
    P2 = lambda qb: R("v", SB + 8 * qb, 4)
    mf = qk_mfmas()
    for qb in range(4):
        mf += [mfma(Oreg(qb, b), Vreg(b), Preg(qb), Oreg(qb, b)) for b in range(12)]
        mf += [mfma(Oreg(qb, b), V2(b), P2(qb), Oreg(qb, b)) for b in range(12)]
    n = len(mf)
    mem = {}; sal = {}; sq = []; post = {}
    def M(g, i):
        l = mem.setdefault(g, [])
        l.insert(len([x for x in l if x.kind != "W"]), i) if i.kind == "D" else l.append(i)
    def S(g, i): sal.setdefault(g, []).append(i)
    ops = sm_ops()[1]
    eg = list(range(2, n, 3))[32 - NEXP_H:]
    for qb in range(4):
        ready = 12 * qb + 15; due = 48 + 24 * qb + 10
        adds = []; xs = []; cvs = []
        for e in range(8):
            f = Op(valu("v_fma_f32", Se(qb, e), Se(qb, e), sC, "-" + MC[qb]), lo=ready, hi=due)
            x = Op(valu("v_exp_f32", Se(qb, e), Se(qb, e), kind="E"), deps=[f], fixed=eg[8 * qb + e])
            a = Op(valu("v_add_f32", LS[qb], LS[qb], Se(qb, e)), deps=[x], samegap=adds[-1:], hi=due + 8)
            ops += [f, x, a]; adds.append(a); xs.append(x)
            if e & 1:
                jj = e >> 1
                cv = Op(valu("v_cvt_pk_bf16_f32", Se(qb, jj), Se(qb, e - 1), Se(qb, e)), deps=xs[-2:], samegap=[adds[jj]] + cvs[-1:], hi=due)
                ops.append(cv); cvs.append(cv)
        a_, b_ = LSV[qb], LS[qb]
        c = [adds[-1]]
        def ch(ins):
            o = Op(ins, deps=c[-1:], hi=48 + 24 * qb + 23); c.append(o); ops.append(o)
        ch(valu("v_mov_b32", a_, b_)); ch(swap("v_permlane32_swap_b32", a_, b_)); ch(valu("v_add_f32", a_, a_, b_))
        ch(valu("v_mov_b32", b_, a_)); ch(swap("v_permlane16_swap_b32", a_, b_)); ch(valu("v_add_f32", b_, a_, b_))
        ch(I(f"v_rcp_f32 {a_}, {b_}", "E", [b_], [a_], half=True))
    S(0, salu("s_barrier"))
    spread(v_reads(0), [g for g in range(1, cfg.rdend) if g % 3 != 2], M)
    sq += [(1, 40, x) for x in window_srd(20, sOP, sITEM) + [sop("s_mov_b32", "s22", WIN)]]
    ops.append(Op(valu("v_mov_b32", VDR, VDR0), hi=60))
    S(44, waitcnt(vm=0, lgkm=0)); S(45, salu("s_barrier"))
    v2 = [ds_read("ds_read_b64_tr_b16", R("a", 96 + 4 * b + 2 * x, 2), VA[b & 3], VSLOT[1] + x * 6144 + (b >> 2) * 1024) for b in range(12) for x in range(2)]
    v2g = [46, 48, 49, 51, 52, 54, 55, 57, 58, 60, 61, 63]
    for b in range(12): M(v2g[b], v2[2 * b]); M(v2g[b], v2[2 * b + 1])
    for g, b in ((59, 2), (62, 5), (65, 8), (68, 11)):
        w = waitcnt(lgkm=0); w.needlg = v2[2 * b + 1]; S(g, w)
    buf = [R("a", 4 * i, 4) for i in range(24)]
    def st(i): return gstore(buf[i], VOFF, SRO, sGOF, (i % 6 // 3) * 3072 + (i % 3) * 128, cfg.polo, tag="O")
    tailseq = []
    for qb in range(4):
        end = 48 + 24 * qb + 23
        grp = [fin_pair((qb, jx), (qb, jx + 4)) for jx in range(4)] + [fin_pair((qb, jx + 8), None) for jx in range(4)]
        rds = [ds_read("ds_read_b128", buf[i], VDR, i * 1024) for i in range(6 * qb, 6 * qb + 6)]
        fc = flag_check(cfg, LS[qb])
        blk = fc + [I(".p2align 3", "L")]
        if qb < 3:
            g0 = end + cfg.lfin
            for k, g in enumerate(grp): blk += g[0] + ([g[1]] if k < cfg.lw else [])
            post[g0] = blk
            free = [g for g in range(g0 + 1, end + 24) if g % 3 != 2 and g not in mem]
            for g in grp[cfg.lw:]: M(free.pop(0), g[1])
            for k in range(3):
                g = free.pop(0); M(g, rds[2 * k]); M(g, rds[2 * k + 1])
            stg = [g + 6 + 4 * k for k in range(6)]
            w = waitcnt(lgkm=0); w.needlg = rds[-1]
            seq = [(stg[0] - 1, w), (stg[0] - 1, sop("s_mov_b32", sGOF, str(qb * 6144)))] + [(stg[k], st(6 * qb + k)) for k in range(6)]
            for g, ins in seq:
                if g >= n: tailseq.append(ins)
                elif ins.kind == "S": S(g, ins)
                else: M(g, ins)
        else:
            rest = list(tailseq); tailseq = []
            blk = [nop(2)] + blk
            for k, g in enumerate(grp):
                blk += g[0] + [g[1]]
                if rest: blk.append(rest.pop(0))
                if k == 3: blk += [rds[0], rds[3], rds[1], rds[4]]
            blk += rest + [rds[2], rds[5], sop("s_mov_b32", sGOF, str(qb * 6144))]
            for k, i in enumerate([0, 3, 1, 4, 2, 5]):
                blk += [waitcnt(lgkm=[9, 8, 7, 6, 1, 0][k]), st(18 + i)]
            post[end] = blk
    out, over = schedule(mf, mem, sal, ops, sq, post)
    for k, i in enumerate(out):
        if hasattr(i, "needlg"):
            c = sum(1 for x in out[out.index(i.needlg) + 1:k] if x.kind in "DW")
            i.lgkm = c; i.text = f"s_waitcnt lgkmcnt({c})"
    print(f"last block: {len(out)} instrs, overflow slots {over}", file=sys.stderr)
    return out

def fixnops(seq, name):
    import re
    for _ in range(400):
        p = [x for x in check(seq, name) if "dist" in x]
        if not p: return seq
        for k in range(1, len(seq) + 1):
            q = [x for x in check(seq[:k], name) if "dist" in x]
            if q:
                m = re.search(r"dist (\d+)(?: < (\d+))?", q[0])
                need = int(m.group(2) or 8) - int(m.group(1))
                seq = seq[:k - 1] + [nop(need - 1)] + seq[k - 1:]
                break
    raise RuntimeError("fixnops")

def window_srd(srd_lo, ptr, item):
    return [sop("s_mul_i32", sT[1], item, "98304"), sop("s_mul_i32", sT[2], sWAVE, "24576"), sop("s_add_u32", sT[1], sT[1], sT[2]),
            sop("s_add_u32", f"s{srd_lo}", f"s{ptr}", sT[1]), sop("s_addc_u32", f"s{srd_lo+1}", f"s{ptr+1}", "0")]

def head_base(dst, item):
    return [sop("s_mul_hi_u32", dst, item, "0x55555556"), sop("s_mul_i32", dst, dst, "196608"), sop("s_add_u32", dst, dst, sRB)]

def newitem_a(first=False):
    o = [] if first else [sop("s_sub_u32", sLEFT, sLEFT, "1"), sop("s_add_u32", sITEM, sITEM, "32")]
    o += head_base(sT[0], sITEM) + [sop("s_add_u32", sT[0], sT[0], "196608"), sop("s_add_u32", sKEND, f"s{sKP}", sT[0]), sop("s_add_u32", sVEND, f"s{sVP}", sT[0])]
    o += [sop("s_add_u32", sT[3], sITEM, "32"), sop("s_min_u32", sT[3], sT[3], "767")]
    o += head_base(sT[0], sT[3])
    o += [sop("s_add_u32", f"s{sKNX}", f"s{sKP}", sT[0]), sop("s_addc_u32", f"s{sKNX+1}", f"s{sKP+1}", "0")]
    return o
def newitem_b():
    o = [sop("s_add_u32", f"s{sVNX}", f"s{sVP}", sT[0]), sop("s_addc_u32", f"s{sVNX+1}", f"s{sVP+1}", "0")]
    o += window_srd(16, sQP, sT[3])
    o += [salu(f"s_cmp_gt_u32 {sLEFT}, 1", [sLEFT], ["scc"]), sop("s_cselect_b32", sNR, KVWIN, "0"), sop("s_cselect_b32", "s18", QWIN, "0"),
          sop("s_mov_b32", sGOF, "0"), sop("s_mov_b32", sQM, sSTG), sop("s_mov_b32", sCNT, "7")]
    return o

def setup(cfg):
    o = []
    x = lambda t: o.append(salu(t))
    x("s_cmp_ge_u32 s2, 256"); x("s_cbranch_scc1 L_end")
    x(f"s_load_dwordx4 s[4:7], s[0:1], 0"); x(f"s_load_dwordx2 s[{sVP}:{sVP+1}], s[0:1], 16"); x(f"s_load_dwordx2 s[{sOP}:{sOP+1}], s[0:1], 24")
    if cfg.stamps: x("s_memtime s[60:61]"); x("s_memrealtime s[62:63]")
    if cfg.stamps: x(f"s_load_dwordx2 s[56:57], s[0:1], {32 if cfg.stamps == 2 else 40}")
    L, N, G, A, B_ = T
    o += [valu("v_lshrrev_b32", A, "6", "v0"), valu("v_and_b32", L, "63", "v0"), I(f"v_readfirstlane_b32 {sWAVE}, {A}", "V", [A], [sWAVE])]
    o += [valu("v_lshrrev_b32", A, "3", L), valu("v_and_b32", B_, "7", L), valu("v_xor_b32", B_, B_, A), valu("v_mul_u32_u24", A, "384", A), valu("v_lshl_add_u32", VOFF, B_, "4", A)]
    o += [sop("s_mul_i32", sRB, sWAVE, "3072"), sop("s_mul_i32", sSTG, sWAVE, "24576"), sop("s_add_u32", sSTG, sSTG, str(STG)), sop("s_mov_b32", sC, f2h(CSCALE))]
    o += [sop("s_and_b32", sT[0], "s2", "7"), sop("s_mul_i32", sT[0], sT[0], "96"), sop("s_lshr_b32", sT[1], "s2", "3"), sop("s_add_u32", sXB, sT[0], sT[1])]
    for lo in (8, 12): x(f"s_mov_b32 s{lo+3}, 0x20000")
    for which, tab in (("K", KSLOT), ("V", VSLOT)):
        for slot in range(2):
            for cb in range(3): o.append(sop("s_add_u32", m0reg(which, slot, cb), sRB, str(tab[slot] + cb * 896)))
    x("s_mov_b32 s19, 0x20000"); x("s_mov_b32 s23, 0x20000")
    if cfg.stamps: x(f"s_mov_b32 s58, {256 if cfg.stamps == 2 else 301989888}"); x("s_mov_b32 s59, 0x20000")
    o += [sop("s_mov_b32", sITEM, sXB), sop("s_mov_b32", sLEFT, "3"), sop("s_mov_b32", sNN, "0"), sop("s_mov_b32", sFLAG, "0"), sop("s_mov_b32", sMODE, "0"), sop("s_mov_b32", sTODO, "0")]
    x("s_waitcnt lgkmcnt(0)")
    x(f"s_mov_b32 s{sQP}, s4"); x(f"s_mov_b32 s{sQP+1}, s5")
    return o

def addr_setup():
    L, N, G, A, B_ = T
    o = [valu("v_and_b32", N, "15", L), valu("v_lshrrev_b32", G, "4", L)]
    o += [valu("v_lshrrev_b32", A, "3", N), valu("v_mul_u32_u24", "v0", "3072", A), valu("v_and_b32", "v1", "7", N), valu("v_lshl_add_u32", "v0", "v1", "7", "v0")]
    for e in range(2):
        o += [valu("v_add_u32", A, str(4 * e), G), valu("v_xor_b32", A, A, "v1"), valu("v_lshl_add_u32", KA[e], A, "4", "v0"), valu("v_add_u32", QA[e], sSTG, KA[e])]
    o += [valu("v_lshrrev_b32", "v2", "1", G), valu("v_and_b32", "v3", "1", G), valu("v_lshl_add_u32", "v3", "v3", "3", "v0"), valu("v_add_u32", "v3", sSTG, "v3")]
    for j in range(4):
        o += [valu("v_add_u32", A, str(2 * j), "v2"), valu("v_xor_b32", A, A, "v1"), valu("v_lshl_add_u32", OW[j], A, "4", "v3")]
    o += [valu("v_lshrrev_b32", B_, "2", L), valu("v_lshrrev_b32", A, "3", B_), valu("v_mul_u32_u24", "v0", "3072", A), valu("v_and_b32", "v1", "7", B_),
          valu("v_lshl_add_u32", "v0", "v1", "7", "v0"), valu("v_and_b32", A, "1", L), valu("v_lshl_add_u32", "v0", A, "3", "v0"), valu("v_bfe_u32", "v2", L, "1", "1")]
    for j in range(4):
        o += [valu("v_add_u32", A, str(2 * j), "v2"), valu("v_xor_b32", A, A, "v1"), valu("v_lshl_add_u32", VA[j], A, "4", "v0")]
    o += [valu("v_lshlrev_b32", A, "4", L), valu("v_add_u32", VDR0, sSTG, A)]
    for qb in range(4): o += [valu("v_mov_b32", MC[qb], "0xff800000"), valu("v_mov_b32", LS[qb], "0")]
    return o

def touch_pages(cfg):
    o = []
    def ld(ptr, off): o.append(salu(f"s_load_dword s4, s[{ptr}:{ptr+1}], {off}"))
    o += [sop("s_min_u32", sT[1], sWAVE, "2"), sop("s_lshl_b32", sT[1], sT[1], "5"), sop("s_add_u32", sT[1], sT[1], sXB), sop("s_mul_i32", sT[2], sT[1], "98304")]
    ld(sOP, sT[2])
    if cfg.touch > 1: ld(sQP, sT[2])
    o += [sop("s_add_u32", sT[3], sT[2], "98300")]
    ld(sOP, sT[3])
    if cfg.touch > 1:
        ld(sQP, sT[3])
        o += [sop("s_mul_hi_u32", sT[4], sT[1], "0x55555556"), sop("s_mul_i32", sT[4], sT[4], "196608")]
        ld(sKP, sT[4]); ld(sVP, sT[4])
        o += [sop("s_add_u32", sT[5], sT[4], "196604")]
        ld(sKP, sT[5]); ld(sVP, sT[5])
    return o

def start_run(cfg):
    o = head_base(sT[0], sITEM)
    o += [sop("s_add_u32", "s8", f"s{sKP}", sT[0]), sop("s_addc_u32", "s9", f"s{sKP+1}", "0"), sop("s_mov_b32", "s10", KVWIN)]
    for m0, d in kv_dma(cfg, "K", 0, "K0"): o += [m0, nop(0), d]
    o += window_srd(16, sQP, sITEM) + [sop("s_mov_b32", "s18", QWIN)]
    for rg in range(cfg.q_early): o += q0_dma(cfg, rg)
    fill = addr_setup(); mixed = []
    for x in o:
        if x.text == "s_nop 0" and fill:
            mixed += fill[:3]; del fill[:3]
        else: mixed.append(x)
    o = mixed + fill
    if cfg.touch: o += touch_pages(cfg)
    o += kv_advance("K", wrap=False)
    o += [sop("s_add_u32", "s12", f"s{sVP}", sT[0]), sop("s_addc_u32", "s13", f"s{sVP+1}", "0"), sop("s_mov_b32", "s14", KVWIN)]
    o += [sop("s_mov_b32", "s20", f"s{sOP}"), sop("s_mov_b32", "s21", f"s{sOP+1}"), sop("s_mov_b32", "s22", "0"), valu("v_add_u32", VDR, "6144", VDR0)]
    if cfg.pf:
        o += [sop("s_add_u32", sT[4], sXB, "64")] + window_srd(84, sQP, sT[4])
        o += [salu(f"s_cmp_eq_u32 {sLEFT}, 3", [sLEFT], ["scc"]), sop("s_cselect_b32", "s86", "0" if cfg.nomem else str(cfg.pfbytes), "0"), sop("s_mov_b32", "s87", "0x20000")]
    if cfg.exp == "early_o":
        o += [sop("s_add_u32", sT[4], sITEM, "64")] + window_srd(20, sOP, sT[4]) + [sop("s_mov_b32", "s22", WIN)]
    return o

def max_pass(cfg):
    L, N, G, A, B_ = T
    o = [valu("v_and_b32", N, "15", L), valu("v_lshrrev_b32", G, "4", L), valu("v_mul_u32_u24", A, "384", N), valu("v_lshl_add_u32", A, G, "4", A)]
    o += window_srd(20, sQP, sITEM) + [sop("s_mov_b32", "s22", WIN)]
    for qb in range(4):
        o.append(sop("s_mov_b32", sT[5], str(qb * 6144)))
        for s in range(6): o.append(gload(Qreg(qb, s), A, SRO, sT[5], s * 64))
    o += [sop("s_mul_hi_u32", sT[5], sITEM, "0x55555556"), sop("s_mul_i32", sT[5], sT[5], "196608"), sop("s_mov_b32", sT[6], "16")]
    o += [sop("s_mov_b32", "s20", f"s{sKP}"), sop("s_mov_b32", "s21", f"s{sKP+1}"), sop("s_mov_b32", "s22", "0" if cfg.nomem else "50331648")]
    o += [label("L_maxloop")]
    body = []
    for kb in range(2):
        if kb: body.append(sop("s_add_u32", sT[5], sT[5], "6144"))
        for s in range(6): body.append(gload(Kreg(kb, s), A, SRO, sT[5], s * 64))
    body += [sop("s_add_u32", sT[5], sT[5], "6144"), waitcnt(vm=0)]
    body += qk_mfmas() + [nop(7)]
    for qb in range(4):
        for e in range(0, 8, 2): body.append(valu("v_max3_f32", MC[qb], MC[qb], Se(qb, e), Se(qb, e + 1)))
    body += [sop("s_sub_u32", sT[6], sT[6], "1"), salu(f"s_cmp_lg_u32 {sT[6]}, 0"), salu("s_cbranch_scc1 L_maxloop")]
    return o + body + [sop("s_mov_b32", "s20", f"s{sOP}"), sop("s_mov_b32", "s21", f"s{sOP+1}"), sop("s_mov_b32", "s22", "0")]

def stamp(idx):
    return [salu(f"s_memtime s[{64+2*idx}:{65+2*idx}]")]

def build(cfg):
    global WIN, KVWIN, QWIN
    WIN = "0" if cfg.nomem else "24576"
    KVWIN = "0" if cfg.nomem else "3072"
    QWIN = "0" if cfg.nomem else "6144"
    blk = {}
    for k in "AZOEXY": blk[k] = fixnops(iteration(cfg, k), k)
    blk["setup"] = fixnops(setup(cfg), "setup")
    blk["start"] = fixnops(start_run(cfg), "start")
    blk["max"] = max_pass(cfg)
    blk["P"] = fixnops(prologue(cfg), "P")
    blk["F"] = fixnops(finalize(cfg), "F")
    blk["T"] = fixnops(last_block(cfg), "T")
    br = lambda t: [salu(t)]
    def item(z="Z"): return blk[z] + (br("b") if z == "A" else []) + (blk["O"] + br("b") + blk["E"] + br("b")) * 6 + blk["O"] + br("b") + br("b") + br("b")
    mid = blk["X"] + blk["Y"] + blk["F"]
    tr1 = blk["setup"] + blk["start"] + br("b") + br("b") + blk["P"] + item("A") + mid + item() + mid + item() + blk["T"]
    tr2 = blk["setup"] + blk["start"] + br("b") + br("b") + blk["max"] + blk["P"] + item("A") + blk["T"]
    best = {}
    for tr in (tr1, tr2):
        vm = []
        for ins in tr:
            if ins.kind == "G": vm.append(ins.tag)
            if getattr(ins, "need", None):
                tag, nb = ins.need
                seen = 0; cnt = None
                for j in range(len(vm) - 1, -1, -1):
                    if vm[j] == tag:
                        if seen == 3 * (nb - 1): cnt = len(vm) - 1 - j; break
                        seen += 1
                assert cnt is not None
                best[id(ins)] = (min(cnt, best.get(id(ins), (99,))[0]), ins)
    for cnt, ins in best.values():
        ins.vm = cnt; ins.text = f"s_waitcnt vmcnt({cnt})" + (f" lgkmcnt({ins.lgkm})" if ins.lgkm is not None else "")
    for tr, n in ((tr1, "tr1"), (tr2, "tr2")):
        p = check(tr, n)
        for x in sorted(set(p)): print("HAZARD", x, file=sys.stderr)
        assert not p
    out = []
    a = out.append
    def emit(seq):
        if cfg.trace and any(seq is blk[k] for k in "AZOEXYT"):
            a("    s_mov_b32 m0, s45"); a("    s_nop 0"); a("    v_writelane_b32 v255, s4, m0"); a("    s_add_u32 s45, s45, 1"); a("    s_nop 0"); a("    s_memtime s[4:5]")
        for i in seq: a(("" if i.kind == "L" else "    ") + i.text)
    a("; @launch grid=(256,1,1) block=(256,1,1) lds=163840")
    a('.amdgcn_target "amdgcn-amd-amdhsa--gfx950"'); a(".text"); a(f".globl {NAME}"); a(".p2align 8"); a(f".type {NAME},@function"); a(f"{NAME}:")
    emit(blk["setup"])
    a("L_run:")
    emit(blk["start"])
    a(f"    s_cmp_eq_u32 {sMODE}, 0"); a("    s_cbranch_scc1 L_k0")
    emit(blk["max"])
    a("L_k0:")
    if cfg.trace: a("    s_mov_b32 s45, 0"); a("    s_mov_b32 s4, s60")
    if cfg.stamps: emit(stamp(2))
    emit(blk["P"])
    if cfg.stamps: emit(stamp(8))
    a(".p2align 3")
    emit(blk["A"])
    a("    s_branch L_O")
    a(".p2align 6"); a("L_X:")
    a(f"    s_cmp_eq_u32 {sLEFT}, 1"); a("    s_cbranch_scc1 L_T")
    emit(blk["X"])
    a(".p2align 3")
    if cfg.stamps: a("    s_mov_b64 s[72:73], s[74:75]"); a("    s_nop 0"); emit(stamp(5))
    emit(blk["Y"])
    emit(blk["F"])
    a(".p2align 3"); a("L_Z:")
    if cfg.stamps: emit(stamp(7))
    emit(blk["Z"])
    a(".p2align 3"); a("L_O:")
    emit(blk["O"])
    a("    s_cbranch_scc1 L_X")
    a(".p2align 3")
    emit(blk["E"])
    a("    s_branch L_O")
    a(".p2align 6"); a("L_T:")
    if cfg.stamps: emit(stamp(9))
    emit(blk["T"])
    if cfg.stamps: emit(stamp(3))
    a(f"    s_cmp_lg_u32 {sMODE}, 0"); a("    s_cbranch_scc1 L_todo")
    a(f"    v_mov_b32 v0, {sFLAG}"); a(f"    s_lshl_b32 {sT[0]}, {sWAVE}, 2"); a(f"    s_add_u32 {sT[0]}, {sT[0]}, {FLAGS_LDS}"); a(f"    v_mov_b32 v1, {sT[0]}")
    a("    ds_write_b32 v1, v0"); a("    s_waitcnt lgkmcnt(0)"); a("    s_barrier")
    a(f"    v_mov_b32 v1, {FLAGS_LDS}"); a("    ds_read_b128 v[4:7], v1"); a("    s_waitcnt lgkmcnt(0)")
    a("    v_or_b32 v4, v4, v5"); a("    v_or3_b32 v4, v4, v6, v7"); a("    s_nop 1"); a(f"    v_readfirstlane_b32 {sTODO}, v4"); a(f"    s_mov_b32 {sMODE}, 1"); a("    s_nop 3")
    a("L_todo:")
    a(f"    s_and_b32 {sTODO}, {sTODO}, 7")
    a(f"    s_cbranch_scc0 L_fin")
    a(f"    s_ff1_i32_b32 {sNN}, {sTODO}"); a(f"    s_bitset0_b32 {sTODO}, {sNN}")
    a(f"    s_lshl_b32 {sITEM}, {sNN}, 5"); a(f"    s_add_u32 {sITEM}, {sITEM}, {sXB}"); a(f"    s_mov_b32 {sLEFT}, 1")
    a("    s_waitcnt vmcnt(0) lgkmcnt(0)"); a("    s_barrier"); a("    s_branch L_run")
    a("L_fin:")
    if cfg.stamps:
        a("    s_waitcnt vmcnt(0)")
        a("    s_memtime s[64:65]"); a("    s_memrealtime s[66:67]"); a("    s_waitcnt lgkmcnt(0)")
        a(f"    s_cmp_lg_u32 {sWAVE}, 0"); a("    s_cbranch_scc1 L_end")
        if cfg.stamps == 2:
            a("    s_not_b32 s76, s62"); a("    s_sub_u32 s77, s64, s60"); a("    s_sub_u32 s78, s68, s60"); a("    s_sub_u32 s79, s70, s60"); a("    s_sub_u32 s80, s72, s60")
            a("    s_sub_u32 s81, s66, s62"); a("    s_not_b32 s82, s66"); a("    s_not_b32 s83, s77"); a("    s_not_b32 s84, s78")
            srcs = [66, 76, 62, 82, 77, 83, 78, 84, 79, 80, 81]
            for i, s in enumerate(srcs): a(f"    v_mov_b32 v{i}, s{s}")
            a("    v_mov_b32 v16, 0"); a("    s_mov_b64 exec, 1")
            for i in range(len(srcs)): a(f"    buffer_atomic_umax v{i}, v16, s[56:59], 0 offen offset:{4*i}")
        else:
            order = [2, 8, 4, 5, 7, 9, 3, 0, 0, 0, 0, 0]
            src = [60, 61, 64, 65, 62, 63, 66, 67] + [x for k in order for x in (64 + 2 * k, 65 + 2 * k)]
            for i, s in enumerate(src): a(f"    v_mov_b32 v{i}, s{s}")
            if cfg.trace:
                a("    s_mov_b32 m0, s45"); a("    s_nop 0"); a("    v_writelane_b32 v255, s4, m0"); a("    v_lshlrev_b32 v33, 2, v251"); a("    s_lshl_b32 s41, s2, 8"); a("    s_add_u32 s41, s41, 0x100000")
                a("    buffer_store_dword v255, v33, s[56:59], s41 offen")
            a("    s_lshl_b32 s41, s2, 7"); a("    v_mov_b32 v32, 0"); a("    s_mov_b64 exec, 1")
            for i in range(8): a(f"    buffer_store_dwordx4 v[{4*i}:{4*i+3}], v32, s[56:59], s41 offen offset:{16*i}")
    a("L_end:"); a("    s_endpgm")
    a('.section .rodata,"a"'); a(".p2align 6"); a(f".amdhsa_kernel {NAME}")
    for l in ["next_free_vgpr 512", "next_free_sgpr 102", "accum_offset 256", "group_segment_fixed_size 0", "kernarg_size 48", "user_sgpr_count 2",
              "user_sgpr_kernarg_segment_ptr 1", "system_sgpr_workgroup_id_x 1"]: a("  .amdhsa_" + l)
    a(".end_amdhsa_kernel")
    return "\n".join(out) + "\n"

if __name__ == "__main__":
    kw = {}
    for x in sys.argv[2:]:
        k, v = x.split("=", 1)
        kw[k] = ((" " + v.replace("+", " ")) if v != "-" else "") if k.startswith("pol") else eval(v)
    open(sys.argv[1], "w").write(build(Cfg(**kw)))
```

```python
import sys, struct, math
from asmlib import *

NAME = "standalone__gqa_softmax__near_ridge_kernel"
def f2h(x): return "0x%08x" % struct.unpack("<I", struct.pack("<f", x))[0]
CSCALE = (192 ** -0.5) * math.log2(math.e)

class Cfg:
    polkv = " nt"; polq = " nt"; polo = " sc1"
    stamps = False
    nomem = False
    kill = ""
    vsp = 6
    rdend = 38
    q_early = 6
    touch = 0
    trace = 0
    kvpf = 4
    kvpf_last = 0
    pad = 0
    ophase = 0
    vtouch = 0
    lfin = 3
    lw = 8
    pf = 16
    pfbytes = 24576
    polpf = ''
    exp = ''
    nfw = 24
    zwend = 72
    thresh = 2.0 ** 64
    def __init__(s, **kw): s.__dict__.update(kw)

def Oreg(qb, b): return R("v", (qb * 11 + b) * 4, 4) if b < 11 else R("a", 192 + 4 * qb, 4)
SB = 176; PB = 208
def Sreg(qb, kb): return R("v", SB + qb * 8 + kb * 4, 4)
def Se(qb, e): return f"v{SB + qb * 8 + e}"
def Preg(qb): return R("v", PB + 4 * qb, 4)
KA = ["v224", "v225"]; VA = ["v226", "v227", "v228", "v229"]; VOFF = "v230"; VDR = "v231"
MC = [f"v{232+i}" for i in range(4)]; LS = [f"v{236+i}" for i in range(4)]; LSV = [f"v{240+i}" for i in range(4)]
QA = ["v244", "v245"]; OW = ["v246", "v247", "v248", "v249"]; VDR0 = "v250"
T = [f"v{251+i}" for i in range(5)]
def Qreg(qb, s): return R("a", (qb * 6 + s) * 4, 4)
def Kreg(kb, s): return R("a", 96 + (kb * 6 + s) * 4, 4)
def Vreg(b): return R("a", 144 + 4 * b, 4)
def Vhalf(b, x): return R("a", 144 + 4 * b + 2 * x, 2)
def DRreg(i): return R("a", 208 + 4 * i, 4)
SRK, SRV, SRQ, SRO = "s[8:11]", "s[12:15]", "s[16:19]", "s[20:23]"
sWAVE, sKEND, sVEND, sNR, sGOF, sC, sCNT, sLEFT, sITEM, sRB, sSTG, sQM, sFLAG = [f"s{i}" for i in range(24, 37)]
sT = [f"s{i}" for i in range(38, 46)]
sQP, sOP = 46, 48
sXB = "s50"
sNN = "s51"
sMODE = "s52"
sTODO = "s53"
sKP, sVP = 6, 54
sKNX, sVNX = 88, 90
sM0 = 4
M0TAB = {("K", 0): 92, ("K", 1): 95, ("V", 0): 98}
def m0reg(which, slot, cb):
    if (which, slot) == ("V", 1): return ["s101", "s37", "s3"][cb]
    return f"s{M0TAB[(which, slot)] + cb}"
KSLOT = [0, 12288]; VSLOT = [24576, 36864]; STG = 49152; STGW = 27648; FLAGS_LDS = 49152 + 4 * 27648
OOR = 0x40000000

def qk_mfmas():
    out = []
    for qb in range(4):
        for kb in range(2):
            for s in range(6):
                out.append(mfma(Sreg(qb, kb), Kreg(kb, s), Qreg(qb, s), "0" if s == 0 else Sreg(qb, kb)))
    return out
def pv_mfmas(c0):
    return [mfma(Oreg(qb, b), Vreg(b), Preg(qb), "0" if c0 else Oreg(qb, b)) for qb in range(4) for b in range(12)]
def k_reads(slot):
    return [ds_read("ds_read_b128", Kreg(kb, s), KA[s & 1], KSLOT[slot] + kb * 6144 + (s >> 1) * 1024) for kb in range(2) for s in range(6)]
def q_reads():
    return [ds_read("ds_read_b128", Qreg(qb, s), QA[s & 1], qb * 6144 + (s >> 1) * 1024) for qb in range(4) for s in range(6)]
def v_reads(slot):
    return [ds_read("ds_read_b64_tr_b16", Vhalf(b, x), VA[b & 3], VSLOT[slot] + x * 6144 + (b >> 2) * 1024) for b in range(12) for x in range(2)]
def kv_dma(cfg, which, slot, tag=None):
    srd = SRK if which == "K" else SRV
    return [(sop("s_mov_b32", "m0", m0reg(which, slot, cb)), dma(VOFF, srd, "0", cb * 128, cfg.polkv, tag=tag or which)) for cb in range(3)]
def kv_advance(which, wrap=True):
    lo, end, nx = (8, sKEND, sKNX) if which == "K" else (12, sVEND, sVNX)
    o = [sop("s_add_u32", f"s{lo}", f"s{lo}", "12288"), sop("s_addc_u32", f"s{lo+1}", f"s{lo+1}", "0")]
    if wrap:
        o += [salu(f"s_cmp_eq_u32 s{lo}, {end}", [f"s{lo}", end], ["scc"]),
              sop("s_cselect_b64", R("s", lo, 2), R("s", nx, 2), R("s", lo, 2)), sop("s_cselect_b32", f"s{lo+2}", sNR, f"s{lo+2}")]
    return o

class Op:
    def __init__(s, ins, deps=(), lo=0, hi=95, fixed=None, samegap=()):
        s.ins = ins; s.deps = list(deps); s.lo = lo; s.hi = hi; s.fixed = fixed; s.gap = None; s.samegap = list(samegap)

NEXP_H = 22
def sm_ops(minit=None):
    H, Rr = [], []
    egaps = list(range(2, 96, 3))
    for qb in range(4):
        ready = 12 * qb + 11 + 4
        pre = []
        if minit:
            t, u = MC[qb], LS[qb]
            sv = Op(valu("v_mov_b32", LSV[qb], LS[qb]), lo=(0 if qb < 2 else 12 * qb))
            c = []
            def ch(ins, extra=()):
                o = Op(ins, deps=(c[-1:] if c else []) + list(extra), lo=ready); c.append(o); return o
            if minit == "P":
                ch(valu("v_max3_f32", t, t, Se(qb, 0), Se(qb, 1)))
                ch(valu("v_max3_f32", t, t, Se(qb, 2), Se(qb, 3)))
                ch(valu("v_max3_f32", t, t, Se(qb, 4), Se(qb, 5)))
                ch(valu("v_max3_f32", t, t, Se(qb, 6), Se(qb, 7)))
            else:
                ch(valu("v_max3_f32", t, Se(qb, 0), Se(qb, 1), Se(qb, 2)))
                ch(valu("v_max3_f32", t, t, Se(qb, 3), Se(qb, 4)))
                ch(valu("v_max3_f32", t, t, Se(qb, 5), Se(qb, 6)))
                ch(valu("v_max_f32", t, t, Se(qb, 7)))
            ch(valu("v_mov_b32", u, t), [sv])
            ch(swap("v_permlane32_swap_b32", t, u))
            ch(valu("v_max_f32", t, t, u))
            ch(valu("v_mov_b32", u, t))
            ch(swap("v_permlane16_swap_b32", t, u))
            ch(valu("v_max_f32", t, t, u))
            last = ch(valu("v_mul_f32", t, sC, t))
            z = Op(valu("v_mov_b32", u, "0"), deps=[c[-2]], lo=ready)
            H += [sv] + c + [z]
            pre = [last, z]
        prevadd = None
        ex = []
        for e in range(8):
            n = qb * 8 + e
            inH = n < NEXP_H
            f = Op(valu("v_fma_f32", Se(qb, e), Se(qb, e), sC, "-" + MC[qb]), deps=pre[:1])
            x = Op(valu("v_exp_f32", Se(qb, e), Se(qb, e), kind="E"), deps=[f])
            fH = True
            if fH: f.lo = ready
            else: f.deps = []
            (H if fH else Rr).append(f)
            x.fixed = egaps[(32 - NEXP_H) + n] if inH else egaps[n - NEXP_H]
            if not inH and fH: x.deps = []
            (H if inH else Rr).append(x)
            aH = n < NEXP_H - 2
            a = Op(valu("v_add_f32", LS[qb], LS[qb], Se(qb, e)), deps=([x] if (aH or not inH) else []) + (pre[1:] if aH else []))
            if prevadd is not None and prevadd[1] == aH: a.samegap = [prevadd[0]]
            if not aH: a.hi = 12 * qb - 1
            prevadd = (a, aH)
            (H if aH else Rr).append(a)
            ex.append((x, inH))
            if e & 1:
                cv = Op(valu("v_cvt_pk_bf16_f32", f"v{PB + 4*qb + (e >> 1)}", Se(qb, e - 1), Se(qb, e)),
                        deps=[y for (y, h) in ex[-2:] if h == aH])
                if aH: cv.lo = 48 + 12 * qb + 11
                else: cv.hi = 12 * qb - 1
                (H if aH else Rr).append(cv)
        for o in H + Rr:
            if not hasattr(o, "qb"): o.qb = qb
    return H, Rr

def schedule(mf, mem, sal, ops, sq=(), post={}):
    sq = list(sq)
    for g in range(len(mf)):
        while sq and sq[0][0] <= g and ((g not in mem and g not in sal) or sq[0][1] <= g):
            sal.setdefault(g, []).append(sq.pop(0)[2])
    assert not sq
    cons = {id(o): [] for o in ops}
    for o in ops:
        for d in o.deps: cons[id(d)].append((o, 1))
        for d in o.samegap: cons[id(d)].append((o, 0))
    def dl(o, memo={}):
        if id(o) in memo: return memo[id(o)]
        v = o.fixed if o.fixed is not None else o.hi
        if o.fixed is None:
            for c, k in cons[id(o)]:
                v = min(v, dl(c, memo) - k - (1 if getattr(c.ins, "perm", False) else 0))
        memo[id(o)] = v
        return v
    memo = {}
    for o in ops: o.dl = dl(o, memo)
    for o in ops: assert o.dl >= o.lo, (o.ins, o.dl, o.lo)
    out = []; over = 0
    todo = [o for o in ops if o.fixed is None]
    fixed = {o.fixed: o for o in ops if o.fixed is not None}
    for g in range(len(mf)):
        if mf[g] is not None: out.append(mf[g])
        m = mem.get(g, []); s = sal.get(g, [])
        room = 2
        out += m; room -= sum(2 if x.kind == 'W' else 1 for x in m)
        out += s; room -= (len(s) if m else max(0, len(s) - 1))
        if g in fixed:
            o = fixed[g]
            assert all(d.gap is not None and d.gap < g for d in o.deps), o.ins
            o.gap = g; out.append(o.ins); room -= 2
        while True:
            rdy = [o for o in todo if o.lo <= g and all(d.gap is not None and d.gap + (1 if getattr(o.ins, "perm", False) else 0) < g for d in o.deps)
                   and all(d.gap is not None for d in o.samegap)]
            if not rdy: break
            o = min(rdy, key=lambda o: o.dl)
            if room <= 0 and o.dl > g: break
            o.gap = g; todo.remove(o); out.append(o.ins); room -= 1
        over += max(0, -room)
        out += post.get(g, [])
    assert not todo, [o.ins for o in todo]
    return out, over

def spread(rd, free, M):
    n = len(rd)
    for k, g in enumerate(free):
        while rd and (n - len(rd)) < (n * (k + 1) + len(free) - 1) // len(free) if n > len(free) else (rd and n - len(rd) <= k):
            M(g, rd.pop(0))
    assert not rd

def drain_reads(n=3): return [ds_read("ds_read_b128", DRreg(i), VDR, i * 1024) for i in range(n)]
def pc_off(i): return (i // 3) * 3072 + (i % 3) * 128
def o_store(cfg, i): return gstore(DRreg(i), VOFF, SRO, sGOF, pc_off(i), cfg.polo, tag="O")
def q_dma(cfg, i, tag="Q"): return (sop("s_add_u32", "m0", sQM, str((i % 3) * 896)), dma(VOFF, SRQ, "0", pc_off(i), cfg.polq, tag=tag))
def stage_advance(n, o=True):
    return [sop("s_add_u32", "s16", "s16", str(n)), sop("s_addc_u32", "s17", "s17", "0"), sop("s_add_u32", sQM, sQM, str(n))] + ([sop("s_add_u32", sGOF, sGOF, "3072")] if o else [])

def fin_order():
    g = []
    for q0 in (0, 2):
        g += [((q0, j), (q0, j + 4)) for j in range(4)] + [((q0, j + 8), (q0 + 1, j)) for j in range(4)] + [((q0 + 1, j + 4), (q0 + 1, j + 8)) for j in range(4)]
    return g

def iteration(cfg, kind):
    par = {"A": 0, "Z": 0, "O": 1, "E": 0, "X": 0, "Y": 1}[kind]
    mf = qk_mfmas() + pv_mfmas(kind in "AZ")
    mem = {}; sal = {}; sq = []
    def M(g, i):
        l = mem.setdefault(g, [])
        l.insert(len([x for x in l if x.kind != "W"]), i) if i.kind == "D" else l.append(i)
    def busy(g): return g in mem and any(x.kind != "W" for x in mem[g])
    def S(g, i): sal.setdefault(g, []).append(i)
    def Q(lo, hi, lst): sq.extend((lo, hi, x) for x in lst)
    ops = sm_ops()[1] + sm_ops({"Y": "Y"}.get(kind))[0]
    sp = cfg.vsp
    nq = {"A": 6, "Z": 3, "E": 3, "Y": 3}.get(kind, 0)
    S(0, salu("s_barrier"))
    for j, (m0, d) in enumerate(kv_dma(cfg, "K", (par + 1) & 1)):
        S(2 + sp * j, m0); M(3 + sp * j, d)
    if kind in "EZX":
        for i in range(3): M(21 + 12 * i, o_store(cfg, i))
    if kind == "A" and cfg.vtouch:
        M(21, I(f"buffer_load_dword v252, v254, s[20:23], 0 offen", "G", ["v254", "s[20:23]"], [], tag="PF"))
        Q(22, 46, [sop("s_mov_b32", "s22", "0")])
    if kind == "O" and cfg.pf:
        M(21, I(f"buffer_load_dword v252, v253, s[84:87], 0 offen{cfg.polpf}", "G", ["v253", "s[84:87]"], [], tag="PF"))
    if kind == "Z":
        wr = [fin_pair(x, y)[1] for x, y in fin_order()][cfg.nfw:]
        cand = list(range(1, cfg.zwend, 3))
        wg = [cand[int(k * len(cand) / len(wr))] for k in range(len(wr))]
        for g, w in zip(wg, wr): M(g, w)
        assert cfg.nfw >= 8
        for k, d in enumerate(drain_reads(3)): M([6, 6, 12][k], d)
        w = waitcnt(lgkm=0); w.needlg = mem[12][-1]; S(20, w)
        ops.append(Op(valu("v_add_u32", VDR, "3072", VDR), lo=13))
    spread(v_reads(par), [g for g in range(1, cfg.rdend + (5 if kind == "Z" else 0)) if g % 3 != 2 and not busy(g)], M)
    w = waitcnt(vm=0, lgkm=0); w.need = ("K", 2)
    if kind == "Z": w.lgkm = sum(1 for g in range(cfg.rdend + 5, 48) for x in mem.get(g, []) if x.kind == "W")
    S(47, w)
    if kind == "Y": Q(1, 40, newitem_a())
    Q(4 + 2 * sp, 46, kv_advance("K"))
    if kind == "O" and cfg.pf: ops.append(Op(valu("v_add_u32", "v253", "4096", "v253"), lo=22))
    if kind == "X" and cfg.pf: Q(4, 46, [sop("s_mov_b32", "s86", "0")])
    S(48, salu("s_barrier"))
    for j, (m0, d) in enumerate(kv_dma(cfg, "V", par)):
        S(50 + sp * j, m0); M(51 + sp * j, d)
    if kind == "Y": Q(41, 67, newitem_b())
    if kind == "X": Q(49, 70, window_srd(20, sOP, sITEM) + [sop("s_mov_b32", "s22", WIN)])
    qg = [69, 75, 81] if nq == 3 else [66, 69, 75, 78, 84, 87]
    adv = kv_advance("V")
    if nq == 6: Q(64, 64, adv[:2])
    for i in range(nq):
        m0, d = q_dma(cfg, i)
        Q(qg[i] - 1, qg[i] - 1, [m0]); M(qg[i], d)
        if nq == 3 and i == 0: Q(70, 73, adv[:2])
        if nq == 3 and i == 1: Q(76, 79, adv[2:])
    if nq == 6: Q(88, 94, adv[2:])
    if nq == 0: Q(52 + 2 * sp, 90, adv)
    if nq: Q(qg[-1] + 1, 94, stage_advance(nq * 1024, kind != "Y"))
    if kind == "Y" and cfg.kvpf: Q(83, 94, kvpf_setup(cfg))
    rd = k_reads(par) + (q_reads() if kind == "X" else []) + (drain_reads() if kind == "O" else [])
    free = [g for g in range(49, 48 + cfg.rdend) if g % 3 != 2 and not busy(g)]
    if len(rd) <= 12 and kind != "Z": free = [g for g in free if g % 3 == 1]
    elif len(rd) < len(free): free = [free[int(k * len(free) / len(rd))] for k in range(len(rd))]
    spread(rd, free, M)
    if kind == "O": ops.append(Op(valu("v_add_u32", VDR, "3072", VDR), lo=48 + cfg.rdend))
    if kind == "Y": ops.append(Op(valu("v_mov_b32", VDR, VDR0)))
    w = waitcnt(vm=0, lgkm=0); w.need = ("V", 2)
    S(95, w)
    if kind == "O": Q(80, 94, [sop("s_sub_u32", sCNT, sCNT, "1"), salu(f"s_cmp_eq_u32 {sCNT}, 0", [sCNT], ["scc"])])
    out, over = schedule(mf, mem, sal, ops, sq)
    for k, i in enumerate(out):
        if hasattr(i, "needlg"):
            n = sum(1 for x in out[out.index(i.needlg) + 1:k] if x.kind in "DW")
            i.lgkm = n; i.text = f"s_waitcnt lgkmcnt({n})"
    for i in out:
        if "bar" in cfg.kill and i.text == "s_barrier": i.text = "s_nop 0"
        if "dma" in cfg.kill and i.kind == "G": i.text = "s_nop 0"
        if "ds" in cfg.kill and i.kind == "D": i.text = "s_nop 0"
    print(f"iteration {kind}: {len(out)} instrs, overflow slots {over}", file=sys.stderr)
    return out

def linear(ops):
    ops = list(ops); ids = set(id(o) for o in ops); done = {}; out = []
    while ops:
        def rdy(o, slack):
            return all(id(d) not in ids or (id(d) in done and len(out) - done[id(d)] > slack) for d in o.deps + o.samegap)
        o = next((o for o in ops if rdy(o, 2)), None) or next((o for o in ops if rdy(o, 1)), None) or next(o for o in ops if rdy(o, 0))
        ops.remove(o); done[id(o)] = len(out); out.append(o.ins)
    return out

def weave(mf, fill, per=2):
    out = []; fill = list(fill)
    for m in mf:
        out.append(m)
        if m.kind != "M": continue
        room = per
        while fill and room >= (2 if fill[0].kind == "E" else 1):
            f = fill.pop(0); out.append(f); room -= 2 if f.kind == "E" else 1
    return out, fill

def vw(tag, n=1, lgkm=None):
    w = waitcnt(vm=0, lgkm=lgkm); w.need = (tag, n); return w

def q0_dma(cfg, rg):
    o = []
    for cb in range(3):
        o += [sop("s_add_u32", "m0", sSTG, str(rg * 3072 + cb * 896)), nop(0), dma(VOFF, SRQ, "0", cb * 128, cfg.polq, tag=f"Q{rg}")]
    return o + [sop("s_add_u32", "s16", "s16", "3072"), sop("s_addc_u32", "s17", "s17", "0")]

def prologue(cfg):
    H = sm_ops("P")[0]
    per = [[o for o in H if o.qb == qb] for qb in range(4)]
    qr = q_reads(); mf = qk_mfmas()
    def kv(which, slot, tag=None):
        o = []
        for m0, d in kv_dma(cfg, which, slot, tag): o += [m0, nop(0), d]
        return o + kv_advance(which, wrap=False)
    o = [vw("K0", lgkm=0), salu("s_barrier")] + k_reads(0)
    if cfg.vtouch:
        o += [valu("v_min_u32", "v254", "2", T[0]), valu("v_mul_u32_u24", "v254", "3145728", "v254")] + window_srd(20, sOP, sXB) + [sop("s_mov_b32", "s22", "0" if cfg.nomem else "6316032")]
    if cfg.pf:
        o += [valu("v_lshlrev_b32", "v254", "7", T[0]), valu("v_lshlrev_b32", "v253", "7", T[0]), valu("v_mov_b32", "v252", "0x40000000"), I(f"v_cmp_gt_u32 vcc, {cfg.pf}, {T[0]}", "V", [T[0]], ["vcc"]), nop(1),
              I("v_cndmask_b32 v253, v252, v253, vcc", "V", ["v252", "v253", "vcc"], ["v253"])]
    for qb in range(4):
        o += [vw(f"Q{2*qb+1}")] + qr[6 * qb:6 * qb + 6]
        for s in range(6):
            o += [waitcnt(lgkm=5 - s), mf[12 * qb + s]]
        o += mf[12 * qb + 6:12 * qb + 12]
        if qb == 0: o += [label("L_skipq6")] if False else []
        if qb == 0: o += late_q(cfg)
        if qb == 1: o += kv("K", 1, "K1") + kv("V", 0, "V0")
        if qb == 2: o += [salu("s_barrier")] + kv("K", 0) + kv("V", 1) + newitem_a(first=True) + newitem_b()
        if qb == 3: o += [vw("K1"), salu("s_barrier")] + k_reads(1)
        o += linear(per[qb])
    o += [vw("V0", lgkm=0)]
    return o

def late_q(cfg):
    o = []
    for rg in range(cfg.q_early, 8): o += q0_dma(cfg, rg)
    return o

def pkmul(r2, l):
    n = int(l[1:]); pair = R("v", n & ~1, 2)
    sel = " op_sel:[0,1] op_sel_hi:[1,1]" if n & 1 else " op_sel_hi:[1,0]"
    return I(f"v_pk_mul_f32 {r2}, {r2}, {pair}{sel}", "V", [r2, l], [r2])

def fin_block(qb, b, tmp):
    rg = regs(Oreg(qb, b)); o = []
    if rg[0][0] == "a":
        o += [I(f"v_accvgpr_read_b32 {tmp[i]}, {rg[i]}", "V", [rg[i]], [tmp[i]]) for i in range(4)]
        rg = tmp
    n = int(rg[0][1:])
    o += [pkmul(R("v", n, 2), LSV[qb]), pkmul(R("v", n + 2, 2), LSV[qb])]
    d = n if b < 11 else int(regs(Oreg(qb, 10))[2][1:])
    c = [valu("v_cvt_pk_bf16_f32", f"v{d}", rg[0], rg[1]), valu("v_cvt_pk_bf16_f32", f"v{d+1}", rg[2], rg[3])]
    return o, c, R("v", d, 2)

def ow_off(qb, b): return qb * 6144 + (b >> 2) * 1024
FT = {0: ["v240", "v241"], 1: ["v242", "v243"], 2: ["v252", "v253"], 3: ["v254", "v255"]}
def fin_pair(x, y):
    tx = [Se(0, i) for i in range(4)]; ty = [Se(0, 4 + i) for i in range(4)]
    ax, cx, px = fin_block(*x, tx)
    if y is None: return ax + cx, ds_write("ds_write_b64", OW[x[1] & 3], px, ow_off(*x))
    ay, cy, py = fin_block(*y, ty)
    assert x[1] & 3 == y[1] & 3
    a = OW[x[1] & 3]
    return ax + ay + cx + cy, I(f"ds_write2st64_b64 {a}, {px}, {py} offset0:{ow_off(*x)//512} offset1:{ow_off(*y)//512}", "W", [a, px, py], [])

def flag_check(cfg, v):
    return [sop("s_mov_b32", sT[4], f2h(cfg.thresh)), I(f"v_cmp_nge_f32 vcc, {sT[4]}, {v}", "V", [sT[4], v], ["vcc"]),
            salu("s_cmp_lg_u64 vcc, 0", ["vcc"], ["scc"]), sop("s_cselect_b32", sT[4], "1", "0"), sop("s_lshl_b32", sT[4], sT[4], sNN), sop("s_or_b32", sFLAG, sFLAG, sT[4])]

def finalize(cfg):
    a, b, c, d = LSV
    o = []
    if cfg.kvpf:
        o += [I(f"buffer_load_dword v252, v254, s[84:87], 0 offen{cfg.polpf}", "G", ["v254", "s[84:87]"], [], tag="PF")]
        if cfg.kvpf > 4:
            o += [sop("s_mov_b32", sT[5], "8192"), I(f"buffer_load_dword v252, v254, s[84:87], {sT[5]} offen{cfg.polpf}", "G", ["v254", "s[84:87]", sT[5]], [], tag="PF")]
        o += [sop("s_mov_b32", "s86", "0")]
    o += [swap("v_permlane32_swap_b32", a, b), swap("v_permlane32_swap_b32", c, d), valu("v_add_f32", a, a, b), valu("v_add_f32", c, c, d)]
    fc = flag_check(cfg, a)
    o += [fc[0], nop(0), swap("v_permlane16_swap_b32", a, c), valu("v_add_f32", a, a, c)]
    o += fc[1:2] + [valu("v_rcp_f32", a, a, kind="E")] + fc[2:4]
    o += [valu("v_mov_b32", c, a)] + fc[4:] + [swap("v_permlane16_swap_b32", a, c), valu("v_mov_b32", b, a), valu("v_mov_b32", d, c), sop("s_add_u32", sNN, sNN, "1"),
          nop(0), swap("v_permlane32_swap_b32", a, b), swap("v_permlane32_swap_b32", c, d), I(".p2align 3", "L")]
    pend = []; done = 0
    for k, (x, y) in enumerate(fin_order()):
        v, w = fin_pair(x, y)
        o += v; pend.append(w)
        while done < cfg.nfw and done < (k + 1) * cfg.nfw // 24:
            o.append(pend[done]); done += 1
    return o

def last_block(cfg):
    V2 = lambda b: R("a", 96 + 4 * b, 4)
    P2 = lambda qb: R("v", SB + 8 * qb, 4)
    mf = qk_mfmas()
    for qb in range(4):
        mf += [mfma(Oreg(qb, b), Vreg(b), Preg(qb), Oreg(qb, b)) for b in range(12)]
        mf += [mfma(Oreg(qb, b), V2(b), P2(qb), Oreg(qb, b)) for b in range(12)]
    n = len(mf)
    mem = {}; sal = {}; sq = []; post = {}
    def M(g, i):
        l = mem.setdefault(g, [])
        l.insert(len([x for x in l if x.kind != "W"]), i) if i.kind == "D" else l.append(i)
    def S(g, i): sal.setdefault(g, []).append(i)
    ops = sm_ops()[1]
    eg = list(range(2, n, 3))[32 - NEXP_H:]
    for qb in range(4):
        ready = 12 * qb + 15; due = 48 + 24 * qb + 10
        adds = []; xs = []; cvs = []
        for e in range(8):
            f = Op(valu("v_fma_f32", Se(qb, e), Se(qb, e), sC, "-" + MC[qb]), lo=ready, hi=due)
            x = Op(valu("v_exp_f32", Se(qb, e), Se(qb, e), kind="E"), deps=[f], fixed=eg[8 * qb + e])
            a = Op(valu("v_add_f32", LS[qb], LS[qb], Se(qb, e)), deps=[x], samegap=adds[-1:], hi=due + 8)
            ops += [f, x, a]; adds.append(a); xs.append(x)
            if e & 1:
                jj = e >> 1
                cv = Op(valu("v_cvt_pk_bf16_f32", Se(qb, jj), Se(qb, e - 1), Se(qb, e)), deps=xs[-2:], samegap=[adds[jj]] + cvs[-1:], hi=due)
                ops.append(cv); cvs.append(cv)
        a_, b_ = LSV[qb], LS[qb]
        c = [adds[-1]]
        def ch(ins):
            o = Op(ins, deps=c[-1:], hi=48 + 24 * qb + 23); c.append(o); ops.append(o)
        ch(valu("v_mov_b32", a_, b_)); ch(swap("v_permlane32_swap_b32", a_, b_)); ch(valu("v_add_f32", a_, a_, b_))
        ch(valu("v_mov_b32", b_, a_)); ch(swap("v_permlane16_swap_b32", a_, b_)); ch(valu("v_add_f32", b_, a_, b_))
        ch(I(f"v_rcp_f32 {a_}, {b_}", "E", [b_], [a_], half=True))
    S(0, salu("s_barrier"))
    for i in range(3): M(3 + 9 * i, o_store(cfg, i))
    spread(v_reads(0), [g for g in range(1, cfg.rdend) if g % 3 != 2 and g not in mem], M)
    sq += [(22, 43, x) for x in window_srd(20, sOP, sITEM) + [sop("s_mov_b32", "s22", WIN)]]
    ops.append(Op(valu("v_mov_b32", VDR, VDR0), hi=60))
    S(44, waitcnt(vm=3, lgkm=0)); S(45, salu("s_barrier"))
    v2 = [ds_read("ds_read_b64_tr_b16", R("a", 96 + 4 * b + 2 * x, 2), VA[b & 3], VSLOT[1] + x * 6144 + (b >> 2) * 1024) for b in range(12) for x in range(2)]
    v2g = [46, 48, 49, 51, 52, 54, 55, 57, 58, 60, 61, 63]
    for b in range(12): M(v2g[b], v2[2 * b]); M(v2g[b], v2[2 * b + 1])
    for g, b in ((59, 2), (62, 5), (65, 8), (68, 11)):
        w = waitcnt(lgkm=0); w.needlg = v2[2 * b + 1]; S(g, w)
    buf = [R("a", 4 * i, 4) for i in range(24)]
    def st(i): return gstore(buf[i], VOFF, SRO, sGOF, (i % 6 // 3) * 3072 + (i % 3) * 128, cfg.polo, tag="O")
    tailseq = []
    for qb in range(4):
        end = 48 + 24 * qb + 23
        grp = [fin_pair((qb, jx), (qb, jx + 4)) for jx in range(4)] + [fin_pair((qb, jx + 8), None) for jx in range(4)]
        rds = [ds_read("ds_read_b128", buf[i], VDR, i * 1024) for i in range(6 * qb, 6 * qb + 6)]
        fc = flag_check(cfg, LS[qb])
        blk = fc + [I(".p2align 3", "L")]
        if qb < 3:
            g0 = end + cfg.lfin
            for k, g in enumerate(grp): blk += g[0] + ([g[1]] if k < cfg.lw else [])
            post[g0] = blk
            free = [g for g in range(g0 + 1, end + 24) if g % 3 != 2 and g not in mem]
            for g in grp[cfg.lw:]: M(free.pop(0), g[1])
            for k in range(3):
                g = free.pop(0); M(g, rds[2 * k]); M(g, rds[2 * k + 1])
            stg = [g + 6 + 4 * k for k in range(6)]
            w = waitcnt(lgkm=0); w.needlg = rds[-1]
            seq = [(stg[0] - 1, w), (stg[0] - 1, sop("s_mov_b32", sGOF, str(qb * 6144)))] + [(stg[k], st(6 * qb + k)) for k in range(6)]
            for g, ins in seq:
                if g >= n: tailseq.append(ins)
                elif ins.kind == "S": S(g, ins)
                else: M(g, ins)
        else:
            rest = list(tailseq); tailseq = []
            blk = [nop(2)] + blk
            for k, g in enumerate(grp):
                blk += g[0] + [g[1]]
                if rest: blk.append(rest.pop(0))
                if k == 3: blk += [rds[0], rds[3], rds[1], rds[4]]
            blk += rest + [rds[2], rds[5], sop("s_mov_b32", sGOF, str(qb * 6144))]
            for k, i in enumerate([0, 3, 1, 4, 2, 5]):
                blk += [waitcnt(lgkm=[9, 8, 7, 6, 1, 0][k]), st(18 + i)]
            post[end] = blk
    out, over = schedule(mf, mem, sal, ops, sq, post)
    for k, i in enumerate(out):
        if hasattr(i, "needlg"):
            c = sum(1 for x in out[out.index(i.needlg) + 1:k] if x.kind in "DW")
            i.lgkm = c; i.text = f"s_waitcnt lgkmcnt({c})"
    print(f"last block: {len(out)} instrs, overflow slots {over}", file=sys.stderr)
    return out

def fixnops(seq, name):
    import re
    for _ in range(400):
        p = [x for x in check(seq, name) if "dist" in x]
        if not p: return seq
        for k in range(1, len(seq) + 1):
            q = [x for x in check(seq[:k], name) if "dist" in x]
            if q:
                m = re.search(r"dist (\d+)(?: < (\d+))?", q[0])
                need = int(m.group(2) or 8) - int(m.group(1))
                seq = seq[:k - 1] + [nop(need - 1)] + seq[k - 1:]
                break
    raise RuntimeError("fixnops")

def window_srd(srd_lo, ptr, item):
    return [sop("s_mul_i32", sT[1], item, "98304"), sop("s_mul_i32", sT[2], sWAVE, "24576"), sop("s_add_u32", sT[1], sT[1], sT[2]),
            sop("s_add_u32", f"s{srd_lo}", f"s{ptr}", sT[1]), sop("s_addc_u32", f"s{srd_lo+1}", f"s{ptr+1}", "0")]

def head_base(dst, item):
    return [sop("s_mul_hi_u32", dst, item, "0x55555556"), sop("s_mul_i32", dst, dst, "196608"), sop("s_add_u32", dst, dst, sRB)]

def newitem_a(first=False):
    o = [] if first else [sop("s_sub_u32", sLEFT, sLEFT, "1"), sop("s_add_u32", sITEM, sITEM, "32")]
    o += head_base(sT[0], sITEM) + [sop("s_add_u32", sT[0], sT[0], "196608"), sop("s_add_u32", sKEND, f"s{sKP}", sT[0]), sop("s_add_u32", sVEND, f"s{sVP}", sT[0])]
    o += [sop("s_add_u32", sT[3], sITEM, "32"), sop("s_min_u32", sT[3], sT[3], "767")]
    o += head_base(sT[0], sT[3])
    o += [sop("s_add_u32", f"s{sKNX}", f"s{sKP}", sT[0]), sop("s_addc_u32", f"s{sKNX+1}", f"s{sKP+1}", "0")]
    return o
def kvpf_setup(cfg):
    n = cfg.kvpf * 2048
    a_, b_ = sT[5], sT[6]
    return [sop("s_mul_hi_u32", a_, sITEM, "0x55555556"), sop("s_mul_i32", b_, a_, "3"), sop("s_sub_u32", b_, sITEM, b_), sop("s_mul_i32", b_, b_, str(2 * n)),
            sop("s_mul_i32", a_, a_, "196608"), sop("s_add_u32", a_, a_, b_), sop("s_and_b32", b_, sWAVE, "1"), sop("s_mul_i32", b_, b_, str(n)), sop("s_add_u32", a_, a_, b_),
            sop("s_add_u32", a_, a_, str((16 - cfg.kvpf) * 12288)),
            salu(f"s_cmp_lt_u32 {sWAVE}, 2", [sWAVE], ["scc"]), sop("s_cselect_b64", "s[84:85]", R("s", sKP, 2), R("s", sVP, 2)),
            sop("s_add_u32", "s84", "s84", a_), sop("s_addc_u32", "s85", "s85", "0")] + (
           [salu(f"s_cmp_eq_u32 {sLEFT}, 1", [sLEFT], ["scc"]), sop("s_cselect_b32", "s86", str(n), "0")] if cfg.kvpf_last else [sop("s_mov_b32", "s86", "0" if cfg.nomem else str(n))])

def newitem_b():
    o = [sop("s_add_u32", f"s{sVNX}", f"s{sVP}", sT[0]), sop("s_addc_u32", f"s{sVNX+1}", f"s{sVP+1}", "0")]
    o += window_srd(16, sQP, sT[3])
    o += [salu(f"s_cmp_gt_u32 {sLEFT}, 1", [sLEFT], ["scc"]), sop("s_cselect_b32", sNR, KVWIN, "0"), sop("s_cselect_b32", "s18", QWIN, "0"),
          sop("s_mov_b32", sGOF, "0"), sop("s_mov_b32", sQM, sSTG), sop("s_mov_b32", sCNT, "7")]
    return o

def setup(cfg):
    o = []
    x = lambda t: o.append(salu(t))
    x("s_cmp_ge_u32 s2, 256"); x("s_cbranch_scc1 L_end")
    x(f"s_load_dwordx4 s[4:7], s[0:1], 0"); x(f"s_load_dwordx2 s[{sVP}:{sVP+1}], s[0:1], 16"); x(f"s_load_dwordx2 s[{sOP}:{sOP+1}], s[0:1], 24")
    if cfg.stamps: x("s_memtime s[60:61]"); x("s_memrealtime s[62:63]")
    if cfg.stamps: x(f"s_load_dwordx2 s[56:57], s[0:1], {32 if cfg.stamps == 2 else 40}")
    L, N, G, A, B_ = T
    o += [valu("v_lshrrev_b32", A, "6", "v0"), valu("v_and_b32", L, "63", "v0"), I(f"v_readfirstlane_b32 {sWAVE}, {A}", "V", [A], [sWAVE])]
    o += [valu("v_lshrrev_b32", A, "3", L), valu("v_and_b32", B_, "7", L), valu("v_xor_b32", B_, B_, A), valu("v_mul_u32_u24", A, "384", A), valu("v_lshl_add_u32", VOFF, B_, "4", A)]
    o += [sop("s_mul_i32", sRB, sWAVE, "3072"), sop("s_mul_i32", sSTG, sWAVE, str(STGW)), sop("s_add_u32", sSTG, sSTG, str(STG)), sop("s_mov_b32", sC, f2h(CSCALE))]
    o += [sop("s_and_b32", sT[0], "s2", "7"), sop("s_mul_i32", sT[0], sT[0], "96"), sop("s_lshr_b32", sT[1], "s2", "3"), sop("s_add_u32", sXB, sT[0], sT[1])]
    for lo in (8, 12): x(f"s_mov_b32 s{lo+3}, 0x20000")
    for which, tab in (("K", KSLOT), ("V", VSLOT)):
        for slot in range(2):
            for cb in range(3): o.append(sop("s_add_u32", m0reg(which, slot, cb), sRB, str(tab[slot] + cb * 896)))
    x("s_mov_b32 s19, 0x20000"); x("s_mov_b32 s23, 0x20000")
    if cfg.stamps: x(f"s_mov_b32 s58, {256 if cfg.stamps == 2 else 301989888}"); x("s_mov_b32 s59, 0x20000")
    o += [sop("s_mov_b32", sITEM, sXB), sop("s_mov_b32", sLEFT, "3"), sop("s_mov_b32", sNN, "0"), sop("s_mov_b32", sFLAG, "0"), sop("s_mov_b32", sMODE, "0"), sop("s_mov_b32", sTODO, "0")]
    x("s_waitcnt lgkmcnt(0)")
    x(f"s_mov_b32 s{sQP}, s4"); x(f"s_mov_b32 s{sQP+1}, s5")
    return o

def addr_setup():
    L, N, G, A, B_ = T
    o = [valu("v_and_b32", N, "15", L), valu("v_lshrrev_b32", G, "4", L)]
    o += [valu("v_lshrrev_b32", A, "3", N), valu("v_mul_u32_u24", "v0", "3072", A), valu("v_and_b32", "v1", "7", N), valu("v_lshl_add_u32", "v0", "v1", "7", "v0")]
    for e in range(2):
        o += [valu("v_add_u32", A, str(4 * e), G), valu("v_xor_b32", A, A, "v1"), valu("v_lshl_add_u32", KA[e], A, "4", "v0"), valu("v_add_u32", QA[e], sSTG, KA[e])]
    o += [valu("v_lshrrev_b32", "v2", "1", G), valu("v_and_b32", "v3", "1", G), valu("v_lshl_add_u32", "v3", "v3", "3", "v0"), valu("v_add_u32", "v3", sSTG, "v3"), valu("v_add_u32", "v3", "3072", "v3")]
    for j in range(4):
        o += [valu("v_add_u32", A, str(2 * j), "v2"), valu("v_xor_b32", A, A, "v1"), valu("v_lshl_add_u32", OW[j], A, "4", "v3")]
    o += [valu("v_lshrrev_b32", B_, "2", L), valu("v_lshrrev_b32", A, "3", B_), valu("v_mul_u32_u24", "v0", "3072", A), valu("v_and_b32", "v1", "7", B_),
          valu("v_lshl_add_u32", "v0", "v1", "7", "v0"), valu("v_and_b32", A, "1", L), valu("v_lshl_add_u32", "v0", A, "3", "v0"), valu("v_bfe_u32", "v2", L, "1", "1")]
    for j in range(4):
        o += [valu("v_add_u32", A, str(2 * j), "v2"), valu("v_xor_b32", A, A, "v1"), valu("v_lshl_add_u32", VA[j], A, "4", "v0")]
    o += [valu("v_lshlrev_b32", A, "4", L), valu("v_add_u32", VDR0, sSTG, A), valu("v_add_u32", VDR0, "3072", VDR0)]
    for qb in range(4): o += [valu("v_mov_b32", MC[qb], "0xff800000"), valu("v_mov_b32", LS[qb], "0")]
    return o

def touch_pages(cfg):
    o = []
    def ld(ptr, off): o.append(salu(f"s_load_dword s4, s[{ptr}:{ptr+1}], {off}"))
    o += [sop("s_min_u32", sT[1], sWAVE, "2"), sop("s_lshl_b32", sT[1], sT[1], "5"), sop("s_add_u32", sT[1], sT[1], sXB), sop("s_mul_i32", sT[2], sT[1], "98304")]
    ld(sOP, sT[2])
    if cfg.touch > 1: ld(sQP, sT[2])
    o += [sop("s_add_u32", sT[3], sT[2], "98300")]
    ld(sOP, sT[3])
    if cfg.touch > 1:
        ld(sQP, sT[3])
        o += [sop("s_mul_hi_u32", sT[4], sT[1], "0x55555556"), sop("s_mul_i32", sT[4], sT[4], "196608")]
        ld(sKP, sT[4]); ld(sVP, sT[4])
        o += [sop("s_add_u32", sT[5], sT[4], "196604")]
        ld(sKP, sT[5]); ld(sVP, sT[5])
    return o

def start_run(cfg):
    o = head_base(sT[0], sITEM)
    o += [sop("s_add_u32", "s8", f"s{sKP}", sT[0]), sop("s_addc_u32", "s9", f"s{sKP+1}", "0"), sop("s_mov_b32", "s10", KVWIN)]
    for m0, d in kv_dma(cfg, "K", 0, "K0"): o += [m0, nop(0), d]
    o += window_srd(16, sQP, sITEM) + [sop("s_mov_b32", "s18", QWIN)]
    for rg in range(cfg.q_early): o += q0_dma(cfg, rg)
    fill = addr_setup(); mixed = []
    for x in o:
        if x.text == "s_nop 0" and fill:
            mixed += fill[:3]; del fill[:3]
        else: mixed.append(x)
    o = mixed + fill
    if cfg.touch: o += touch_pages(cfg)
    o += kv_advance("K", wrap=False)
    o += [sop("s_add_u32", "s12", f"s{sVP}", sT[0]), sop("s_addc_u32", "s13", f"s{sVP+1}", "0"), sop("s_mov_b32", "s14", KVWIN)]
    o += [sop("s_mov_b32", "s20", f"s{sOP}"), sop("s_mov_b32", "s21", f"s{sOP+1}"), sop("s_mov_b32", "s22", "0"), valu("v_add_u32", VDR, "3072", VDR0)]
    if cfg.pf:
        o += [sop("s_add_u32", sT[4], sXB, "64")] + window_srd(84, sQP, sT[4])
        o += [salu(f"s_cmp_eq_u32 {sLEFT}, 3", [sLEFT], ["scc"]), sop("s_cselect_b32", "s86", "0" if cfg.nomem else str(cfg.pfbytes), "0"), sop("s_mov_b32", "s87", "0x20000")]
    if cfg.exp == "early_o":
        o += [sop("s_add_u32", sT[4], sITEM, "64")] + window_srd(20, sOP, sT[4]) + [sop("s_mov_b32", "s22", WIN)]
    return o

def max_pass(cfg):
    L, N, G, A, B_ = T
    o = [valu("v_and_b32", N, "15", L), valu("v_lshrrev_b32", G, "4", L), valu("v_mul_u32_u24", A, "384", N), valu("v_lshl_add_u32", A, G, "4", A)]
    o += window_srd(20, sQP, sITEM) + [sop("s_mov_b32", "s22", WIN)]
    for qb in range(4):
        o.append(sop("s_mov_b32", sT[5], str(qb * 6144)))
        for s in range(6): o.append(gload(Qreg(qb, s), A, SRO, sT[5], s * 64))
    o += [sop("s_mul_hi_u32", sT[5], sITEM, "0x55555556"), sop("s_mul_i32", sT[5], sT[5], "196608"), sop("s_mov_b32", sT[6], "16")]
    o += [sop("s_mov_b32", "s20", f"s{sKP}"), sop("s_mov_b32", "s21", f"s{sKP+1}"), sop("s_mov_b32", "s22", "0" if cfg.nomem else "50331648")]
    o += [label("L_maxloop")]
    body = []
    for kb in range(2):
        if kb: body.append(sop("s_add_u32", sT[5], sT[5], "6144"))
        for s in range(6): body.append(gload(Kreg(kb, s), A, SRO, sT[5], s * 64))
    body += [sop("s_add_u32", sT[5], sT[5], "6144"), waitcnt(vm=0)]
    body += qk_mfmas() + [nop(7)]
    for qb in range(4):
        for e in range(0, 8, 2): body.append(valu("v_max3_f32", MC[qb], MC[qb], Se(qb, e), Se(qb, e + 1)))
    body += [sop("s_sub_u32", sT[6], sT[6], "1"), salu(f"s_cmp_lg_u32 {sT[6]}, 0"), salu("s_cbranch_scc1 L_maxloop")]
    return o + body + [sop("s_mov_b32", "s20", f"s{sOP}"), sop("s_mov_b32", "s21", f"s{sOP+1}"), sop("s_mov_b32", "s22", "0")]

def stamp(idx):
    return [salu(f"s_memtime s[{64+2*idx}:{65+2*idx}]")]

def build(cfg):
    global WIN, KVWIN, QWIN
    WIN = "0" if cfg.nomem else "24576"
    KVWIN = "0" if cfg.nomem else "3072"
    QWIN = "0" if cfg.nomem else "6144"
    blk = {}
    for k in "AZOEXY": blk[k] = fixnops(iteration(cfg, k), k)
    blk["setup"] = fixnops(setup(cfg), "setup")
    blk["start"] = fixnops(start_run(cfg), "start")
    blk["max"] = max_pass(cfg)
    blk["P"] = fixnops(prologue(cfg), "P")
    blk["F"] = fixnops(finalize(cfg), "F")
    blk["T"] = fixnops(last_block(cfg), "T")
    br = lambda t: [salu(t)]
    def item(z="Z"): return blk[z] + (br("b") if z == "A" else []) + (blk["O"] + br("b") + blk["E"] + br("b")) * 6 + blk["O"] + br("b") + br("b") + br("b")
    mid = blk["X"] + blk["Y"] + blk["F"]
    tr1 = blk["setup"] + blk["start"] + br("b") + br("b") + blk["P"] + item("A") + mid + item() + mid + item() + blk["T"]
    tr2 = blk["setup"] + blk["start"] + br("b") + br("b") + blk["max"] + blk["P"] + item("A") + blk["T"]
    best = {}
    for tr in (tr1, tr2):
        vm = []
        for ins in tr:
            if ins.kind == "G": vm.append(ins.tag)
            if getattr(ins, "need", None):
                tag, nb = ins.need
                seen = 0; cnt = None
                for j in range(len(vm) - 1, -1, -1):
                    if vm[j] == tag:
                        if seen == 3 * (nb - 1): cnt = len(vm) - 1 - j; break
                        seen += 1
                assert cnt is not None
                best[id(ins)] = (min(cnt, best.get(id(ins), (99,))[0]), ins)
    for cnt, ins in best.values():
        ins.vm = cnt; ins.text = f"s_waitcnt vmcnt({cnt})" + (f" lgkmcnt({ins.lgkm})" if ins.lgkm is not None else "")
    for tr, n in ((tr1, "tr1"), (tr2, "tr2")):
        p = check(tr, n)
        for x in sorted(set(p)): print("HAZARD", x, file=sys.stderr)
        assert not p
    out = []
    a = out.append
    def emit(seq):
        if cfg.trace and any(seq is blk[k] for k in "AZOEXYT"):
            a("    s_mov_b32 m0, s45"); a("    s_nop 0"); a("    v_writelane_b32 v255, s4, m0"); a("    s_add_u32 s45, s45, 1"); a("    s_nop 0"); a("    s_memtime s[4:5]")
        for i in seq: a(("" if i.kind == "L" else "    ") + i.text)
    a("; @launch grid=(256,1,1) block=(256,1,1) lds=163840")
    a('.amdgcn_target "amdgcn-amd-amdhsa--gfx950"'); a(".text"); a(f".globl {NAME}"); a(".p2align 8"); a(f".type {NAME},@function"); a(f"{NAME}:")
    emit(blk["setup"])
    a("L_run:")
    emit(blk["start"])
    a(f"    s_cmp_eq_u32 {sMODE}, 0"); a("    s_cbranch_scc1 L_k0")
    emit(blk["max"])
    a("L_k0:")
    if cfg.trace: a("    s_mov_b32 s45, 0"); a("    s_mov_b32 s4, s60")
    if cfg.stamps: emit(stamp(2))
    emit(blk["P"])
    if cfg.stamps: emit(stamp(8))
    a(".p2align 3")
    emit(blk["A"])
    a("    s_branch L_O")
    a(".p2align 7")
    if cfg.pad: a(f".fill {cfg.pad // 4}, 4, 0xbf800000")
    a("L_X:")
    a(f"    s_cmp_eq_u32 {sLEFT}, 1"); a("    s_cbranch_scc1 L_T")
    emit(blk["X"])
    a(".p2align 3")
    if cfg.stamps: a("    s_mov_b64 s[72:73], s[74:75]"); a("    s_nop 0"); emit(stamp(5))
    emit(blk["Y"])
    emit(blk["F"])
    a(".p2align 3"); a("L_Z:")
    if cfg.stamps: emit(stamp(7))
    emit(blk["Z"])
    a(".p2align 3"); a("L_O:")
    emit(blk["O"])
    a("    s_cbranch_scc1 L_X")
    a(".p2align 3")
    emit(blk["E"])
    a("    s_branch L_O")
    a(".p2align 6"); a("L_T:")
    if cfg.stamps: emit(stamp(9))
    emit(blk["T"])
    if cfg.stamps: emit(stamp(3))
    a(f"    s_cmp_lg_u32 {sMODE}, 0"); a("    s_cbranch_scc1 L_todo")
    a(f"    v_mov_b32 v0, {sFLAG}"); a(f"    s_lshl_b32 {sT[0]}, {sWAVE}, 2"); a(f"    s_add_u32 {sT[0]}, {sT[0]}, {FLAGS_LDS}"); a(f"    v_mov_b32 v1, {sT[0]}")
    a("    ds_write_b32 v1, v0"); a("    s_waitcnt lgkmcnt(0)"); a("    s_barrier")
    a(f"    v_mov_b32 v1, {FLAGS_LDS}"); a("    ds_read_b128 v[4:7], v1"); a("    s_waitcnt lgkmcnt(0)")
    a("    v_or_b32 v4, v4, v5"); a("    v_or3_b32 v4, v4, v6, v7"); a("    s_nop 1"); a(f"    v_readfirstlane_b32 {sTODO}, v4"); a(f"    s_mov_b32 {sMODE}, 1"); a("    s_nop 3")
    a("L_todo:")
    a(f"    s_and_b32 {sTODO}, {sTODO}, 7")
    a(f"    s_cbranch_scc0 L_fin")
    a(f"    s_ff1_i32_b32 {sNN}, {sTODO}"); a(f"    s_bitset0_b32 {sTODO}, {sNN}")
    a(f"    s_lshl_b32 {sITEM}, {sNN}, 5"); a(f"    s_add_u32 {sITEM}, {sITEM}, {sXB}"); a(f"    s_mov_b32 {sLEFT}, 1")
    a("    s_waitcnt vmcnt(0) lgkmcnt(0)"); a("    s_barrier"); a("    s_branch L_run")
    a("L_fin:")
    if cfg.stamps:
        a("    s_waitcnt vmcnt(0)")
        a("    s_memtime s[64:65]"); a("    s_memrealtime s[66:67]"); a("    s_waitcnt lgkmcnt(0)")
        a(f"    s_cmp_lg_u32 {sWAVE}, 0"); a("    s_cbranch_scc1 L_end")
        if cfg.stamps == 2:
            a("    s_not_b32 s76, s62"); a("    s_sub_u32 s77, s64, s60"); a("    s_sub_u32 s78, s68, s60"); a("    s_sub_u32 s79, s70, s60"); a("    s_sub_u32 s80, s72, s60")
            a("    s_sub_u32 s81, s66, s62"); a("    s_not_b32 s82, s66"); a("    s_not_b32 s83, s77"); a("    s_not_b32 s84, s78")
            srcs = [66, 76, 62, 82, 77, 83, 78, 84, 79, 80, 81]
            for i, s in enumerate(srcs): a(f"    v_mov_b32 v{i}, s{s}")
            a("    v_mov_b32 v16, 0"); a("    s_mov_b64 exec, 1")
            for i in range(len(srcs)): a(f"    buffer_atomic_umax v{i}, v16, s[56:59], 0 offen offset:{4*i}")
        else:
            order = [2, 8, 4, 5, 7, 9, 3, 0, 0, 0, 0, 0]
            src = [60, 61, 64, 65, 62, 63, 66, 67] + [x for k in order for x in (64 + 2 * k, 65 + 2 * k)]
            for i, s in enumerate(src): a(f"    v_mov_b32 v{i}, s{s}")
            if cfg.trace:
                a("    s_mov_b32 m0, s45"); a("    s_nop 0"); a("    v_writelane_b32 v255, s4, m0"); a("    v_lshlrev_b32 v33, 2, v251"); a("    s_lshl_b32 s41, s2, 8"); a("    s_add_u32 s41, s41, 0x100000")
                a("    buffer_store_dword v255, v33, s[56:59], s41 offen")
            a("    s_lshl_b32 s41, s2, 7"); a("    v_mov_b32 v32, 0"); a("    s_mov_b64 exec, 1")
            for i in range(8): a(f"    buffer_store_dwordx4 v[{4*i}:{4*i+3}], v32, s[56:59], s41 offen offset:{16*i}")
    a("L_end:"); a("    s_endpgm")
    a('.section .rodata,"a"'); a(".p2align 6"); a(f".amdhsa_kernel {NAME}")
    for l in ["next_free_vgpr 512", "next_free_sgpr 102", "accum_offset 256", "group_segment_fixed_size 0", "kernarg_size 48", "user_sgpr_count 2",
              "user_sgpr_kernarg_segment_ptr 1", "system_sgpr_workgroup_id_x 1"]: a("  .amdhsa_" + l)
    a(".end_amdhsa_kernel")
    return "\n".join(out) + "\n"

if __name__ == "__main__":
    kw = {}
    for x in sys.argv[2:]:
        k, v = x.split("=", 1)
        kw[k] = ((" " + v.replace("+", " ")) if v != "-" else "") if k.startswith("pol") else eval(v)
    import subprocess, tempfile, os, io, contextlib
    cfg = Cfg(**kw)
    txt = build(cfg)
    if cfg.ophase is not None:
        with tempfile.TemporaryDirectory() as d:
            open(d + "/t.s", "w").write(txt)
            subprocess.run(["clang", "-x", "assembler", "-target", "amdgcn-amd-amdhsa", "-mcpu=gfx950", "-c", d + "/t.s", "-o", d + "/t.o"], check=True)
            nm = subprocess.run(["llvm-objdump", "-t", d + "/t.o"], capture_output=True, text=True).stdout
        addr = {l.split()[-1]: int(l.split()[0], 16) for l in nm.splitlines() if ".text" in l}
        cfg.pad = (cfg.ophase - addr["L_O"]) % 128
        with contextlib.redirect_stderr(io.StringIO()): txt = build(cfg)
    open(sys.argv[1], "w").write(txt)
```

```python
import sys, struct, math
from asmlib import *

NAME = "standalone__gqa_softmax__near_ridge_kernel"
def f2h(x): return "0x%08x" % struct.unpack("<I", struct.pack("<f", x))[0]
CSCALE = (192 ** -0.5) * math.log2(math.e)

class Cfg:
    polkv = " nt"; polq = " nt"; polo = " sc1"
    stamps = False
    nomem = False
    kill = ""
    vsp = 6
    rdend = 38
    q_early = 6
    touch = 0
    trace = 0
    kvpf = 4
    kvpf_last = 0
    pad = 0
    ophase = 0
    vtouch = 0
    lfin = 3
    lsp = 4
    pf = 16
    pfbytes = 24576
    polpf = ''
    exp = ''
    nfw = 24
    zwend = 72
    thresh = 2.0 ** 64
    def __init__(s, **kw): s.__dict__.update(kw)

def Oreg(qb, b): return R("v", (qb * 11 + b) * 4, 4) if b < 11 else R("a", 192 + 4 * qb, 4)
SB = 176; PB = 208
def Sreg(qb, kb): return R("v", SB + qb * 8 + kb * 4, 4)
def Se(qb, e): return f"v{SB + qb * 8 + e}"
def Preg(qb): return R("v", PB + 4 * qb, 4)
KA = ["v224", "v225"]; VA = ["v226", "v227", "v228", "v229"]; VOFF = "v230"; VDR = "v231"
MC = [f"v{232+i}" for i in range(4)]; LS = [f"v{236+i}" for i in range(4)]; LSV = [f"v{240+i}" for i in range(4)]
QA = ["v244", "v245"]; OW = "v246"; VOFO = "v247"; SCW = "v248"; SCR = "v249"; VDR0 = "v250"
T = [f"v{251+i}" for i in range(5)]
def Qreg(qb, s): return R("a", (qb * 6 + s) * 4, 4)
def Kreg(kb, s): return R("a", 96 + (kb * 6 + s) * 4, 4)
def Vreg(b): return R("a", 144 + 4 * b, 4)
def Vhalf(b, x): return R("a", 144 + 4 * b + 2 * x, 2)
def DRreg(i): return R("a", 208 + 4 * i, 4)
SRK, SRV, SRQ, SRO = "s[8:11]", "s[12:15]", "s[16:19]", "s[20:23]"
sWAVE, sKEND, sVEND, sNR, sGOF, sC, sCNT, sLEFT, sITEM, sRB, sSTG, sQM, sFLAG = [f"s{i}" for i in range(24, 37)]
sT = [f"s{i}" for i in range(38, 46)]
sQP, sOP = 46, 48
sXB = "s50"
sNN = "s51"
sMODE = "s52"
sTODO = "s53"
sKP, sVP = 6, 54
sKNX, sVNX = 88, 90
sM0 = 4
M0TAB = {("K", 0): 92, ("K", 1): 95, ("V", 0): 98}
def m0reg(which, slot, cb):
    if (which, slot) == ("V", 1): return ["s101", "s37", "s3"][cb]
    return f"s{M0TAB[(which, slot)] + cb}"
KSLOT = [0, 12288]; VSLOT = [24576, 36864]; STG = 49152; STGW = 27648; FLAGS_LDS = 49152 + 4 * 27648
OOR = 0x40000000

def qk_mfmas():
    out = []
    for qb in range(4):
        for kb in range(2):
            for s in range(6):
                out.append(mfma(Sreg(qb, kb), Kreg(kb, s), Qreg(qb, s), "0" if s == 0 else Sreg(qb, kb)))
    return out
def pv_mfmas(c0):
    return [mfma(Oreg(qb, b), Preg(qb), Vreg(b), "0" if c0 else Oreg(qb, b)) for qb in range(4) for b in range(12)]
def k_reads(slot):
    return [ds_read("ds_read_b128", Kreg(kb, s), KA[s & 1], KSLOT[slot] + kb * 6144 + (s >> 1) * 1024) for kb in range(2) for s in range(6)]
def q_reads():
    return [ds_read("ds_read_b128", Qreg(qb, s), QA[s & 1], qb * 6144 + (s >> 1) * 1024) for qb in range(4) for s in range(6)]
def v_reads(slot):
    return [ds_read("ds_read_b64_tr_b16", Vhalf(b, x), VA[b & 3], VSLOT[slot] + x * 6144 + (b >> 2) * 1024) for b in range(12) for x in range(2)]
def kv_dma(cfg, which, slot, tag=None):
    srd = SRK if which == "K" else SRV
    return [(sop("s_mov_b32", "m0", m0reg(which, slot, cb)), dma(VOFF, srd, "0", cb * 128, cfg.polkv, tag=tag or which)) for cb in range(3)]
def kv_advance(which, wrap=True):
    lo, end, nx = (8, sKEND, sKNX) if which == "K" else (12, sVEND, sVNX)
    o = [sop("s_add_u32", f"s{lo}", f"s{lo}", "12288"), sop("s_addc_u32", f"s{lo+1}", f"s{lo+1}", "0")]
    if wrap:
        o += [salu(f"s_cmp_eq_u32 s{lo}, {end}", [f"s{lo}", end], ["scc"]),
              sop("s_cselect_b64", R("s", lo, 2), R("s", nx, 2), R("s", lo, 2)), sop("s_cselect_b32", f"s{lo+2}", sNR, f"s{lo+2}")]
    return o

class Op:
    def __init__(s, ins, deps=(), lo=0, hi=95, fixed=None, samegap=()):
        s.ins = ins; s.deps = list(deps); s.lo = lo; s.hi = hi; s.fixed = fixed; s.gap = None; s.samegap = list(samegap)

NEXP_H = 22
def sm_ops(minit=None):
    H, Rr = [], []
    egaps = list(range(2, 96, 3))
    for qb in range(4):
        ready = 12 * qb + 11 + 4
        pre = []
        if minit:
            t, u = MC[qb], LS[qb]
            sv = Op(valu("v_mov_b32", LSV[qb], LS[qb]), lo=(0 if qb < 2 else 12 * qb))
            c = []
            def ch(ins, extra=()):
                o = Op(ins, deps=(c[-1:] if c else []) + list(extra), lo=ready); c.append(o); return o
            if minit == "P":
                ch(valu("v_max3_f32", t, t, Se(qb, 0), Se(qb, 1)))
                ch(valu("v_max3_f32", t, t, Se(qb, 2), Se(qb, 3)))
                ch(valu("v_max3_f32", t, t, Se(qb, 4), Se(qb, 5)))
                ch(valu("v_max3_f32", t, t, Se(qb, 6), Se(qb, 7)))
            else:
                ch(valu("v_max3_f32", t, Se(qb, 0), Se(qb, 1), Se(qb, 2)))
                ch(valu("v_max3_f32", t, t, Se(qb, 3), Se(qb, 4)))
                ch(valu("v_max3_f32", t, t, Se(qb, 5), Se(qb, 6)))
                ch(valu("v_max_f32", t, t, Se(qb, 7)))
            ch(valu("v_mov_b32", u, t), [sv])
            ch(swap("v_permlane32_swap_b32", t, u))
            ch(valu("v_max_f32", t, t, u))
            ch(valu("v_mov_b32", u, t))
            ch(swap("v_permlane16_swap_b32", t, u))
            ch(valu("v_max_f32", t, t, u))
            last = ch(valu("v_mul_f32", t, sC, t))
            z = Op(valu("v_mov_b32", u, "0"), deps=[c[-2]], lo=ready)
            H += [sv] + c + [z]
            pre = [last, z]
        prevadd = None
        ex = []
        for e in range(8):
            n = qb * 8 + e
            inH = n < NEXP_H
            f = Op(valu("v_fma_f32", Se(qb, e), Se(qb, e), sC, "-" + MC[qb]), deps=pre[:1])
            x = Op(valu("v_exp_f32", Se(qb, e), Se(qb, e), kind="E"), deps=[f])
            fH = True
            if fH: f.lo = ready
            else: f.deps = []
            (H if fH else Rr).append(f)
            x.fixed = egaps[(32 - NEXP_H) + n] if inH else egaps[n - NEXP_H]
            if not inH and fH: x.deps = []
            (H if inH else Rr).append(x)
            aH = n < NEXP_H - 2
            a = Op(valu("v_add_f32", LS[qb], LS[qb], Se(qb, e)), deps=([x] if (aH or not inH) else []) + (pre[1:] if aH else []))
            if prevadd is not None and prevadd[1] == aH: a.samegap = [prevadd[0]]
            if not aH: a.hi = 12 * qb - 1
            prevadd = (a, aH)
            (H if aH else Rr).append(a)
            ex.append((x, inH))
            if e & 1:
                cv = Op(valu("v_cvt_pk_bf16_f32", f"v{PB + 4*qb + (e >> 1)}", Se(qb, e - 1), Se(qb, e)),
                        deps=[y for (y, h) in ex[-2:] if h == aH])
                if aH: cv.lo = 48 + 12 * qb + 11
                else: cv.hi = 12 * qb - 1
                (H if aH else Rr).append(cv)
        for o in H + Rr:
            if not hasattr(o, "qb"): o.qb = qb
    return H, Rr

def schedule(mf, mem, sal, ops, sq=(), post={}):
    sq = list(sq)
    for g in range(len(mf)):
        while sq and sq[0][0] <= g and ((g not in mem and g not in sal) or sq[0][1] <= g):
            sal.setdefault(g, []).append(sq.pop(0)[2])
    assert not sq
    cons = {id(o): [] for o in ops}
    for o in ops:
        for d in o.deps: cons[id(d)].append((o, 1))
        for d in o.samegap: cons[id(d)].append((o, 0))
    def dl(o, memo={}):
        if id(o) in memo: return memo[id(o)]
        v = o.fixed if o.fixed is not None else o.hi
        if o.fixed is None:
            for c, k in cons[id(o)]:
                v = min(v, dl(c, memo) - k - (1 if getattr(c.ins, "perm", False) else 0))
        memo[id(o)] = v
        return v
    memo = {}
    for o in ops: o.dl = dl(o, memo)
    for o in ops: assert o.dl >= o.lo, (o.ins, o.dl, o.lo)
    out = []; over = 0
    todo = [o for o in ops if o.fixed is None]
    fixed = {o.fixed: o for o in ops if o.fixed is not None}
    for g in range(len(mf)):
        if mf[g] is not None: out.append(mf[g])
        m = mem.get(g, []); s = sal.get(g, [])
        room = 2
        out += m; room -= sum(2 if x.kind == 'W' else 1 for x in m)
        out += s; room -= (len(s) if m else max(0, len(s) - 1))
        if g in fixed:
            o = fixed[g]
            assert all(d.gap is not None and d.gap < g for d in o.deps), o.ins
            o.gap = g; out.append(o.ins); room -= 2
        while True:
            rdy = [o for o in todo if o.lo <= g and all(d.gap is not None and d.gap + (1 if getattr(o.ins, "perm", False) else 0) < g for d in o.deps)
                   and all(d.gap is not None for d in o.samegap)]
            if not rdy: break
            o = min(rdy, key=lambda o: o.dl)
            if room <= 0 and o.dl > g: break
            o.gap = g; todo.remove(o); out.append(o.ins); room -= 1
        over += max(0, -room)
        out += post.get(g, [])
    assert not todo, [o.ins for o in todo]
    return out, over

def spread(rd, free, M):
    n = len(rd)
    for k, g in enumerate(free):
        while rd and (n - len(rd)) < (n * (k + 1) + len(free) - 1) // len(free) if n > len(free) else (rd and n - len(rd) <= k):
            M(g, rd.pop(0))
    assert not rd

def piece_reads(base, off):
    return [ds_read("ds_read_b64_tr_b16", R("a", base + 2 * x, 2), VDR, off + 64 * x) for x in range(2)]
def drain_reads(n=3): return [r for i in range(n) for r in piece_reads(208 + 4 * i, i * 1024)]
def pc_off(i): return (i // 3) * 3072 + (i % 3) * 128
def o_store(cfg, i): return gstore(DRreg(i), VOFO, SRO, sGOF, pc_off(i), cfg.polo, tag="O")
def q_dma(cfg, i, tag="Q"): return (sop("s_add_u32", "m0", sQM, str((i % 3) * 896)), dma(VOFF, SRQ, "0", pc_off(i), cfg.polq, tag=tag))
def stage_advance(n, o=True):
    return [sop("s_add_u32", "s16", "s16", str(n)), sop("s_addc_u32", "s17", "s17", "0"), sop("s_add_u32", sQM, sQM, str(n))] + ([sop("s_add_u32", sGOF, sGOF, "3072")] if o else [])

def fin_order(): return [(qb, b) for qb in range(4) for b in range(0, 12, 2)]
LIF = lambda qb: SB + 4 * qb
SCROW = [0, 2, 1, 3]

def l_reduce_ops(cfg, deps):
    a, b, c, d = LSV
    s1 = Op(swap("v_permlane32_swap_b32", a, b), deps=deps[:2]); s2 = Op(swap("v_permlane32_swap_b32", c, d), deps=deps[2:])
    a1 = Op(valu("v_add_f32", a, a, b), deps=[s1]); a2 = Op(valu("v_add_f32", c, c, d), deps=[s2])
    s3 = Op(swap("v_permlane16_swap_b32", a, c), deps=[a1, a2]); a3 = Op(valu("v_add_f32", a, a, c), deps=[s3])
    r = Op(I(f"v_rcp_f32 {b}, {a}", "E", [a], [b]), deps=[a3])
    return [s1, s2, a1, a2, s3, a3, r], r

def iteration(cfg, kind):
    par = {"A": 0, "Z": 0, "O": 1, "E": 0, "X": 0, "Y": 1}[kind]
    mf = qk_mfmas() + pv_mfmas(kind in "AZ")
    mem = {}; sal = {}; sq = []
    def M(g, i):
        l = mem.setdefault(g, [])
        l.insert(len([x for x in l if x.kind != "W"]), i) if i.kind == "D" else l.append(i)
    def busy(g): return g in mem and any(x.kind != "W" for x in mem[g])
    def S(g, i): sal.setdefault(g, []).append(i)
    def Q(lo, hi, lst): sq.extend((lo, hi, x) for x in lst)
    ops = sm_ops()[1] + sm_ops({"Y": "Y"}.get(kind))[0]
    sp = cfg.vsp
    nq = {"A": 6, "Z": 3, "E": 3, "Y": 3}.get(kind, 0)
    S(0, salu("s_barrier"))
    for j, (m0, d) in enumerate(kv_dma(cfg, "K", (par + 1) & 1)):
        S(2 + sp * j, m0); M(3 + sp * j, d)
    if kind in "EZX":
        for i in range(3): M(21 + 12 * i, o_store(cfg, i))
    if kind == "A" and cfg.vtouch:
        M(21, I(f"buffer_load_dword v252, v254, s[20:23], 0 offen", "G", ["v254", "s[20:23]"], [], tag="PF"))
        Q(22, 46, [sop("s_mov_b32", "s22", "0")])
    if kind == "O" and cfg.pf:
        M(21, I(f"buffer_load_dword v252, v253, s[84:87], 0 offen{cfg.polpf}", "G", ["v253", "s[84:87]"], [], tag="PF"))
    if kind == "Z":
        wr = [fin_pair(qb, b, LIF(qb))[1] for qb, b in fin_order()][cfg.nfw:]
        cand = list(range(1, cfg.zwend, 3))
        wg = [cand[int(k * len(cand) / len(wr))] for k in range(len(wr))]
        for g, w in zip(wg, wr): M(g, w)
        assert cfg.nfw >= 8
        for k, d in enumerate(drain_reads(3)): M([6, 6, 7, 7, 12, 12][k], d)
        w = waitcnt(lgkm=0); w.needlg = mem[12][-1]; S(20, w)
        ops.append(Op(valu("v_add_u32", VDR, "3072", VDR), lo=13))
    spread(v_reads(par), [g for g in range(1, cfg.rdend + (5 if kind == "Z" else 0)) if g % 3 != 2 and not busy(g)], M)
    w = waitcnt(vm=0, lgkm=0); w.need = ("K", 2)
    if kind == "Z": w.lgkm = sum(1 for g in range(cfg.rdend + 5, 48) for x in mem.get(g, []) if x.kind == "W")
    S(47, w)
    if kind == "Y": Q(1, 40, newitem_a())
    Q(4 + 2 * sp, 46, kv_advance("K"))
    if kind == "O" and cfg.pf: ops.append(Op(valu("v_add_u32", "v253", "4096", "v253"), lo=22))
    if kind == "X" and cfg.pf: Q(4, 46, [sop("s_mov_b32", "s86", "0")])
    S(48, salu("s_barrier"))
    for j, (m0, d) in enumerate(kv_dma(cfg, "V", par)):
        S(50 + sp * j, m0); M(51 + sp * j, d)
    if kind == "Y": Q(41, 67, newitem_b())
    if kind == "X": Q(49, 70, window_srd(20, sOP, sITEM) + [sop("s_mov_b32", "s22", WIN)])
    qg = [69, 75, 81] if nq == 3 else [66, 69, 75, 78, 84, 87]
    adv = kv_advance("V")
    if nq == 6: Q(64, 64, adv[:2])
    for i in range(nq):
        m0, d = q_dma(cfg, i)
        Q(qg[i] - 1, qg[i] - 1, [m0]); M(qg[i], d)
        if nq == 3 and i == 0: Q(70, 73, adv[:2])
        if nq == 3 and i == 1: Q(76, 79, adv[2:])
    if nq == 6: Q(88, 94, adv[2:])
    if nq == 0: Q(52 + 2 * sp, 90, adv)
    if nq: Q(qg[-1] + 1, 94, stage_advance(nq * 1024, kind != "Y"))
    if kind == "Y" and cfg.kvpf: Q(83, 94, kvpf_setup(cfg))
    rd = k_reads(par) + (q_reads() if kind == "X" else []) + (drain_reads() if kind == "O" else [])
    free = [g for g in range(49, 48 + cfg.rdend) if g % 3 != 2 and not busy(g)]
    if len(rd) <= 12 and kind != "Z": free = [g for g in free if g % 3 == 1]
    elif len(rd) < len(free): free = [free[int(k * len(free) / len(rd))] for k in range(len(rd))]
    spread(rd, free, M)
    if kind == "O": ops.append(Op(valu("v_add_u32", VDR, "3072", VDR), lo=48 + cfg.rdend))
    if kind == "Y":
        ops.append(Op(valu("v_mov_b32", VDR, VDR0)))
        svs = [next(o for o in ops if o.ins.wr == [LSV[q]]) for q in range(4)]
        lr, last = l_reduce_ops(cfg, svs)
        last.hi = 82; ops += lr
        M(85, ds_write("ds_write_b32", SCW, LSV[1], 0))
        for o in ops:
            if getattr(o, "qb", 9) < 2 and o.fixed is None: o.hi = min(o.hi, 86)
        for q in range(4): M([87, 87, 88, 88][q], ds_read("ds_read_b128", R("v", LIF(q), 4), SCR, SCROW[q] * 64))
    w = waitcnt(vm=0, lgkm=0); w.need = ("V", 2)
    S(95, w)
    if kind == "O": Q(80, 94, [sop("s_sub_u32", sCNT, sCNT, "1"), salu(f"s_cmp_eq_u32 {sCNT}, 0", [sCNT], ["scc"])])
    out, over = schedule(mf, mem, sal, ops, sq)
    for k, i in enumerate(out):
        if hasattr(i, "needlg"):
            n = sum(1 for x in out[out.index(i.needlg) + 1:k] if x.kind in "DW")
            i.lgkm = n; i.text = f"s_waitcnt lgkmcnt({n})"
    for i in out:
        if "bar" in cfg.kill and i.text == "s_barrier": i.text = "s_nop 0"
        if "dma" in cfg.kill and i.kind == "G": i.text = "s_nop 0"
        if "ds" in cfg.kill and i.kind == "D": i.text = "s_nop 0"
    print(f"iteration {kind}: {len(out)} instrs, overflow slots {over}", file=sys.stderr)
    return out

def linear(ops):
    ops = list(ops); ids = set(id(o) for o in ops); done = {}; out = []
    while ops:
        def rdy(o, slack):
            return all(id(d) not in ids or (id(d) in done and len(out) - done[id(d)] > slack) for d in o.deps + o.samegap)
        o = next((o for o in ops if rdy(o, 2)), None) or next((o for o in ops if rdy(o, 1)), None) or next(o for o in ops if rdy(o, 0))
        ops.remove(o); done[id(o)] = len(out); out.append(o.ins)
    return out

def weave(mf, fill, per=2):
    out = []; fill = list(fill)
    for m in mf:
        out.append(m)
        if m.kind != "M": continue
        room = per
        while fill and room >= (2 if fill[0].kind == "E" else 1):
            f = fill.pop(0); out.append(f); room -= 2 if f.kind == "E" else 1
    return out, fill

def vw(tag, n=1, lgkm=None):
    w = waitcnt(vm=0, lgkm=lgkm); w.need = (tag, n); return w

def q0_dma(cfg, rg):
    o = []
    for cb in range(3):
        o += [sop("s_add_u32", "m0", sSTG, str(rg * 3072 + cb * 896)), nop(0), dma(VOFF, SRQ, "0", cb * 128, cfg.polq, tag=f"Q{rg}")]
    return o + [sop("s_add_u32", "s16", "s16", "3072"), sop("s_addc_u32", "s17", "s17", "0")]

def prologue(cfg):
    H = sm_ops("P")[0]
    per = [[o for o in H if o.qb == qb] for qb in range(4)]
    qr = q_reads(); mf = qk_mfmas()
    def kv(which, slot, tag=None):
        o = []
        for m0, d in kv_dma(cfg, which, slot, tag): o += [m0, nop(0), d]
        return o + kv_advance(which, wrap=False)
    o = [vw("K0", lgkm=0), salu("s_barrier")] + k_reads(0)
    if cfg.vtouch:
        o += [valu("v_min_u32", "v254", "2", T[0]), valu("v_mul_u32_u24", "v254", "3145728", "v254")] + window_srd(20, sOP, sXB) + [sop("s_mov_b32", "s22", "0" if cfg.nomem else "6316032")]
    if cfg.pf:
        o += [valu("v_lshlrev_b32", "v254", "7", T[0]), valu("v_lshlrev_b32", "v253", "7", T[0]), valu("v_mov_b32", "v252", "0x40000000"), I(f"v_cmp_gt_u32 vcc, {cfg.pf}, {T[0]}", "V", [T[0]], ["vcc"]), nop(1),
              I("v_cndmask_b32 v253, v252, v253, vcc", "V", ["v252", "v253", "vcc"], ["v253"])]
    for qb in range(4):
        o += [vw(f"Q{2*qb+1}")] + qr[6 * qb:6 * qb + 6]
        for s in range(6):
            o += [waitcnt(lgkm=5 - s), mf[12 * qb + s]]
        o += mf[12 * qb + 6:12 * qb + 12]
        if qb == 0: o += [label("L_skipq6")] if False else []
        if qb == 0: o += late_q(cfg)
        if qb == 1: o += kv("K", 1, "K1") + kv("V", 0, "V0")
        if qb == 2: o += [salu("s_barrier")] + kv("K", 0) + kv("V", 1) + newitem_a(first=True) + newitem_b()
        if qb == 3: o += [vw("K1"), salu("s_barrier")] + k_reads(1)
        o += linear(per[qb])
    o += [vw("V0", lgkm=0)]
    return o

def late_q(cfg):
    o = []
    for rg in range(cfg.q_early, 8): o += q0_dma(cfg, rg)
    return o

def pkmul(n, l):
    r2 = R("v", n, 2); l2 = R("v", l, 2)
    return I(f"v_pk_mul_f32 {r2}, {r2}, {l2}", "V", [r2, l2], [r2])

def fin_pair(qb, b, li):
    x = int(regs(Oreg(qb, b))[0][1:]); o = []
    if b + 1 < 11: y = x + 4
    else:
        y = x - 4
        o += [I(f"v_accvgpr_read_b32 v{y+i}, {r}", "V", [r], [f"v{y+i}"]) for i, r in enumerate(regs(Oreg(qb, 11)))]
    o += [pkmul(x, li), pkmul(x + 2, li + 2), pkmul(y, li), pkmul(y + 2, li + 2)]
    o += [valu("v_cvt_pk_bf16_f32", f"v{x+k}", f"v{src}", f"v{src+1}") for k, src in enumerate((x, x + 2, y, y + 2))]
    return o, ds_write("ds_write_b128", OW, R("v", x, 4), qb * 6144 + (b >> 1) * 512)

def flag_check(cfg, v):
    return [sop("s_mov_b32", sT[4], f2h(cfg.thresh)), I(f"v_cmp_nge_f32 vcc, {sT[4]}, {v}", "V", [sT[4], v], ["vcc"]),
            salu("s_cmp_lg_u64 vcc, 0", ["vcc"], ["scc"]), sop("s_cselect_b32", sT[4], "1", "0"), sop("s_lshl_b32", sT[4], sT[4], sNN), sop("s_or_b32", sFLAG, sFLAG, sT[4])]

def finalize(cfg):
    a, b, c, d = LSV
    o = []
    if cfg.kvpf:
        o += [I(f"buffer_load_dword v252, v254, s[84:87], 0 offen{cfg.polpf}", "G", ["v254", "s[84:87]"], [], tag="PF")]
        if cfg.kvpf > 4:
            o += [sop("s_mov_b32", sT[5], "8192"), I(f"buffer_load_dword v252, v254, s[84:87], {sT[5]} offen{cfg.polpf}", "G", ["v254", "s[84:87]", sT[5]], [], tag="PF")]
        o += [sop("s_mov_b32", "s86", "0")]
    o += flag_check(cfg, a) + [sop("s_add_u32", sNN, sNN, "1"), I(".p2align 3", "L")]
    pend = []; done = 0
    for k, (qb, b_) in enumerate(fin_order()):
        v, w = fin_pair(qb, b_, LIF(qb))
        o += v; pend.append(w)
        while done < cfg.nfw and done < (k + 1) * cfg.nfw // 24:
            o.append(pend[done]); done += 1
    return o

def last_block(cfg):
    V2 = lambda b: R("a", 96 + 4 * b, 4)
    P2 = lambda qb: R("v", SB + 8 * qb, 4)
    mf = qk_mfmas()
    for qb in range(4):
        mf += [mfma(Oreg(qb, b), Preg(qb), Vreg(b), Oreg(qb, b)) for b in range(12)]
        mf += [mfma(Oreg(qb, b), P2(qb), V2(b), Oreg(qb, b)) for b in range(12)]
    n = len(mf)
    mem = {}; sal = {}; sq = []; post = {}
    def M(g, i):
        l = mem.setdefault(g, [])
        l.insert(len([x for x in l if x.kind != "W"]), i) if i.kind == "D" else l.append(i)
    def S(g, i): sal.setdefault(g, []).append(i)
    ops = sm_ops()[1]
    eg = list(range(2, n, 3))[32 - NEXP_H:]
    lrd = []
    for qb in range(4):
        ready = 12 * qb + 15; due = 48 + 24 * qb + 10
        adds = []; xs = []; cvs = []
        for e in range(8):
            f = Op(valu("v_fma_f32", Se(qb, e), Se(qb, e), sC, "-" + MC[qb]), lo=ready, hi=due)
            x = Op(valu("v_exp_f32", Se(qb, e), Se(qb, e), kind="E"), deps=[f], fixed=eg[8 * qb + e])
            a = Op(valu("v_add_f32", LS[qb], LS[qb], Se(qb, e)), deps=[x], samegap=adds[-1:], hi=due + 8)
            ops += [f, x, a]; adds.append(a); xs.append(x)
            if e & 1:
                jj = e >> 1
                cv = Op(valu("v_cvt_pk_bf16_f32", Se(qb, jj), Se(qb, e - 1), Se(qb, e)), deps=xs[-2:], samegap=[adds[jj]] + cvs[-1:], hi=due)
                ops.append(cv); cvs.append(cv)
        a_, b_ = LSV[qb], LS[qb]
        c = [adds[-1]]
        def ch(ins):
            o = Op(ins, deps=c[-1:], hi=48 + 24 * qb + 16); c.append(o); ops.append(o)
        ch(valu("v_mov_b32", a_, b_)); ch(swap("v_permlane32_swap_b32", a_, b_)); ch(valu("v_add_f32", a_, a_, b_))
        ch(valu("v_mov_b32", b_, a_)); ch(swap("v_permlane16_swap_b32", a_, b_)); ch(valu("v_add_f32", b_, a_, b_))
        ch(I(f"v_rcp_f32 {a_}, {b_}", "E", [b_], [a_], half=True))
        M(48 + 24 * qb + 18, ds_write("ds_write_b32", SCW, a_, 0))
        lrd.append(ds_read("ds_read_b128", R("v", SB + 8 * qb + 4, 4), SCR, 0)); M(48 + 24 * qb + 19, lrd[-1])
    S(0, salu("s_barrier"))
    for i in range(3): M(3 + 9 * i, o_store(cfg, i))
    spread(v_reads(0), [g for g in range(1, cfg.rdend) if g % 3 != 2 and g not in mem], M)
    sq += [(22, 43, x) for x in window_srd(20, sOP, sITEM) + [sop("s_mov_b32", "s22", WIN)]]
    ops.append(Op(valu("v_mov_b32", VDR, VDR0), hi=60))
    S(44, waitcnt(vm=3, lgkm=0)); S(45, salu("s_barrier"))
    v2 = [ds_read("ds_read_b64_tr_b16", R("a", 96 + 4 * b + 2 * x, 2), VA[b & 3], VSLOT[1] + x * 6144 + (b >> 2) * 1024) for b in range(12) for x in range(2)]
    v2g = [46, 48, 49, 51, 52, 54, 55, 57, 58, 60, 61, 63]
    for b in range(12): M(v2g[b], v2[2 * b]); M(v2g[b], v2[2 * b + 1])
    for g, b in ((59, 2), (62, 5), (65, 8), (68, 11)):
        w = waitcnt(lgkm=0); w.needlg = v2[2 * b + 1]; S(g, w)
    buf = [R("a", 4 * i, 4) for i in range(24)]
    def st(i): return gstore(buf[i], VOFO, SRO, sGOF, (i % 6 // 3) * 3072 + (i % 3) * 128, cfg.polo, tag="O")
    tailseq = []
    for qb in range(4):
        end = 48 + 24 * qb + 23
        grp = [fin_pair(qb, b, SB + 8 * qb + 4) for b in range(0, 12, 2)]
        rds = [piece_reads(4 * i, i * 1024) for i in range(6 * qb, 6 * qb + 6)]
        w = waitcnt(lgkm=0); w.needlg = lrd[qb]
        blk = flag_check(cfg, LS[qb]) + [w, I(".p2align 3", "L")]
        rest = list(tailseq) if qb == 3 else []
        if qb == 3: blk = [nop(2)] + blk
        order = [0, 3, 1, 4, 2, 5]
        for k, g in enumerate(grp):
            blk += g[0] + [g[1]]
            if rest: blk.append(rest.pop(0))
            if k & 1: blk += rds[k >> 1] + rds[3 + (k >> 1)]
        blk += rest
        seq = []
        for k, i in enumerate(order):
            w = waitcnt(lgkm=0); w.needlg = rds[i][1]
            seq.append(([w] if k % 2 == 0 else []) + ([sop("s_mov_b32", sGOF, str(qb * 6144))] if k == 0 else []) + [st(6 * qb + i)])
            if k % 2 == 0: w.needlg = rds[order[k + 1]][1]
        if qb < 3:
            g0 = end + cfg.lfin
            blk += seq[0] + seq[1]
            post[g0] = blk
            for k in range(2, 6):
                g = g0 + 1 + cfg.lsp * (k - 1)
                while g % 3 == 2 or g in mem: g += 1
                for ins in seq[k]:
                    if ins.kind == "S": S(g - 1, ins)
                    else: M(g, ins)
        else:
            for x in seq: blk += x
            post[end] = blk
    out, over = schedule(mf, mem, sal, ops, sq, post)
    for k, i in enumerate(out):
        if hasattr(i, "needlg"):
            c = sum(1 for x in out[out.index(i.needlg) + 1:k] if x.kind in "DW")
            i.lgkm = c; i.text = f"s_waitcnt lgkmcnt({c})"
    print(f"last block: {len(out)} instrs, overflow slots {over}", file=sys.stderr)
    return out

def fixnops(seq, name):
    import re
    for _ in range(400):
        p = [x for x in check(seq, name) if "dist" in x]
        if not p: return seq
        for k in range(1, len(seq) + 1):
            q = [x for x in check(seq[:k], name) if "dist" in x]
            if q:
                m = re.search(r"dist (\d+)(?: < (\d+))?", q[0])
                need = int(m.group(2) or 8) - int(m.group(1))
                seq = seq[:k - 1] + [nop(need - 1)] + seq[k - 1:]
                break
    raise RuntimeError("fixnops")

def window_srd(srd_lo, ptr, item):
    return [sop("s_mul_i32", sT[1], item, "98304"), sop("s_mul_i32", sT[2], sWAVE, "24576"), sop("s_add_u32", sT[1], sT[1], sT[2]),
            sop("s_add_u32", f"s{srd_lo}", f"s{ptr}", sT[1]), sop("s_addc_u32", f"s{srd_lo+1}", f"s{ptr+1}", "0")]

def head_base(dst, item):
    return [sop("s_mul_hi_u32", dst, item, "0x55555556"), sop("s_mul_i32", dst, dst, "196608"), sop("s_add_u32", dst, dst, sRB)]

def newitem_a(first=False):
    o = [] if first else [sop("s_sub_u32", sLEFT, sLEFT, "1"), sop("s_add_u32", sITEM, sITEM, "32")]
    o += head_base(sT[0], sITEM) + [sop("s_add_u32", sT[0], sT[0], "196608"), sop("s_add_u32", sKEND, f"s{sKP}", sT[0]), sop("s_add_u32", sVEND, f"s{sVP}", sT[0])]
    o += [sop("s_add_u32", sT[3], sITEM, "32"), sop("s_min_u32", sT[3], sT[3], "767")]
    o += head_base(sT[0], sT[3])
    o += [sop("s_add_u32", f"s{sKNX}", f"s{sKP}", sT[0]), sop("s_addc_u32", f"s{sKNX+1}", f"s{sKP+1}", "0")]
    return o
def kvpf_setup(cfg):
    n = cfg.kvpf * 2048
    a_, b_ = sT[5], sT[6]
    return [sop("s_mul_hi_u32", a_, sITEM, "0x55555556"), sop("s_mul_i32", b_, a_, "3"), sop("s_sub_u32", b_, sITEM, b_), sop("s_mul_i32", b_, b_, str(2 * n)),
            sop("s_mul_i32", a_, a_, "196608"), sop("s_add_u32", a_, a_, b_), sop("s_and_b32", b_, sWAVE, "1"), sop("s_mul_i32", b_, b_, str(n)), sop("s_add_u32", a_, a_, b_),
            sop("s_add_u32", a_, a_, str((16 - cfg.kvpf) * 12288)),
            salu(f"s_cmp_lt_u32 {sWAVE}, 2", [sWAVE], ["scc"]), sop("s_cselect_b64", "s[84:85]", R("s", sKP, 2), R("s", sVP, 2)),
            sop("s_add_u32", "s84", "s84", a_), sop("s_addc_u32", "s85", "s85", "0")] + (
           [salu(f"s_cmp_eq_u32 {sLEFT}, 1", [sLEFT], ["scc"]), sop("s_cselect_b32", "s86", str(n), "0")] if cfg.kvpf_last else [sop("s_mov_b32", "s86", "0" if cfg.nomem else str(n))])

def newitem_b():
    o = [sop("s_add_u32", f"s{sVNX}", f"s{sVP}", sT[0]), sop("s_addc_u32", f"s{sVNX+1}", f"s{sVP+1}", "0")]
    o += window_srd(16, sQP, sT[3])
    o += [salu(f"s_cmp_gt_u32 {sLEFT}, 1", [sLEFT], ["scc"]), sop("s_cselect_b32", sNR, KVWIN, "0"), sop("s_cselect_b32", "s18", QWIN, "0"),
          sop("s_mov_b32", sGOF, "0"), sop("s_mov_b32", sQM, sSTG), sop("s_mov_b32", sCNT, "7")]
    return o

def setup(cfg):
    o = []
    x = lambda t: o.append(salu(t))
    x("s_cmp_ge_u32 s2, 256"); x("s_cbranch_scc1 L_end")
    x(f"s_load_dwordx4 s[4:7], s[0:1], 0"); x(f"s_load_dwordx2 s[{sVP}:{sVP+1}], s[0:1], 16"); x(f"s_load_dwordx2 s[{sOP}:{sOP+1}], s[0:1], 24")
    if cfg.stamps: x("s_memtime s[60:61]"); x("s_memrealtime s[62:63]")
    if cfg.stamps: x(f"s_load_dwordx2 s[56:57], s[0:1], {32 if cfg.stamps == 2 else 40}")
    L, N, G, A, B_ = T
    o += [valu("v_lshrrev_b32", A, "6", "v0"), valu("v_and_b32", L, "63", "v0"), I(f"v_readfirstlane_b32 {sWAVE}, {A}", "V", [A], [sWAVE])]
    o += [valu("v_lshrrev_b32", A, "3", L), valu("v_and_b32", B_, "7", L), valu("v_xor_b32", B_, B_, A), valu("v_mul_u32_u24", A, "384", A), valu("v_lshl_add_u32", VOFF, B_, "4", A)]
    o += [sop("s_mul_i32", sRB, sWAVE, "3072"), sop("s_mul_i32", sSTG, sWAVE, str(STGW)), sop("s_add_u32", sSTG, sSTG, str(STG)), sop("s_mov_b32", sC, f2h(CSCALE))]
    o += [sop("s_and_b32", sT[0], "s2", "7"), sop("s_mul_i32", sT[0], sT[0], "96"), sop("s_lshr_b32", sT[1], "s2", "3"), sop("s_add_u32", sXB, sT[0], sT[1])]
    for lo in (8, 12): x(f"s_mov_b32 s{lo+3}, 0x20000")
    for which, tab in (("K", KSLOT), ("V", VSLOT)):
        for slot in range(2):
            for cb in range(3): o.append(sop("s_add_u32", m0reg(which, slot, cb), sRB, str(tab[slot] + cb * 896)))
    x("s_mov_b32 s19, 0x20000"); x("s_mov_b32 s23, 0x20000")
    if cfg.stamps: x(f"s_mov_b32 s58, {256 if cfg.stamps == 2 else 301989888}"); x("s_mov_b32 s59, 0x20000")
    o += [sop("s_mov_b32", sITEM, sXB), sop("s_mov_b32", sLEFT, "3"), sop("s_mov_b32", sNN, "0"), sop("s_mov_b32", sFLAG, "0"), sop("s_mov_b32", sMODE, "0"), sop("s_mov_b32", sTODO, "0")]
    x("s_waitcnt lgkmcnt(0)")
    x(f"s_mov_b32 s{sQP}, s4"); x(f"s_mov_b32 s{sQP+1}, s5")
    return o

def addr_setup():
    L, N, G, A, B_ = T
    o = [valu("v_and_b32", N, "15", L), valu("v_lshrrev_b32", G, "4", L)]
    o += [valu("v_lshrrev_b32", A, "3", N), valu("v_mul_u32_u24", "v0", "3072", A), valu("v_and_b32", "v1", "7", N), valu("v_lshl_add_u32", "v0", "v1", "7", "v0")]
    for e in range(2):
        o += [valu("v_add_u32", A, str(4 * e), G), valu("v_xor_b32", A, A, "v1"), valu("v_lshl_add_u32", KA[e], A, "4", "v0"), valu("v_add_u32", QA[e], sSTG, KA[e])]
    o += [valu("v_lshrrev_b32", "v2", "5", L), valu("v_mul_u32_u24", "v3", "3072", "v2"), valu("v_and_b32", A, "31", L), valu("v_lshl_add_u32", "v3", A, "4", "v3"),
          valu("v_add_u32", "v3", sSTG, "v3"), valu("v_add_u32", OW, "3072", "v3")]
    o += [valu("v_and_b32", A, "3", L), valu("v_lshl_add_u32", A, "v2", "2", A), valu("v_mul_u32_u24", A, "384", A), valu("v_bfe_u32", B_, L, "2", "3"), valu("v_lshl_add_u32", VOFO, B_, "4", A)]
    o += [valu("v_lshlrev_b32", "v3", "8", "v2"), valu("v_and_b32", A, "1", G), valu("v_lshl_add_u32", "v3", A, "9", "v3"), valu("v_and_b32", A, "1", L), valu("v_lshl_add_u32", "v3", A, "7", "v3"),
          valu("v_bfe_u32", A, L, "2", "2"), valu("v_lshl_add_u32", "v3", A, "4", "v3"), valu("v_bfe_u32", A, L, "1", "1"), valu("v_lshl_add_u32", "v3", A, "3", "v3"),
          valu("v_add_u32", "v3", sSTG, "v3"), valu("v_add_u32", VDR0, "3072", "v3")]
    o += [valu("v_mov_b32", A, sWAVE), valu("v_lshlrev_b32", A, "8", A), valu("v_add_u32", A, str(FLAGS_LDS + 256), A), valu("v_lshl_add_u32", SCW, L, "2", A), valu("v_lshl_add_u32", SCR, G, "4", A)]
    o += [valu("v_lshrrev_b32", B_, "2", L), valu("v_lshrrev_b32", A, "3", B_), valu("v_mul_u32_u24", "v0", "3072", A), valu("v_and_b32", "v1", "7", B_),
          valu("v_lshl_add_u32", "v0", "v1", "7", "v0"), valu("v_and_b32", A, "1", L), valu("v_lshl_add_u32", "v0", A, "3", "v0"), valu("v_bfe_u32", "v2", L, "1", "1")]
    for j in range(4):
        o += [valu("v_add_u32", A, str(2 * j), "v2"), valu("v_xor_b32", A, A, "v1"), valu("v_lshl_add_u32", VA[j], A, "4", "v0")]
    for qb in range(4): o += [valu("v_mov_b32", MC[qb], "0xff800000"), valu("v_mov_b32", LS[qb], "0")]
    return o

def touch_pages(cfg):
    o = []
    def ld(ptr, off): o.append(salu(f"s_load_dword s4, s[{ptr}:{ptr+1}], {off}"))
    o += [sop("s_min_u32", sT[1], sWAVE, "2"), sop("s_lshl_b32", sT[1], sT[1], "5"), sop("s_add_u32", sT[1], sT[1], sXB), sop("s_mul_i32", sT[2], sT[1], "98304")]
    ld(sOP, sT[2])
    if cfg.touch > 1: ld(sQP, sT[2])
    o += [sop("s_add_u32", sT[3], sT[2], "98300")]
    ld(sOP, sT[3])
    if cfg.touch > 1:
        ld(sQP, sT[3])
        o += [sop("s_mul_hi_u32", sT[4], sT[1], "0x55555556"), sop("s_mul_i32", sT[4], sT[4], "196608")]
        ld(sKP, sT[4]); ld(sVP, sT[4])
        o += [sop("s_add_u32", sT[5], sT[4], "196604")]
        ld(sKP, sT[5]); ld(sVP, sT[5])
    return o

def start_run(cfg):
    o = head_base(sT[0], sITEM)
    o += [sop("s_add_u32", "s8", f"s{sKP}", sT[0]), sop("s_addc_u32", "s9", f"s{sKP+1}", "0"), sop("s_mov_b32", "s10", KVWIN)]
    for m0, d in kv_dma(cfg, "K", 0, "K0"): o += [m0, nop(0), d]
    o += window_srd(16, sQP, sITEM) + [sop("s_mov_b32", "s18", QWIN)]
    for rg in range(cfg.q_early): o += q0_dma(cfg, rg)
    fill = addr_setup(); mixed = []
    for x in o:
        if x.text == "s_nop 0" and fill:
            mixed += fill[:4]; del fill[:4]
        else: mixed.append(x)
    o = mixed + fill
    if cfg.touch: o += touch_pages(cfg)
    o += kv_advance("K", wrap=False)
    o += [sop("s_add_u32", "s12", f"s{sVP}", sT[0]), sop("s_addc_u32", "s13", f"s{sVP+1}", "0"), sop("s_mov_b32", "s14", KVWIN)]
    o += [sop("s_mov_b32", "s20", f"s{sOP}"), sop("s_mov_b32", "s21", f"s{sOP+1}"), sop("s_mov_b32", "s22", "0"), valu("v_add_u32", VDR, "3072", VDR0)]
    if cfg.pf:
        o += [sop("s_add_u32", sT[4], sXB, "64")] + window_srd(84, sQP, sT[4])
        o += [salu(f"s_cmp_eq_u32 {sLEFT}, 3", [sLEFT], ["scc"]), sop("s_cselect_b32", "s86", "0" if cfg.nomem else str(cfg.pfbytes), "0"), sop("s_mov_b32", "s87", "0x20000")]
    if cfg.exp == "early_o":
        o += [sop("s_add_u32", sT[4], sITEM, "64")] + window_srd(20, sOP, sT[4]) + [sop("s_mov_b32", "s22", WIN)]
    return o

def max_pass(cfg):
    L, N, G, A, B_ = T
    o = [valu("v_and_b32", N, "15", L), valu("v_lshrrev_b32", G, "4", L), valu("v_mul_u32_u24", A, "384", N), valu("v_lshl_add_u32", A, G, "4", A)]
    o += window_srd(20, sQP, sITEM) + [sop("s_mov_b32", "s22", WIN)]
    for qb in range(4):
        o.append(sop("s_mov_b32", sT[5], str(qb * 6144)))
        for s in range(6): o.append(gload(Qreg(qb, s), A, SRO, sT[5], s * 64))
    o += [sop("s_mul_hi_u32", sT[5], sITEM, "0x55555556"), sop("s_mul_i32", sT[5], sT[5], "196608"), sop("s_mov_b32", sT[6], "16")]
    o += [sop("s_mov_b32", "s20", f"s{sKP}"), sop("s_mov_b32", "s21", f"s{sKP+1}"), sop("s_mov_b32", "s22", "0" if cfg.nomem else "50331648")]
    o += [label("L_maxloop")]
    body = []
    for kb in range(2):
        if kb: body.append(sop("s_add_u32", sT[5], sT[5], "6144"))
        for s in range(6): body.append(gload(Kreg(kb, s), A, SRO, sT[5], s * 64))
    body += [sop("s_add_u32", sT[5], sT[5], "6144"), waitcnt(vm=0)]
    body += qk_mfmas() + [nop(7)]
    for qb in range(4):
        for e in range(0, 8, 2): body.append(valu("v_max3_f32", MC[qb], MC[qb], Se(qb, e), Se(qb, e + 1)))
    body += [sop("s_sub_u32", sT[6], sT[6], "1"), salu(f"s_cmp_lg_u32 {sT[6]}, 0"), salu("s_cbranch_scc1 L_maxloop")]
    return o + body + [sop("s_mov_b32", "s20", f"s{sOP}"), sop("s_mov_b32", "s21", f"s{sOP+1}"), sop("s_mov_b32", "s22", "0")]

def stamp(idx):
    return [salu(f"s_memtime s[{64+2*idx}:{65+2*idx}]")]

def build(cfg):
    global WIN, KVWIN, QWIN
    WIN = "0" if cfg.nomem else "24576"
    KVWIN = "0" if cfg.nomem else "3072"
    QWIN = "0" if cfg.nomem else "6144"
    blk = {}
    for k in "AZOEXY": blk[k] = fixnops(iteration(cfg, k), k)
    blk["setup"] = fixnops(setup(cfg), "setup")
    blk["start"] = fixnops(start_run(cfg), "start")
    blk["max"] = max_pass(cfg)
    blk["P"] = fixnops(prologue(cfg), "P")
    blk["F"] = fixnops(finalize(cfg), "F")
    blk["T"] = fixnops(last_block(cfg), "T")
    br = lambda t: [salu(t)]
    def item(z="Z"): return blk[z] + (br("b") if z == "A" else []) + (blk["O"] + br("b") + blk["E"] + br("b")) * 6 + blk["O"] + br("b") + br("b") + br("b")
    mid = blk["X"] + blk["Y"] + blk["F"]
    tr1 = blk["setup"] + blk["start"] + br("b") + br("b") + blk["P"] + item("A") + mid + item() + mid + item() + blk["T"]
    tr2 = blk["setup"] + blk["start"] + br("b") + br("b") + blk["max"] + blk["P"] + item("A") + blk["T"]
    best = {}
    for tr in (tr1, tr2):
        vm = []
        for ins in tr:
            if ins.kind == "G": vm.append(ins.tag)
            if getattr(ins, "need", None):
                tag, nb = ins.need
                seen = 0; cnt = None
                for j in range(len(vm) - 1, -1, -1):
                    if vm[j] == tag:
                        if seen == 3 * (nb - 1): cnt = len(vm) - 1 - j; break
                        seen += 1
                assert cnt is not None
                best[id(ins)] = (min(cnt, best.get(id(ins), (99,))[0]), ins)
    for cnt, ins in best.values():
        ins.vm = cnt; ins.text = f"s_waitcnt vmcnt({cnt})" + (f" lgkmcnt({ins.lgkm})" if ins.lgkm is not None else "")
    for tr, n in ((tr1, "tr1"), (tr2, "tr2")):
        p = check(tr, n)
        for x in sorted(set(p)): print("HAZARD", x, file=sys.stderr)
        assert not p
    out = []
    a = out.append
    def emit(seq):
        if cfg.trace and any(seq is blk[k] for k in "AZOEXYT"):
            a("    s_mov_b32 m0, s45"); a("    s_nop 0"); a("    v_writelane_b32 v255, s4, m0"); a("    s_add_u32 s45, s45, 1"); a("    s_nop 0"); a("    s_memtime s[4:5]")
        for i in seq: a(("" if i.kind == "L" else "    ") + i.text)
    a("; @launch grid=(256,1,1) block=(256,1,1) lds=163840")
    a('.amdgcn_target "amdgcn-amd-amdhsa--gfx950"'); a(".text"); a(f".globl {NAME}"); a(".p2align 8"); a(f".type {NAME},@function"); a(f"{NAME}:")
    emit(blk["setup"])
    a("L_run:")
    emit(blk["start"])
    a(f"    s_cmp_eq_u32 {sMODE}, 0"); a("    s_cbranch_scc1 L_k0")
    emit(blk["max"])
    a("L_k0:")
    if cfg.trace: a("    s_mov_b32 s45, 0"); a("    s_mov_b32 s4, s60")
    if cfg.stamps: emit(stamp(2))
    emit(blk["P"])
    if cfg.stamps: emit(stamp(8))
    a(".p2align 3")
    emit(blk["A"])
    a("    s_branch L_O")
    a(".p2align 7")
    if cfg.pad: a(f".fill {cfg.pad // 4}, 4, 0xbf800000")
    a("L_X:")
    a(f"    s_cmp_eq_u32 {sLEFT}, 1"); a("    s_cbranch_scc1 L_T")
    emit(blk["X"])
    a(".p2align 3")
    if cfg.stamps: a("    s_mov_b64 s[72:73], s[74:75]"); a("    s_nop 0"); emit(stamp(5))
    emit(blk["Y"])
    emit(blk["F"])
    a(".p2align 3"); a("L_Z:")
    if cfg.stamps: emit(stamp(7))
    emit(blk["Z"])
    a(".p2align 3"); a("L_O:")
    emit(blk["O"])
    a("    s_cbranch_scc1 L_X")
    a(".p2align 3")
    emit(blk["E"])
    a("    s_branch L_O")
    a(".p2align 6"); a("L_T:")
    if cfg.stamps: emit(stamp(9))
    emit(blk["T"])
    if cfg.stamps: emit(stamp(3))
    a(f"    s_cmp_lg_u32 {sMODE}, 0"); a("    s_cbranch_scc1 L_todo")
    a(f"    v_mov_b32 v0, {sFLAG}"); a(f"    s_lshl_b32 {sT[0]}, {sWAVE}, 2"); a(f"    s_add_u32 {sT[0]}, {sT[0]}, {FLAGS_LDS}"); a(f"    v_mov_b32 v1, {sT[0]}")
    a("    ds_write_b32 v1, v0"); a("    s_waitcnt lgkmcnt(0)"); a("    s_barrier")
    a(f"    v_mov_b32 v1, {FLAGS_LDS}"); a("    ds_read_b128 v[4:7], v1"); a("    s_waitcnt lgkmcnt(0)")
    a("    v_or_b32 v4, v4, v5"); a("    v_or3_b32 v4, v4, v6, v7"); a("    s_nop 1"); a(f"    v_readfirstlane_b32 {sTODO}, v4"); a(f"    s_mov_b32 {sMODE}, 1"); a("    s_nop 3")
    a("L_todo:")
    a(f"    s_and_b32 {sTODO}, {sTODO}, 7")
    a(f"    s_cbranch_scc0 L_fin")
    a(f"    s_ff1_i32_b32 {sNN}, {sTODO}"); a(f"    s_bitset0_b32 {sTODO}, {sNN}")
    a(f"    s_lshl_b32 {sITEM}, {sNN}, 5"); a(f"    s_add_u32 {sITEM}, {sITEM}, {sXB}"); a(f"    s_mov_b32 {sLEFT}, 1")
    a("    s_waitcnt vmcnt(0) lgkmcnt(0)"); a("    s_barrier"); a("    s_branch L_run")
    a("L_fin:")
    if cfg.stamps:
        a("    s_waitcnt vmcnt(0)")
        a("    s_memtime s[64:65]"); a("    s_memrealtime s[66:67]"); a("    s_waitcnt lgkmcnt(0)")
        a(f"    s_cmp_lg_u32 {sWAVE}, 0"); a("    s_cbranch_scc1 L_end")
        if cfg.stamps == 2:
            a("    s_not_b32 s76, s62"); a("    s_sub_u32 s77, s64, s60"); a("    s_sub_u32 s78, s68, s60"); a("    s_sub_u32 s79, s70, s60"); a("    s_sub_u32 s80, s72, s60")
            a("    s_sub_u32 s81, s66, s62"); a("    s_not_b32 s82, s66"); a("    s_not_b32 s83, s77"); a("    s_not_b32 s84, s78")
            srcs = [66, 76, 62, 82, 77, 83, 78, 84, 79, 80, 81]
            for i, s in enumerate(srcs): a(f"    v_mov_b32 v{i}, s{s}")
            a("    v_mov_b32 v16, 0"); a("    s_mov_b64 exec, 1")
            for i in range(len(srcs)): a(f"    buffer_atomic_umax v{i}, v16, s[56:59], 0 offen offset:{4*i}")
        else:
            order = [2, 8, 4, 5, 7, 9, 3, 0, 0, 0, 0, 0]
            src = [60, 61, 64, 65, 62, 63, 66, 67] + [x for k in order for x in (64 + 2 * k, 65 + 2 * k)]
            for i, s in enumerate(src): a(f"    v_mov_b32 v{i}, s{s}")
            if cfg.trace:
                a("    s_mov_b32 m0, s45"); a("    s_nop 0"); a("    v_writelane_b32 v255, s4, m0"); a("    v_lshlrev_b32 v33, 2, v251"); a("    s_lshl_b32 s41, s2, 8"); a("    s_add_u32 s41, s41, 0x100000")
                a("    buffer_store_dword v255, v33, s[56:59], s41 offen")
            a("    s_lshl_b32 s41, s2, 7"); a("    v_mov_b32 v32, 0"); a("    s_mov_b64 exec, 1")
            for i in range(8): a(f"    buffer_store_dwordx4 v[{4*i}:{4*i+3}], v32, s[56:59], s41 offen offset:{16*i}")
    a("L_end:"); a("    s_endpgm")
    a('.section .rodata,"a"'); a(".p2align 6"); a(f".amdhsa_kernel {NAME}")
    for l in ["next_free_vgpr 512", "next_free_sgpr 102", "accum_offset 256", "group_segment_fixed_size 0", "kernarg_size 48", "user_sgpr_count 2",
              "user_sgpr_kernarg_segment_ptr 1", "system_sgpr_workgroup_id_x 1"]: a("  .amdhsa_" + l)
    a(".end_amdhsa_kernel")
    return "\n".join(out) + "\n"

if __name__ == "__main__":
    kw = {}
    for x in sys.argv[2:]:
        k, v = x.split("=", 1)
        kw[k] = ((" " + v.replace("+", " ")) if v != "-" else "") if k.startswith("pol") else eval(v)
    import subprocess, tempfile, os, io, contextlib
    cfg = Cfg(**kw)
    txt = build(cfg)
    if cfg.ophase is not None:
        with tempfile.TemporaryDirectory() as d:
            open(d + "/t.s", "w").write(txt)
            subprocess.run(["clang", "-x", "assembler", "-target", "amdgcn-amd-amdhsa", "-mcpu=gfx950", "-c", d + "/t.s", "-o", d + "/t.o"], check=True)
            nm = subprocess.run(["llvm-objdump", "-t", d + "/t.o"], capture_output=True, text=True).stdout
        addr = {l.split()[-1]: int(l.split()[0], 16) for l in nm.splitlines() if ".text" in l}
        cfg.pad = (cfg.ophase - addr["L_O"]) % 128
        with contextlib.redirect_stderr(io.StringIO()): txt = build(cfg)
    open(sys.argv[1], "w").write(txt)
```

```python
import sys, struct, math, re
from asmlib import *

NAME = "standalone__gqa_softmax__near_ridge_kernel"
def f2h(x): return "0x%08x" % struct.unpack("<I", struct.pack("<f", x))[0]
CSCALE = (192 ** -0.5) * math.log2(math.e)

class Cfg:
    polkv = " nt"; polq = " nt"; polo = " sc1"
    stamps = False
    nomem = False
    kill = ""
    vsp = 6
    rdend = 38
    q_early = 6
    touch = 0
    trace = 0
    kvpf = 0
    kvpf2 = 4
    kvpf_last = 0
    kvpf_at = 'Y90'
    pad = 0
    ophase = 0
    vtouch = 0
    lfin = 3
    lsp = 3
    lrlo = 0
    p2 = 1
    pn = (11, 5, 6, 6, 5, 3)
    lorder = 'K0 A0 K1 B0 A1 B1 K2 A2 K3 B2 A3 B3'
    pf = 16
    pfn = 6
    pfA = 0
    polpf = ''
    exp = ''
    nfw = 24
    zwend = 72
    thresh = 2.0 ** 64
    def __init__(s, **kw): s.__dict__.update(kw)

def Oreg(qb, b): return R("v", (qb * 11 + b) * 4, 4) if b < 11 else R("a", 192 + 4 * qb, 4)
SB = 176; PB = 208
def Sreg(qb, kb): return R("v", SB + qb * 8 + kb * 4, 4)
def Se(qb, e): return f"v{SB + qb * 8 + e}"
def Preg(qb): return R("v", PB + 4 * qb, 4)
KA = ["v224", "v225"]; VA = ["v226", "v227", "v228", "v229"]; VOFF = "v230"; VDR = "v231"
MC = [f"v{232+i}" for i in range(4)]; LS = [f"v{236+i}" for i in range(4)]; LSV = [f"v{240+i}" for i in range(4)]
QA = ["v244", "v245"]; OW = "v246"; VOFO = "v247"; SCW = "v248"; SCR = "v249"; VDR0 = "v250"
T = [f"v{251+i}" for i in range(5)]
def Qreg(qb, s): return R("a", (qb * 6 + s) * 4, 4)
def Kreg(kb, s): return R("a", 96 + (kb * 6 + s) * 4, 4)
def Vreg(b): return R("a", 144 + 4 * b, 4)
def Vhalf(b, x): return R("a", 144 + 4 * b + 2 * x, 2)
def DRreg(i): return R("a", 208 + 4 * i, 4)
SRK, SRV, SRQ, SRO = "s[8:11]", "s[12:15]", "s[16:19]", "s[20:23]"
sWAVE, sKEND, sVEND, sNR, sGOF, sC, sCNT, sLEFT, sITEM, sRB, sSTG, sQM, sFLAG = [f"s{i}" for i in range(24, 37)]
sT = [f"s{i}" for i in range(38, 46)]
sQP, sOP = 46, 48
sXB = "s50"
sNN = "s51"
sMODE = "s52"
sTODO = "s53"
sKP, sVP = 6, 54
sKNX, sVNX = 88, 90
sM0 = 4
M0TAB = {("K", 0): 92, ("K", 1): 95, ("V", 0): 98}
def m0reg(which, slot, cb):
    if (which, slot) == ("V", 1): return ["s101", "s37", "s3"][cb]
    return f"s{M0TAB[(which, slot)] + cb}"
KSLOT = [0, 12288]; VSLOT = [24576, 36864]; STG = 49152; STGW = 27648; FLAGS_LDS = 49152 + 4 * 27648
OOR = 0x40000000

def qk_mfmas():
    out = []
    for qb in range(4):
        for kb in range(2):
            for s in range(6):
                out.append(mfma(Sreg(qb, kb), Kreg(kb, s), Qreg(qb, s), "0" if s == 0 else Sreg(qb, kb)))
    return out
def pv_mfmas(c0):
    return [mfma(Oreg(qb, b), Preg(qb), Vreg(b), "0" if c0 else Oreg(qb, b)) for qb in range(4) for b in range(12)]
def k_reads(slot):
    return [ds_read("ds_read_b128", Kreg(kb, s), KA[s & 1], KSLOT[slot] + kb * 6144 + (s >> 1) * 1024) for kb in range(2) for s in range(6)]
def q_reads():
    return [ds_read("ds_read_b128", Qreg(qb, s), QA[s & 1], qb * 6144 + (s >> 1) * 1024) for qb in range(4) for s in range(6)]
def v_reads(slot):
    return [ds_read("ds_read_b64_tr_b16", Vhalf(b, x), VA[b & 3], VSLOT[slot] + x * 6144 + (b >> 2) * 1024) for b in range(12) for x in range(2)]
def kv_dma(cfg, which, slot, tag=None):
    srd = SRK if which == "K" else SRV
    return [(sop("s_mov_b32", "m0", m0reg(which, slot, cb)), dma(VOFF, srd, "0", cb * 128, cfg.polkv, tag=tag or which)) for cb in range(3)]
def kv_advance(which, wrap=True):
    lo, end, nx = (8, sKEND, sKNX) if which == "K" else (12, sVEND, sVNX)
    o = [sop("s_add_u32", f"s{lo}", f"s{lo}", "12288"), sop("s_addc_u32", f"s{lo+1}", f"s{lo+1}", "0")]
    if wrap:
        o += [salu(f"s_cmp_eq_u32 s{lo}, {end}", [f"s{lo}", end], ["scc"]),
              sop("s_cselect_b64", R("s", lo, 2), R("s", nx, 2), R("s", lo, 2)), sop("s_cselect_b32", f"s{lo+2}", sNR, f"s{lo+2}")]
    return o

class Op:
    def __init__(s, ins, deps=(), lo=0, hi=95, fixed=None, samegap=()):
        s.ins = ins; s.deps = list(deps); s.lo = lo; s.hi = hi; s.fixed = fixed; s.gap = None; s.samegap = list(samegap)

NEXP_H = 22
def sm_ops(minit=None):
    H, Rr = [], []
    egaps = list(range(2, 96, 3))
    for qb in range(4):
        ready = 12 * qb + 11 + 4
        pre = []
        if minit:
            t, u = MC[qb], LS[qb]
            sv = Op(valu("v_mov_b32", LSV[qb], LS[qb]), lo=(0 if qb < 2 else 12 * qb))
            c = []
            def ch(ins, extra=()):
                o = Op(ins, deps=(c[-1:] if c else []) + list(extra), lo=ready); c.append(o); return o
            if minit == "P":
                ch(valu("v_max3_f32", t, t, Se(qb, 0), Se(qb, 1)))
                ch(valu("v_max3_f32", t, t, Se(qb, 2), Se(qb, 3)))
                ch(valu("v_max3_f32", t, t, Se(qb, 4), Se(qb, 5)))
                ch(valu("v_max3_f32", t, t, Se(qb, 6), Se(qb, 7)))
            else:
                ch(valu("v_max3_f32", t, Se(qb, 0), Se(qb, 1), Se(qb, 2)))
                ch(valu("v_max3_f32", t, t, Se(qb, 3), Se(qb, 4)))
                ch(valu("v_max3_f32", t, t, Se(qb, 5), Se(qb, 6)))
                ch(valu("v_max_f32", t, t, Se(qb, 7)))
            ch(valu("v_mov_b32", u, t), [sv])
            ch(swap("v_permlane32_swap_b32", t, u))
            ch(valu("v_max_f32", t, t, u))
            ch(valu("v_mov_b32", u, t))
            ch(swap("v_permlane16_swap_b32", t, u))
            ch(valu("v_max_f32", t, t, u))
            last = ch(valu("v_mul_f32", t, sC, t))
            z = Op(valu("v_mov_b32", u, "0"), deps=[c[-2]], lo=ready)
            H += [sv] + c + ([z] if qb == 3 else [])
            pre = [last, c[-2]]
        prevadd = None
        ex = []
        for e in range(8):
            n = qb * 8 + e
            inH = n < NEXP_H
            f = Op(valu("v_fma_f32", Se(qb, e), Se(qb, e), sC, "-" + MC[qb]), deps=pre[:1])
            x = Op(valu("v_exp_f32", Se(qb, e), Se(qb, e), kind="E"), deps=[f])
            fH = True
            if fH: f.lo = ready
            else: f.deps = []
            (H if fH else Rr).append(f)
            x.fixed = egaps[(32 - NEXP_H) + n] if inH else egaps[n - NEXP_H]
            if not inH and fH: x.deps = []
            (H if inH else Rr).append(x)
            aH = n < NEXP_H - 2
            a = Op(valu("v_add_f32", LS[qb], LS[qb], Se(qb, e)), deps=([x] if (aH or not inH) else []) + (pre[1:] if aH else []))
            if prevadd is not None and prevadd[1] == aH: a.samegap = [prevadd[0]]
            if not aH: a.hi = 12 * qb - 1
            ex.append((x, inH))
            if minit and qb < 3 and e == 1: a.ins = valu("v_add_f32", LS[qb], Se(qb, 0), Se(qb, 1))
            if not (minit and qb < 3 and e == 0):
                prevadd = (a, aH)
                (H if aH else Rr).append(a)
            if e & 1:
                cv = Op(valu("v_cvt_pk_bf16_f32", f"v{PB + 4*qb + (e >> 1)}", Se(qb, e - 1), Se(qb, e)),
                        deps=[y for (y, h) in ex[-2:] if h == aH])
                if aH: cv.lo = 48 + 12 * qb + 11
                else: cv.hi = 12 * qb - 1
                (H if aH else Rr).append(cv)
        for o in H + Rr:
            if not hasattr(o, "qb"): o.qb = qb
    for k, o in enumerate(H + Rr): o.seq = k
    return H, Rr

def schedule(mf, mem, sal, ops, sq=(), post={}):
    assert all(0 <= g < len(mf) for g in list(mem) + list(sal) + list(post)), (sorted(mem)[-3:], sorted(sal)[-3:])
    sq = list(sq)
    for g in range(len(mf)):
        while sq and sq[0][0] <= g and ((g not in mem and g not in sal) or sq[0][1] <= g):
            sal.setdefault(g, []).append(sq.pop(0)[2])
    assert not sq
    cons = {id(o): [] for o in ops}
    for o in ops:
        for d in o.deps: cons[id(d)].append((o, 1))
        for d in o.samegap: cons[id(d)].append((o, 0))
    def dl(o, memo={}):
        if id(o) in memo: return memo[id(o)]
        v = o.fixed if o.fixed is not None else o.hi
        if o.fixed is None:
            for c, k in cons[id(o)]:
                v = min(v, dl(c, memo) - k - (1 if getattr(c.ins, "perm", False) else 0))
        memo[id(o)] = v
        return v
    memo = {}
    for o in ops: o.dl = dl(o, memo)
    for o in ops: assert o.dl >= o.lo, (o.ins, o.dl, o.lo)
    out = []; over = 0
    todo = [o for o in ops if o.fixed is None]
    fixed = {o.fixed: o for o in ops if o.fixed is not None}
    for g in range(len(mf)):
        if mf[g] is not None: out.append(mf[g])
        m = mem.get(g, []); s = sal.get(g, [])
        room = 2
        out += m; room -= sum(2 if x.kind == 'W' else 1 for x in m)
        out += s; room -= (len(s) if m else max(0, len(s) - 1))
        if g in fixed:
            o = fixed[g]
            assert all(d.gap is not None and d.gap < g for d in o.deps), o.ins
            o.gap = g; out.append(o.ins); room -= 2
        while True:
            rdy = [o for o in todo if o.lo <= g and all(d.gap is not None and d.gap + (1 if getattr(o.ins, "perm", False) else 0) < g for d in o.deps)
                   and all(d.gap is not None for d in o.samegap)]
            if not rdy: break
            cost = lambda o: 2 if (o.ins.kind == "E" or getattr(o.ins, "perm", False)) else 1
            fit = [o for o in rdy if cost(o) <= room or o.dl <= g]
            if not fit: break
            o = min(fit, key=lambda o: (o.dl, -cost(o)))
            o.gap = g; todo.remove(o); out.append(o.ins); room -= cost(o)
        over += max(0, -room)
        out += post.get(g, [])
    assert not todo, [o.ins for o in todo]
    return out, over

def spread(rd, free, M):
    n = len(rd)
    for k, g in enumerate(free):
        while rd and (n - len(rd)) < (n * (k + 1) + len(free) - 1) // len(free) if n > len(free) else (rd and n - len(rd) <= k):
            M(g, rd.pop(0))
    assert not rd

def piece_reads(base, off):
    return [ds_read("ds_read_b64_tr_b16", R("a", base + 2 * x, 2), VDR, off + 64 * x) for x in range(2)]
def drain_reads(n=3): return [r for i in range(n) for r in piece_reads(208 + 4 * i, i * 1024)]
def pc_off(i): return (i // 3) * 3072 + (i % 3) * 128
def o_store(cfg, i): return gstore(DRreg(i), VOFO, SRO, sGOF, pc_off(i), cfg.polo, tag="O")
def q_dma(cfg, i, tag="Q"): return (sop("s_add_u32", "m0", sQM, str((i % 3) * 896)), dma(VOFF, SRQ, "0", pc_off(i), cfg.polq, tag=tag))
def stage_advance(n, o=True):
    return [sop("s_add_u32", "s16", "s16", str(n)), sop("s_addc_u32", "s17", "s17", "0"), sop("s_add_u32", sQM, sQM, str(n))] + ([sop("s_add_u32", sGOF, sGOF, "3072")] if o else [])

def fin_order(): return [(qb, b) for qb in range(4) for b in range(0, 12, 2)]
LIF = lambda qb: SB + 4 * qb
SCROW = [0, 2, 1, 3]

def l_reduce_ops(cfg, deps):
    a, b, c, d = LSV
    s1 = Op(swap("v_permlane32_swap_b32", a, b), deps=deps[:2]); s2 = Op(swap("v_permlane32_swap_b32", c, d), deps=deps[2:])
    a1 = Op(valu("v_add_f32", a, a, b), deps=[s1]); a2 = Op(valu("v_add_f32", c, c, d), deps=[s2])
    s3 = Op(swap("v_permlane16_swap_b32", a, c), deps=[a1, a2]); a3 = Op(valu("v_add_f32", a, a, c), deps=[s3])
    r = Op(I(f"v_rcp_f32 {b}, {a}", "E", [a], [b]), deps=[a3])
    return [s1, s2, a1, a2, s3, a3, r], r

def iteration(cfg, kind):
    par = {"A": 0, "Z": 0, "O": 1, "E": 0, "X": 0, "Y": 1}[kind]
    mf = qk_mfmas() + pv_mfmas(kind in "AZ")
    mem = {}; sal = {}; sq = []
    def M(g, i):
        l = mem.setdefault(g, [])
        l.insert(len([x for x in l if x.kind != "W"]), i) if i.kind == "D" else l.append(i)
    def busy(g): return g in mem and any(x.kind != "W" for x in mem[g])
    def S(g, i): sal.setdefault(g, []).append(i)
    def Q(lo, hi, lst): sq.extend((lo, hi, x) for x in lst)
    ops = sm_ops()[1] + sm_ops({"Y": "Y"}.get(kind))[0]
    sp = cfg.vsp
    nq = {"A": 6, "Z": 3, "E": 3, "Y": 3}.get(kind, 0)
    S(0, salu("s_barrier"))
    for j, (m0, d) in enumerate(kv_dma(cfg, "K", (par + 1) & 1)):
        S(2 + sp * j, m0); M(3 + sp * j, d)
    if kind in "EZX":
        for i in range(3): M(21 + 12 * i, o_store(cfg, i))
    if kind == "A" and cfg.vtouch:
        M(21, I(f"buffer_load_dword v252, v254, s[20:23], 0 offen", "G", ["v254", "s[20:23]"], [], tag="PF"))
        Q(22, 46, [sop("s_mov_b32", "s22", "0")])
    if (kind == "O" or (kind == "A" and cfg.pfA)) and cfg.pf:
        M(21, I(f"buffer_load_dword v252, v254, s[84:87], 0 offen{cfg.polpf}", "G", ["v254", "s[84:87]"], [], tag="PF"))
    if kind == "Z":
        wr = [fin_pair(qb, b, LIF(qb))[1] for qb, b in fin_order()][cfg.nfw:]
        cand = list(range(1, cfg.zwend, 3))
        wg = [cand[int(k * len(cand) / len(wr))] for k in range(len(wr))]
        for g, w in zip(wg, wr): M(g, w)
        assert cfg.nfw >= 8
        for k, d in enumerate(drain_reads(3)): M([6, 6, 7, 7, 12, 12][k], d)
        w = waitcnt(lgkm=0); w.needlg = mem[12][-1]; S(20, w)
        ops.append(Op(valu("v_add_u32", VDR, "3072", VDR), lo=13))
    spread(v_reads(par), [g for g in range(1, cfg.rdend + (5 if kind == "Z" else 0)) if g % 3 != 2 and not busy(g)], M)
    w = waitcnt(vm=0, lgkm=0); w.need = ("K", 2)
    if kind == "Z": w.lgkm = sum(1 for g in range(cfg.rdend + 5, 48) for x in mem.get(g, []) if x.kind == "W")
    S(47, w)
    if kind == "Y": Q(1, 40, newitem_a())
    Q(4 + 2 * sp, 46, kv_advance("K", wrap=(kind == "E")))
    if (kind == "O" or (kind == "A" and cfg.pfA)) and cfg.pf:
        Q(22, 46, [sop("s_add_u32", "s84", "s84", "s0"), sop("s_addc_u32", "s85", "s85", "0"), sop("s_sub_u32", "s1", "s1", "1"), sop("s_cselect_b32", "s86", "0", "s86")])
    if kind == "X" and cfg.kvpf: Q(4, 46, kvpf_setup(cfg))
    S(48, salu("s_barrier"))
    for j, (m0, d) in enumerate(kv_dma(cfg, "V", par)):
        S(50 + sp * j, m0); M(51 + sp * j, d)
    if kind == "Y": Q(41, 67, newitem_b())
    if kind == "X": Q(49, 70, window_srd(20, sOP, sITEM) + [sop("s_mov_b32", "s22", WIN)])
    qg = [69, 75, 81] if nq == 3 else [66, 69, 75, 78, 84, 87]
    adv = kv_advance("V", wrap=(kind == "O"))
    if nq == 6: Q(64, 64, adv[:2])
    for i in range(nq):
        m0, d = q_dma(cfg, i)
        Q(qg[i] - 1, qg[i] - 1, [m0]); M(qg[i], d)
        if nq == 3 and i == 0: Q(70, 73, adv[:2])
        if nq == 3 and i == 1: Q(76, 79, adv[2:])
    if nq == 6: Q(88, 94, adv[2:])
    if nq == 0: Q(52 + 2 * sp, 90, adv)
    if nq: Q(qg[-1] + 1, 94, stage_advance(nq * 1024, kind != "Y"))
    if kind == cfg.kvpf_at[0] and cfg.kvpf:
        g = int(cfg.kvpf_at[1:])
        M(g, I(f"buffer_load_dword v252, v254, s[84:87], 0 offen{cfg.polpf}", "G", ["v254", "s[84:87]"], [], tag="PF"))
        Q(g + 1, 94, [sop("s_mov_b32", "s86", "0")])
    if kind == "Z" and cfg.kvpf2: sq[2:2] = [(17, 66, x) for x in kvpf2_setup(cfg)]
    rd = k_reads(par) + (q_reads() if kind == "X" else []) + (drain_reads() if kind == "O" else [])
    free = [g for g in range(49, 48 + cfg.rdend) if g % 3 != 2 and not busy(g)]
    if len(rd) <= 12 and kind != "Z": free = [g for g in free if g % 3 == 1]
    elif len(rd) < len(free): free = [free[int(k * len(free) / len(rd))] for k in range(len(rd))]
    spread(rd, free, M)
    if kind == "O": ops.append(Op(valu("v_add_u32", VDR, "3072", VDR), lo=48 + cfg.rdend))
    if kind == "Y":
        ops.append(Op(valu("v_mov_b32", VDR, VDR0)))
        svs = [next(o for o in ops if o.ins.wr == [LSV[q]]) for q in range(4)]
        lr, last = l_reduce_ops(cfg, svs)
        last.hi = 82; ops += lr
        M(85, ds_write("ds_write_b32", SCW, LSV[1], 0))
        fc = flag_check(cfg, LSV[0])
        sq.insert(0, (1, 40, fc[0]))
        ops.append(Op(fc[1], deps=[lr[-2]], hi=86))
        Q(88, 94, fc[2:] + [sop("s_add_u32", sNN, sNN, "1")])
        for o in ops:
            if getattr(o, "qb", 9) < 2 and o.fixed is None: o.hi = min(o.hi, 86)
        for q in range(4): M([87, 87, 88, 88][q], ds_read("ds_read_b128", R("v", LIF(q), 4), SCR, SCROW[q] * 64))
    w = waitcnt(vm=0, lgkm=0); w.need = ("V", 2)
    S(95, w)
    if kind == "O": Q(80, 94, [sop("s_sub_u32", sCNT, sCNT, "1"), salu(f"s_cmp_eq_u32 {sCNT}, 0", [sCNT], ["scc"])])
    out, over = schedule(mf, mem, sal, ops, sq)
    for k, i in enumerate(out):
        if hasattr(i, "needlg"):
            n = sum(1 for x in out[out.index(i.needlg) + 1:k] if x.kind in "DW")
            i.lgkm = n; i.text = f"s_waitcnt lgkmcnt({n})"
    for i in out:
        if "bar" in cfg.kill and i.text == "s_barrier": i.text = "s_nop 0"
        if "dma" in cfg.kill and i.kind == "G": i.text = "s_nop 0"
        if "ds" in cfg.kill and i.kind == "D": i.text = "s_nop 0"
    print(f"iteration {kind}: {len(out)} instrs, overflow slots {over}", file=sys.stderr)
    return out

def linear(ops):
    ops = list(ops); ids = set(id(o) for o in ops); done = {}; out = []
    while ops:
        def rdy(o, slack):
            return all(id(d) not in ids or (id(d) in done and len(out) - done[id(d)] > slack) for d in o.deps + o.samegap)
        o = next((o for o in ops if rdy(o, 2)), None) or next((o for o in ops if rdy(o, 1)), None) or next(o for o in ops if rdy(o, 0))
        ops.remove(o); done[id(o)] = len(out); out.append(o.ins)
    return out

def weave(mf, fill, per=2):
    out = []; fill = list(fill)
    for m in mf:
        out.append(m)
        if m.kind != "M": continue
        room = per
        while fill and room >= (2 if fill[0].kind == "E" else 1):
            f = fill.pop(0); out.append(f); room -= 2 if f.kind == "E" else 1
    return out, fill

def vw(tag, n=1, lgkm=None):
    w = waitcnt(vm=0, lgkm=lgkm); w.need = (tag, n); w.mark = True; return w

def q0_dma(cfg, rg):
    o = []
    for cb in range(3):
        o += [sop("s_add_u32", "m0", sSTG, str(rg * 3072 + cb * 896)), nop(0), dma(VOFF, SRQ, "0", cb * 128, cfg.polq, tag=f"Q{rg}")]
    return o + [sop("s_add_u32", "s16", "s16", "3072"), sop("s_addc_u32", "s17", "s17", "0")]

def prologue(cfg):
    H = sm_ops("P")[0]
    per = [[o for o in H if o.qb == qb] for qb in range(4)]
    qr = q_reads(); mf = qk_mfmas()
    def kv(which, slot, tag=None):
        o = []
        for m0, d in kv_dma(cfg, which, slot, tag): o += [m0, nop(0), d]
        return o + kv_advance(which, wrap=False)
    o = [vw("K0", lgkm=0), salu("s_barrier")] + k_reads(0)
    if cfg.vtouch:
        o += [valu("v_min_u32", "v254", "2", T[0]), valu("v_mul_u32_u24", "v254", "3145728", "v254")] + window_srd(20, sOP, sXB) + [sop("s_mov_b32", "s22", "0" if cfg.nomem else "6316032")]
    o += [valu("v_lshlrev_b32", "v254", "7", T[0])]
    for qb in range(4):
        o += [vw(f"Q{2*qb+1}")] + qr[6 * qb:6 * qb + 6]
        for s in range(6):
            o += [waitcnt(lgkm=5 - s), mf[12 * qb + s]]
        o += mf[12 * qb + 6:12 * qb + 12]
        if qb == 0: o += [label("L_skipq6")] if False else []
        if qb == 0: o += late_q(cfg)
        if qb == 1: o += kv("K", 1, "K1") + kv("V", 0, "V0")
        if qb == 2: o += [salu("s_barrier")] + kv("K", 0) + kv("V", 1) + newitem_a(first=True) + newitem_b()
        if qb == 3: o += [vw("K1"), salu("s_barrier")] + k_reads(1)
        o += linear(per[qb])
    o += [vw("V0", lgkm=0)]
    return o

def sm_full(qb, minit):
    H, Rr = sm_ops(minit)
    ops = [o for o in H + Rr if o.qb == qb]
    last = {}; readers = {}
    for o in sorted(ops, key=lambda o: SM_RANK(o)):
        o.deps = [last[r] for r in set(o.ins.rd + o.ins.wr) if r in last] + [x for r in o.ins.wr for x in readers.get(r, [])]; o.samegap = []
        for r in o.ins.rd: readers.setdefault(r, []).append(o)
        for r in o.ins.wr: last[r] = o; readers[r] = []
    return sorted(ops, key=lambda o: SM_RANK(o))
def SM_RANK(o):
    t = o.ins.text
    if t.startswith("v_fma"): return (1, t)
    if t.startswith("v_exp"): return (2, t)
    if t.startswith("v_add_f32"): return (3, o.ins.rd[-1])
    if t.startswith("v_cvt"): return (4, t)
    return (0, o.seq)

def prologue2(cfg):
    K0 = lambda kb, s: R("a", 208 + (kb * 6 + s) * 4, 4)
    qr = q_reads(); qk1 = qk_mfmas(); pv0 = pv_mfmas(True)
    qk0 = [mfma(Sreg(qb, kb), K0(kb, s), Qreg(qb, s), "0" if s == 0 else Sreg(qb, kb)) for qb in range(4) for kb in range(2) for s in range(6)]
    k0r = [ds_read("ds_read_b128", K0(kb, s), KA[s & 1], KSLOT[0] + kb * 6144 + (s >> 1) * 1024) for kb in range(2) for s in range(6)]
    H1 = sm_ops()[0]
    h1 = [linear([o for o in H1 if o.qb == qb]) for qb in range(4)]
    g = lambda l, q: l[12 * q:12 * q + 12]
    def kv(which, slot, tag=None):
        o = []
        for m0, d in kv_dma(cfg, which, slot, tag): o += [m0, nop(0), d]
        return o + kv_advance(which, wrap=False)
    def first(qb, extra=(), fill=()):
        o = [vw(f"Q{2*qb+1}")] + qr[6 * qb:6 * qb + 6]
        m = []
        for s in range(6): m += [waitcnt(lgkm=5 - s), qk0[12 * qb + s]]
        w, rest = weave(m + qk0[12 * qb + 6:12 * qb + 12], fill)
        return o + w + list(extra) + rest + linear(sm_full(qb, "P"))
    grp = lambda l: [l[3 * k:3 * k + 3] + (l[9:] if k == 2 else []) for k in range(3)]
    pend = init_loads(cfg)[cfg.pn[0]:] + grp(kv("K", 0, "K2")) + grp(kv("V", 1, "V1"))
    def take(n):
        r = [x for d in pend[:n] for x in d]; del pend[:n]; return r
    def sprinkle(o, dmas, skip=8):
        out = []; step = max(1, (len(o) - skip - 2) // (len(dmas) + 1)); dmas = list(dmas)
        for k, x in enumerate(o):
            out.append(x)
            if k >= skip and (k - skip) % step == 0 and dmas: out += dmas.pop(0)
        assert not dmas
        return out
    def takeg(n):
        r = pend[:n]; del pend[:n]; return r
    o = [vw("K0", lgkm=0), salu("s_barrier")] + k0r + [valu("v_lshlrev_b32", "v254", "7", T[0])]
    o += take(cfg.pn[1]) + first(0)
    o += take(cfg.pn[2]) + first(1)
    vr = v_reads(0); kr = k_reads(1)
    o += take(cfg.pn[3]) + [vw("V0"), salu("s_barrier")] + kr + vr[:12] + newitem_a(first=True) + vr[12:] + [waitcnt(lgkm=15)]
    m = g(qk1, 0) + [waitcnt(lgkm=0), salu("s_barrier")] + g(pv0, 0)[:3]
    w, r0 = weave(g(pv0, 0)[3:] + g(qk1, 1), [x for x in h1[0] if not x.text.startswith("v_cvt")])
    m += w
    w, r1 = weave(g(pv0, 1), r0 + [x for x in h1[0] if x.text.startswith("v_cvt")] + [x for x in h1[1] if not x.text.startswith("v_cvt")])
    m += w + r1 + [x for x in h1[1] if x.text.startswith("v_cvt")]
    o += sprinkle(m, takeg(cfg.pn[4]))
    def ren(ins, qb):
        base = SB + 8 * qb; to = int(regs(Oreg(qb, 9))[0][1:])
        f = lambda r: f"v{int(r[1:]) - base + to}" if r[0] == "v" and r[1:].isdigit() and base <= int(r[1:]) < base + 8 else r
        t = re.sub(r"v\[(\d+):(\d+)\]", lambda m: f"v[{f('v' + m.group(1))[1:]}:{f('v' + m.group(2))[1:]}]", ins.text)
        ins.text = re.sub(r"\bv\d+\b", lambda m: f(m.group(0)), t)
        ins.rd = [f(r) for r in ins.rd]; ins.wr = [f(r) for r in ins.wr]; ins.srcc = [f(r) for r in ins.srcc]
        return ins
    def late(qb, dmas, mid, tailfill):
        o = [vw(f"Q{2*qb+1}")] + qr[6 * qb:6 * qb + 6]
        for s in range(6): o += [waitcnt(lgkm=5 - s), ren(qk0[12 * qb + s], qb)]
        o += [ren(x, qb) for x in qk0[12 * qb + 6:12 * qb + 12]] + g(qk1, qb)[:3]
        w, r = weave(g(qk1, qb)[3:], [ren(x, qb) for x in linear(sm_full(qb, "P"))])
        o += w + r + mid
        nc = [x for x in h1[qb] if not x.text.startswith("v_cvt")]
        w, r = weave(g(pv0, qb), tailfill + nc)
        o += w + r + [x for x in h1[qb] if x.text.startswith("v_cvt")]
        return sprinkle(o, dmas)
    o += take(cfg.pn[5])
    assert len(pend) <= 6
    o += newitem_b() + late(2, takeg(9), [], [])
    dm = [[m0, nop(0), d] for m0, d in kv_dma(cfg, "K", 1) + kv_dma(cfg, "V", 0) + [q_dma(cfg, i) for i in range(6)]]
    o += late(3, dm, [vw("K2"), salu("s_barrier")], k_reads(0))
    o += kv_advance("K", wrap=False) + kv_advance("V", wrap=False) + stage_advance(6144) + [vw("V1", lgkm=0)]
    return o

def init_loads(cfg):
    grp = lambda l: [l[3 * k:3 * k + 3] + (l[9:] if k == 2 else []) for k in range(3)]
    def kv(which, slot, tag):
        o = []
        for m0, d in kv_dma(cfg, which, slot, tag): o += [m0, nop(0), d]
        return grp(o + kv_advance(which, wrap=False))
    l = kv("K", 0, "K0")
    for rg in range(4): l += grp(q0_dma(cfg, rg))
    l += kv("K", 1, "K1") + kv("V", 0, "V0")
    for rg in range(4, 8): l += grp(q0_dma(cfg, rg))
    return l

def late_q(cfg):
    o = []
    for rg in range(cfg.q_early, 8): o += q0_dma(cfg, rg)
    return o

def pkmul(n, l):
    r2 = R("v", n, 2); l2 = R("v", l, 2)
    return I(f"v_pk_mul_f32 {r2}, {r2}, {l2}", "V", [r2, l2], [r2])

def fin_pair(qb, b, li):
    x = int(regs(Oreg(qb, b))[0][1:]); o = []
    if b + 1 < 11: y = x + 4
    else:
        y = x - 4
        o += [I(f"v_accvgpr_read_b32 v{y+i}, {r}", "V", [r], [f"v{y+i}"]) for i, r in enumerate(regs(Oreg(qb, 11)))]
    o += [pkmul(x, li), pkmul(x + 2, li + 2), pkmul(y, li), pkmul(y + 2, li + 2)]
    o += [valu("v_cvt_pk_bf16_f32", f"v{x+k}", f"v{src}", f"v{src+1}") for k, src in enumerate((x, x + 2, y, y + 2))]
    return o, ds_write("ds_write_b128", OW, R("v", x, 4), qb * 6144 + (b >> 1) * 512)

def flag_check(cfg, v):
    return [sop("s_mov_b32", sT[4], f2h(cfg.thresh)), I(f"v_cmp_nge_f32 vcc, {sT[4]}, {v}", "V", [sT[4], v], ["vcc"]),
            salu("s_cmp_lg_u64 vcc, 0", ["vcc"], ["scc"]), sop("s_cselect_b32", sT[4], "1", "0"), sop("s_lshl_b32", sT[4], sT[4], sNN), sop("s_or_b32", sFLAG, sFLAG, sT[4])]

def finalize(cfg):
    a, b, c, d = LSV
    o = []
    if cfg.kvpf and cfg.kvpf_at == "F":
        o += [I(f"buffer_load_dword v252, v254, s[84:87], 0 offen{cfg.polpf}", "G", ["v254", "s[84:87]"], [], tag="PF")]
        if cfg.kvpf > 4:
            o += [sop("s_mov_b32", sT[5], "8192"), I(f"buffer_load_dword v252, v254, s[84:87], {sT[5]} offen{cfg.polpf}", "G", ["v254", "s[84:87]", sT[5]], [], tag="PF")]
        o += [sop("s_mov_b32", "s86", "0")]
    o += [I(".p2align 3", "L")]
    pend = []; done = 0
    for k, (qb, b_) in enumerate(fin_order()):
        v, w = fin_pair(qb, b_, LIF(qb))
        o += v; pend.append(w)
        while done < cfg.nfw and done < (k + 1) * cfg.nfw // 24:
            o.append(pend[done]); done += 1
    return o

def last_block(cfg):
    v2base = lambda b: 220 + 4 * b if b < 9 else 4 * (b - 9)
    P2 = lambda qb: R("v", SB + 8 * qb, 4)
    qk = qk_mfmas()
    grp_mf = {"K": lambda q: qk[12 * q:12 * q + 12],
              "A": lambda q: [mfma(Oreg(q, b), Preg(q), Vreg(b), Oreg(q, b)) for b in range(12)],
              "B": lambda q: [mfma(Oreg(q, b), P2(q), R("a", v2base(b), 4), Oreg(q, b)) for b in range(12)]}
    seqm = cfg.lorder.split()
    at = {x: 12 * k for k, x in enumerate(seqm)}
    mf = [m for x in seqm for m in grp_mf[x[0]](int(x[1]))]
    n = len(mf)
    mem = {}; sal = {}; sq = []; post = {}
    def M(g, i):
        l = mem.setdefault(g, [])
        l.insert(len([x for x in l if x.kind != "W"]), i) if i.kind == "D" else l.append(i)
    def S(g, i): sal.setdefault(g, []).append(i)
    ops = sm_ops()[1]
    for o in ops:
        o.fixed = None; o.hi = min(at[f"K{o.qb}"] - 1, at[f"A{o.qb}"] - 2); o.lo = cfg.lrlo
    radd = {q: [o for o in ops if o.qb == q and o.ins.wr == [LS[q]]][-1:] for q in range(4)}
    lrd = []
    for qb in range(4):
        due = at[f"B{qb}"] - 2; end = at[f"B{qb}"] + 11
        adds = []; xs = []; cvs = []
        for e in range(8):
            ready = at[f"K{qb}"] + (9 if e < 4 else 15)
            f = Op(valu("v_fma_f32", Se(qb, e), Se(qb, e), sC, "-" + MC[qb]), lo=ready, hi=due)
            x = Op(valu("v_exp_f32", Se(qb, e), Se(qb, e), kind="E"), deps=[f], hi=due)
            a = Op(valu("v_add_f32", LS[qb], LS[qb], Se(qb, e)), deps=[x], samegap=adds[-1:] or radd[qb], hi=due + 8)
            ops += [f, x, a]; adds.append(a); xs.append(x)
            if e & 1:
                jj = e >> 1
                cv = Op(valu("v_cvt_pk_bf16_f32", Se(qb, jj), Se(qb, e - 1), Se(qb, e)), deps=xs[-2:], samegap=[adds[jj]] + cvs[-1:], hi=due)
                ops.append(cv); cvs.append(cv)
        a_, b_ = LSV[qb], LS[qb]
        c = [adds[-1]]
        def ch(ins):
            o = Op(ins, deps=c[-1:], hi=end - 5); c.append(o); ops.append(o)
        ch(valu("v_mov_b32", a_, b_)); ch(swap("v_permlane32_swap_b32", a_, b_)); ch(valu("v_add_f32", a_, a_, b_))
        ch(valu("v_mov_b32", b_, a_)); ch(swap("v_permlane16_swap_b32", a_, b_)); ch(valu("v_add_f32", b_, a_, b_))
        fc = flag_check(cfg, b_)
        ops.append(Op(fc[1], deps=c[-1:], lo=end - 6, hi=end - 2))
        sq += [(end - 12, end - 8, fc[0])] + [(end - 1, end + 8 if qb < 3 else end, x) for x in fc[2:]]
        ch(I(f"v_rcp_f32 {a_}, {b_}", "E", [b_], [a_]))
        M(end - 4, ds_write("ds_write_b32", SCW, a_, 0))
        lrd.append(ds_read("ds_read_b128", R("v", SB + 8 * qb + 4, 4), SCR, 0)); M(end - 3, lrd[-1])
    S(0, salu("s_barrier"))
    v1 = v_reads(0)
    for b in range(12): M(1 + b, v1[2 * b]); M(1 + b, v1[2 * b + 1])
    for b in (2, 5, 8, 11):
        w = waitcnt(lgkm=0); w.needlg = v1[2 * b + 1]; S(at["A0"] + b - 3, w)
    S(13, waitcnt(vm=0)); S(14, salu("s_barrier"))
    for i in range(3): M(15 + 7 * i, o_store(cfg, i))
    sq[0:0] = [(30, 34, x) for x in window_srd(20, sOP, sITEM) + [sop("s_mov_b32", "s22", WIN)]]
    ops.append(Op(valu("v_mov_b32", VDR, VDR0), hi=40))
    v2 = [ds_read("ds_read_b64_tr_b16", R("a", v2base(b) + 2 * x, 2), VA[b & 3], VSLOT[1] + x * 6144 + (b >> 2) * 1024) for b in range(12) for x in range(2)]
    g = 16
    for b in range(12):
        while g in mem or g in sal: g += 1
        M(g, v2[2 * b]); M(g, v2[2 * b + 1]); g += 2
    for b in (2, 5, 8, 11):
        w = waitcnt(lgkm=0); w.needlg = v2[2 * b + 1]; S(at["B0"] + b - 3, w)
    pb = {0: [24, 28, 32, 36, 40, 44], 1: [12, 16, 20, 208, 212, 216], 2: [48, 52, 56, 60, 64, 68], 3: [72, 76, 80, 84, 88, 92]}
    order = [0, 3, 1, 4, 2, 5]
    late = []
    for qb in range(4):
        end = at[f"B{qb}"] + 11
        st = lambda i: gstore(R("a", pb[qb][i], 4), VOFO, SRO, sGOF, pc_off(i), cfg.polo, tag="O")
        grp = [fin_pair(qb, b, SB + 8 * qb + 4) for b in range(0, 12, 2)]
        rds = [piece_reads(pb[qb][i], (6 * qb + i) * 1024) for i in range(6)]
        w = waitcnt(lgkm=0); w.needlg = lrd[qb]
        blk = (late + [nop(3)] if qb == 3 else []) + [w, I(".p2align 3", "L")]
        seq = []
        for k, i in enumerate(order):
            w = waitcnt(lgkm=0); w.needlg = rds[order[k | 1]][1]
            seq.append(([w] if k % 2 == 0 else []) + ([sop("s_mov_b32", sGOF, str(qb * 6144))] if k == 0 else []) + [st(i)])
        for k, gq in enumerate(grp):
            blk += gq[0] + [gq[1]]
            if k & 1: blk += rds[k >> 1] + rds[3 + (k >> 1)]
            if qb in (0, 3) and k in (3, 5): blk += seq.pop(0) + seq.pop(0) + [I(".p2align 3", "L")]
        if qb < 3:
            g0 = end + cfg.lfin
            post[g0] = blk
            g = g0 + 5
            for x in seq:
                while g in mem or g - 1 in mem: g += 1
                for ins in x:
                    if g >= n: late.append(ins)
                    elif ins.kind == "S": S(g - 1, ins)
                    else: M(g, ins)
                g += cfg.lsp
        else:
            for x in seq: blk += x
            post[end] = blk
    out, over = schedule(mf, mem, sal, ops, sq, post)
    for k, i in enumerate(out):
        if hasattr(i, "needlg"):
            c = sum(1 for x in out[out.index(i.needlg) + 1:k] if x.kind in "DW")
            assert out.index(i.needlg) < k
            c = min(c, 15)
            i.lgkm = c; i.text = f"s_waitcnt lgkmcnt({c})"
    print(f"last block: {len(out)} instrs, overflow slots {over}", file=sys.stderr)
    return out

def fixnops(seq, name):
    import re
    for _ in range(400):
        p = [x for x in check(seq, name) if "dist" in x]
        if not p: return seq
        for k in range(1, len(seq) + 1):
            q = [x for x in check(seq[:k], name) if "dist" in x]
            if q:
                m = re.search(r"dist (\d+)(?: < (\d+))?", q[0])
                need = int(m.group(2) or 8) - int(m.group(1))
                seq = seq[:k - 1] + [nop(need - 1)] + seq[k - 1:]
                break
    raise RuntimeError("fixnops")

def window_srd(srd_lo, ptr, item):
    return [sop("s_mul_i32", sT[1], item, "98304"), sop("s_mul_i32", sT[2], sWAVE, "24576"), sop("s_add_u32", sT[1], sT[1], sT[2]),
            sop("s_add_u32", f"s{srd_lo}", f"s{ptr}", sT[1]), sop("s_addc_u32", f"s{srd_lo+1}", f"s{ptr+1}", "0")]

def head_base(dst, item):
    return [sop("s_mul_hi_u32", dst, item, "0x55555556"), sop("s_mul_i32", dst, dst, "196608"), sop("s_add_u32", dst, dst, sRB)]

def newitem_a(first=False):
    o = [] if first else [sop("s_sub_u32", sLEFT, sLEFT, "1"), sop("s_add_u32", sITEM, sITEM, "32")]
    o += head_base(sT[0], sITEM) + [sop("s_add_u32", sT[0], sT[0], "196608"), sop("s_add_u32", sKEND, f"s{sKP}", sT[0]), sop("s_add_u32", sVEND, f"s{sVP}", sT[0])]
    o += [sop("s_add_u32", sT[3], sITEM, "32"), sop("s_min_u32", sT[3], sT[3], "767")]
    o += head_base(sT[0], sT[3])
    o += [sop("s_add_u32", f"s{sKNX}", f"s{sKP}", sT[0]), sop("s_addc_u32", f"s{sKNX+1}", f"s{sKP+1}", "0")]
    return o
def kvpf_setup(cfg):
    n = cfg.kvpf * 2048
    a_, b_ = sT[5], sT[6]
    return [sop("s_add_u32", sT[4], sITEM, "32"), sop("s_mul_hi_u32", a_, sT[4], "0x55555556"), sop("s_mul_i32", b_, a_, "3"), sop("s_sub_u32", b_, sT[4], b_), sop("s_mul_i32", b_, b_, str(2 * n)),
            sop("s_mul_i32", a_, a_, "196608"), sop("s_add_u32", a_, a_, b_), sop("s_and_b32", b_, sWAVE, "1"), sop("s_mul_i32", b_, b_, str(n)), sop("s_add_u32", a_, a_, b_),
            sop("s_add_u32", a_, a_, str((16 - cfg.kvpf) * 12288)),
            salu(f"s_cmp_lt_u32 {sWAVE}, 2", [sWAVE], ["scc"]), sop("s_cselect_b64", "s[84:85]", R("s", sKP, 2), R("s", sVP, 2)),
            sop("s_add_u32", "s84", "s84", a_), sop("s_addc_u32", "s85", "s85", "0")] + (
           [salu(f"s_cmp_eq_u32 {sLEFT}, 2", [sLEFT], ["scc"]), sop("s_cselect_b32", "s86", str(n), "0")] if cfg.kvpf_last else [sop("s_mov_b32", "s86", "0" if cfg.nomem else str(n))])

def kvpf2_setup(cfg):
    a_, b_ = sT[5], sT[6]
    return [sop("s_mul_hi_u32", a_, sITEM, "0x55555556"), sop("s_mul_i32", b_, a_, "3"), sop("s_sub_u32", b_, sITEM, b_), sop("s_lshl_b32", b_, b_, "12"),
            sop("s_mul_i32", a_, a_, "196608"), sop("s_add_u32", a_, a_, b_), sop("s_and_b32", b_, sWAVE, "1"), sop("s_lshl_b32", b_, b_, "11"), sop("s_add_u32", a_, a_, b_),
            sop("s_add_u32", a_, a_, str((16 - cfg.kvpf - cfg.kvpf2) * 12288)),
            salu(f"s_cmp_lt_u32 {sWAVE}, 2", [sWAVE], ["scc"]), sop("s_cselect_b64", "s[84:85]", R("s", sKP, 2), R("s", sVP, 2)),
            sop("s_add_u32", "s84", "s84", a_), sop("s_addc_u32", "s85", "s85", "0"),
            salu(f"s_cmp_eq_u32 {sLEFT}, 1", [sLEFT], ["scc"]), sop("s_cselect_b32", "s86", "0" if cfg.nomem else "2048", "0"),
            sop("s_mov_b32", "s0", "12288"), sop("s_mov_b32", "s1", str(cfg.kvpf2 - 1))]

def newitem_b():
    o = [sop("s_add_u32", f"s{sVNX}", f"s{sVP}", sT[0]), sop("s_addc_u32", f"s{sVNX+1}", f"s{sVP+1}", "0")]
    o += window_srd(16, sQP, sT[3])
    o += [salu(f"s_cmp_gt_u32 {sLEFT}, 1", [sLEFT], ["scc"]), sop("s_cselect_b32", sNR, KVWIN, "0"), sop("s_cselect_b32", "s18", QWIN, "0"),
          sop("s_mov_b32", sGOF, "0"), sop("s_mov_b32", sQM, sSTG), sop("s_mov_b32", sCNT, "7")]
    return o

def setup(cfg):
    o = []
    x = lambda t: o.append(salu(t))
    x("s_cmp_ge_u32 s2, 256"); x("s_cbranch_scc1 L_end")
    x(f"s_load_dwordx4 s[4:7], s[0:1], 0"); x(f"s_load_dwordx2 s[{sVP}:{sVP+1}], s[0:1], 16"); x(f"s_load_dwordx2 s[{sOP}:{sOP+1}], s[0:1], 24")
    if cfg.stamps: x("s_memtime s[60:61]"); x("s_memrealtime s[62:63]")
    if cfg.stamps: x(f"s_load_dwordx2 s[56:57], s[0:1], {32 if cfg.stamps == 2 else 40}")
    L, N, G, A, B_ = T
    o += [valu("v_lshrrev_b32", A, "6", "v0"), valu("v_and_b32", L, "63", "v0"), I(f"v_readfirstlane_b32 {sWAVE}, {A}", "V", [A], [sWAVE])]
    o += [valu("v_lshrrev_b32", A, "3", L), valu("v_and_b32", B_, "7", L), valu("v_xor_b32", B_, B_, A), valu("v_mul_u32_u24", A, "384", A), valu("v_lshl_add_u32", VOFF, B_, "4", A)]
    o += [sop("s_mul_i32", sRB, sWAVE, "3072"), sop("s_mul_i32", sSTG, sWAVE, str(STGW)), sop("s_add_u32", sSTG, sSTG, str(STG)), sop("s_mov_b32", sC, f2h(CSCALE))]
    o += [sop("s_and_b32", sT[0], "s2", "7"), sop("s_mul_i32", sT[0], sT[0], "96"), sop("s_lshr_b32", sT[1], "s2", "3"), sop("s_add_u32", sXB, sT[0], sT[1])]
    for lo in (8, 12): x(f"s_mov_b32 s{lo+3}, 0x20000")
    for which, tab in (("K", KSLOT), ("V", VSLOT)):
        for slot in range(2):
            for cb in range(3): o.append(sop("s_add_u32", m0reg(which, slot, cb), sRB, str(tab[slot] + cb * 896)))
    x("s_mov_b32 s19, 0x20000"); x("s_mov_b32 s23, 0x20000")
    if cfg.stamps: x(f"s_mov_b32 s58, {256 if cfg.stamps == 2 else 301989888}"); x("s_mov_b32 s59, 0x20000")
    o += [sop("s_mov_b32", sITEM, sXB), sop("s_mov_b32", sLEFT, "3"), sop("s_mov_b32", sNN, "0"), sop("s_mov_b32", sFLAG, "0"), sop("s_mov_b32", sMODE, "0"), sop("s_mov_b32", sTODO, "0")]
    x("s_waitcnt lgkmcnt(0)")
    x(f"s_mov_b32 s{sQP}, s4"); x(f"s_mov_b32 s{sQP+1}, s5")
    return o

def addr_setup():
    L, N, G, A, B_ = T
    o = [valu("v_and_b32", N, "15", L), valu("v_lshrrev_b32", G, "4", L)]
    o += [valu("v_lshrrev_b32", A, "3", N), valu("v_mul_u32_u24", "v0", "3072", A), valu("v_and_b32", "v1", "7", N), valu("v_lshl_add_u32", "v0", "v1", "7", "v0")]
    for e in range(2):
        o += [valu("v_add_u32", A, str(4 * e), G), valu("v_xor_b32", A, A, "v1"), valu("v_lshl_add_u32", KA[e], A, "4", "v0"), valu("v_add_u32", QA[e], sSTG, KA[e])]
    o += [valu("v_lshrrev_b32", "v2", "5", L), valu("v_mul_u32_u24", "v3", "3072", "v2"), valu("v_and_b32", A, "31", L), valu("v_lshl_add_u32", "v3", A, "4", "v3"),
          valu("v_add_u32", "v3", sSTG, "v3"), valu("v_add_u32", OW, "3072", "v3")]
    o += [valu("v_and_b32", A, "3", L), valu("v_lshl_add_u32", A, "v2", "2", A), valu("v_mul_u32_u24", A, "384", A), valu("v_bfe_u32", B_, L, "2", "3"), valu("v_lshl_add_u32", VOFO, B_, "4", A)]
    o += [valu("v_lshlrev_b32", "v3", "8", "v2"), valu("v_and_b32", A, "1", G), valu("v_lshl_add_u32", "v3", A, "9", "v3"), valu("v_and_b32", A, "1", L), valu("v_lshl_add_u32", "v3", A, "7", "v3"),
          valu("v_bfe_u32", A, L, "2", "2"), valu("v_lshl_add_u32", "v3", A, "4", "v3"), valu("v_bfe_u32", A, L, "1", "1"), valu("v_lshl_add_u32", "v3", A, "3", "v3"),
          valu("v_add_u32", "v3", sSTG, "v3"), valu("v_add_u32", VDR0, "3072", "v3")]
    o += [valu("v_mov_b32", A, sWAVE), valu("v_lshlrev_b32", A, "8", A), valu("v_add_u32", A, str(FLAGS_LDS + 256), A), valu("v_lshl_add_u32", SCW, L, "2", A), valu("v_lshl_add_u32", SCR, G, "4", A)]
    o += [valu("v_lshrrev_b32", B_, "2", L), valu("v_lshrrev_b32", A, "3", B_), valu("v_mul_u32_u24", "v0", "3072", A), valu("v_and_b32", "v1", "7", B_),
          valu("v_lshl_add_u32", "v0", "v1", "7", "v0"), valu("v_and_b32", A, "1", L), valu("v_lshl_add_u32", "v0", A, "3", "v0"), valu("v_bfe_u32", "v2", L, "1", "1")]
    for j in range(4):
        o += [valu("v_add_u32", A, str(2 * j), "v2"), valu("v_xor_b32", A, A, "v1"), valu("v_lshl_add_u32", VA[j], A, "4", "v0")]
    for qb in range(4): o += [valu("v_mov_b32", MC[qb], "0xff800000"), valu("v_mov_b32", LS[qb], "0")]
    return o

def touch_pages(cfg):
    o = []
    def ld(ptr, off): o.append(salu(f"s_load_dword s4, s[{ptr}:{ptr+1}], {off}"))
    o += [sop("s_min_u32", sT[1], sWAVE, "2"), sop("s_lshl_b32", sT[1], sT[1], "5"), sop("s_add_u32", sT[1], sT[1], sXB), sop("s_mul_i32", sT[2], sT[1], "98304")]
    ld(sOP, sT[2])
    if cfg.touch > 1: ld(sQP, sT[2])
    o += [sop("s_add_u32", sT[3], sT[2], "98300")]
    ld(sOP, sT[3])
    if cfg.touch > 1:
        ld(sQP, sT[3])
        o += [sop("s_mul_hi_u32", sT[4], sT[1], "0x55555556"), sop("s_mul_i32", sT[4], sT[4], "196608")]
        ld(sKP, sT[4]); ld(sVP, sT[4])
        o += [sop("s_add_u32", sT[5], sT[4], "196604")]
        ld(sKP, sT[5]); ld(sVP, sT[5])
    return o

def start_run(cfg):
    o = head_base(sT[0], sITEM)
    o += [sop("s_add_u32", "s8", f"s{sKP}", sT[0]), sop("s_addc_u32", "s9", f"s{sKP+1}", "0"), sop("s_mov_b32", "s10", KVWIN)]
    if cfg.p2:
        il = init_loads(cfg)[:cfg.pn[0]]
        o += [x for d in il[:3] for x in d]
        o += window_srd(16, sQP, sITEM) + [sop("s_mov_b32", "s18", QWIN)]
        o += [sop("s_add_u32", "s12", f"s{sVP}", sT[0]), sop("s_addc_u32", "s13", f"s{sVP+1}", "0"), sop("s_mov_b32", "s14", KVWIN)]
        o += [x for d in il[3:] for x in d]
    else:
        for m0, d in kv_dma(cfg, "K", 0, "K0"): o += [m0, nop(0), d]
        o += window_srd(16, sQP, sITEM) + [sop("s_mov_b32", "s18", QWIN)]
        for rg in range(cfg.q_early): o += q0_dma(cfg, rg)
    fill = addr_setup(); mixed = []
    for x in o:
        if x.text == "s_nop 0" and fill:
            mixed += fill[:6]; del fill[:6]
        else: mixed.append(x)
    o = mixed + fill
    if cfg.touch: o += touch_pages(cfg)
    if not cfg.p2: o += kv_advance("K", wrap=False) + [sop("s_add_u32", "s12", f"s{sVP}", sT[0]), sop("s_addc_u32", "s13", f"s{sVP+1}", "0"), sop("s_mov_b32", "s14", KVWIN)]
    o += [sop("s_mov_b32", "s20", f"s{sOP}"), sop("s_mov_b32", "s21", f"s{sOP+1}"), sop("s_mov_b32", "s22", "0"), valu("v_add_u32", VDR, "3072", VDR0)]
    if cfg.pf:
        o += [sop("s_add_u32", sT[4], sXB, "64")] + window_srd(84, sQP, sT[4])
        o += [salu(f"s_cmp_eq_u32 {sLEFT}, 3", [sLEFT], ["scc"]), sop("s_cselect_b32", "s86", "0" if cfg.nomem else str(cfg.pf * 128), "0"), sop("s_mov_b32", "s87", "0x20000"),
              sop("s_mov_b32", "s0", str(24576 // cfg.pfn)), sop("s_mov_b32", "s1", str(cfg.pfn - 1))]
    if cfg.exp == "early_o":
        o += [sop("s_add_u32", sT[4], sITEM, "64")] + window_srd(20, sOP, sT[4]) + [sop("s_mov_b32", "s22", WIN)]
    return o

def max_pass(cfg):
    L, N, G, A, B_ = T
    o = [valu("v_and_b32", N, "15", L), valu("v_lshrrev_b32", G, "4", L), valu("v_mul_u32_u24", A, "384", N), valu("v_lshl_add_u32", A, G, "4", A)]
    o += window_srd(20, sQP, sITEM) + [sop("s_mov_b32", "s22", WIN)]
    for qb in range(4):
        o.append(sop("s_mov_b32", sT[5], str(qb * 6144)))
        for s in range(6): o.append(gload(Qreg(qb, s), A, SRO, sT[5], s * 64))
    o += [sop("s_mul_hi_u32", sT[5], sITEM, "0x55555556"), sop("s_mul_i32", sT[5], sT[5], "196608"), sop("s_mov_b32", sT[6], "16")]
    o += [sop("s_mov_b32", "s20", f"s{sKP}"), sop("s_mov_b32", "s21", f"s{sKP+1}"), sop("s_mov_b32", "s22", "0" if cfg.nomem else "50331648")]
    o += [label("L_maxloop")]
    body = []
    for kb in range(2):
        if kb: body.append(sop("s_add_u32", sT[5], sT[5], "6144"))
        for s in range(6): body.append(gload(Kreg(kb, s), A, SRO, sT[5], s * 64))
    body += [sop("s_add_u32", sT[5], sT[5], "6144"), waitcnt(vm=0)]
    body += qk_mfmas() + [nop(7)]
    for qb in range(4):
        for e in range(0, 8, 2): body.append(valu("v_max3_f32", MC[qb], MC[qb], Se(qb, e), Se(qb, e + 1)))
    body += [sop("s_sub_u32", sT[6], sT[6], "1"), salu(f"s_cmp_lg_u32 {sT[6]}, 0"), salu("s_cbranch_scc1 L_maxloop")]
    return o + body + [sop("s_mov_b32", "s20", f"s{sOP}"), sop("s_mov_b32", "s21", f"s{sOP+1}"), sop("s_mov_b32", "s22", "0")]

def stamp(idx):
    return [salu(f"s_memtime s[{64+2*idx}:{65+2*idx}]")]

def build(cfg):
    global WIN, KVWIN, QWIN
    WIN = "0" if cfg.nomem else "24576"
    KVWIN = "0" if cfg.nomem else "3072"
    QWIN = "0" if cfg.nomem else "6144"
    blk = {}
    for k in "AZOEXY": blk[k] = fixnops(iteration(cfg, k), k)
    blk["setup"] = fixnops(setup(cfg), "setup")
    blk["start"] = fixnops(start_run(cfg), "start")
    blk["max"] = max_pass(cfg)
    blk["P"] = fixnops((prologue2 if cfg.p2 else prologue)(cfg), "P")
    if cfg.p2: blk["A"] = []
    blk["F"] = fixnops(finalize(cfg), "F")
    blk["T"] = fixnops(last_block(cfg), "T")
    br = lambda t: [salu(t)]
    def item(z="Z"): return blk[z] + (br("b") if z == "A" else []) + (blk["O"] + br("b") + blk["E"] + br("b")) * 6 + blk["O"] + br("b") + br("b") + br("b")
    mid = blk["X"] + blk["Y"] + blk["F"]
    tr1 = blk["setup"] + blk["start"] + br("b") + br("b") + blk["P"] + item("A") + mid + item() + mid + item() + blk["T"]
    tr2 = blk["setup"] + blk["start"] + br("b") + br("b") + blk["max"] + blk["P"] + item("A") + blk["T"]
    best = {}
    for tr in (tr1, tr2):
        vm = []
        for ins in tr:
            if ins.kind == "G": vm.append(ins.tag)
            if getattr(ins, "need", None):
                tag, nb = ins.need
                seen = 0; cnt = None
                for j in range(len(vm) - 1, -1, -1):
                    if vm[j] == tag:
                        if seen == 3 * (nb - 1): cnt = len(vm) - 1 - j; break
                        seen += 1
                assert cnt is not None
                best[id(ins)] = (min(cnt, best.get(id(ins), (99,))[0]), ins)
    for cnt, ins in best.values():
        ins.vm = cnt; ins.text = f"s_waitcnt vmcnt({cnt})" + (f" lgkmcnt({ins.lgkm})" if ins.lgkm is not None else "")
    for tr, n in ((tr1, "tr1"), (tr2, "tr2")):
        p = check(tr, n)
        for x in sorted(set(p)): print("HAZARD", x, file=sys.stderr)
        assert not p
    out = []
    a = out.append
    def emit(seq):
        if cfg.trace == 1 and any(seq is blk[k] for k in "AZOEXYT"):
            a("    s_mov_b32 m0, s45"); a("    s_nop 0"); a("    v_writelane_b32 v255, s4, m0"); a("    s_add_u32 s45, s45, 1"); a("    s_nop 0"); a("    s_memtime s[4:5]")
        tp = ["    s_memtime s[4:5]", "    s_waitcnt lgkmcnt(0)", "    s_mov_b32 m0, s45", "    s_nop 0", "    v_writelane_b32 v255, s4, m0", "    s_add_u32 s45, s45, 1"]
        for i in seq:
            mk = cfg.trace == 2 and getattr(i, "mark", False)
            if mk: out.extend(tp)
            a(("" if i.kind == "L" else "    ") + i.text)
            if mk: out.extend(tp)
    a("; @launch grid=(256,1,1) block=(256,1,1) lds=163840")
    a('.amdgcn_target "amdgcn-amd-amdhsa--gfx950"'); a(".text"); a(f".globl {NAME}"); a(".p2align 8"); a(f".type {NAME},@function"); a(f"{NAME}:")
    emit(blk["setup"])
    a("L_run:")
    emit(blk["start"])
    a(f"    s_cmp_eq_u32 {sMODE}, 0"); a("    s_cbranch_scc1 L_k0")
    emit(blk["max"])
    a("L_k0:")
    if cfg.trace: a("    s_mov_b32 s45, 0"); a("    s_mov_b32 s4, s60")
    if cfg.trace == 2: a("    v_writelane_b32 v255, s4, 0"); a("    s_mov_b32 s45, 1")
    if cfg.stamps: emit(stamp(2))
    emit(blk["P"])
    if cfg.stamps: emit(stamp(8))
    a(".p2align 3")
    emit(blk["A"])
    a("    s_branch L_O")
    a(".p2align 7")
    if cfg.pad: a(f".fill {cfg.pad // 4}, 4, 0xbf800000")
    a("L_X:")
    a(f"    s_cmp_eq_u32 {sLEFT}, 1"); a("    s_cbranch_scc1 L_T")
    emit(blk["X"])
    a(".p2align 3")
    if cfg.stamps: a("    s_mov_b64 s[72:73], s[74:75]"); a("    s_nop 0"); emit(stamp(5))
    emit(blk["Y"])
    emit(blk["F"])
    a(".p2align 3"); a("L_Z:")
    if cfg.stamps: emit(stamp(7))
    emit(blk["Z"])
    a(".p2align 3"); a("L_O:")
    emit(blk["O"])
    a("    s_cbranch_scc1 L_X")
    a(".p2align 3")
    emit(blk["E"])
    a("    s_branch L_O")
    a(".p2align 6"); a("L_T:")
    if cfg.stamps: emit(stamp(9))
    emit(blk["T"])
    if cfg.stamps: emit(stamp(3))
    a(f"    s_cmp_lg_u32 {sMODE}, 0"); a("    s_cbranch_scc1 L_todo")
    a(f"    v_mov_b32 v0, {sFLAG}"); a(f"    s_lshl_b32 {sT[0]}, {sWAVE}, 2"); a(f"    s_add_u32 {sT[0]}, {sT[0]}, {FLAGS_LDS}"); a(f"    v_mov_b32 v1, {sT[0]}")
    a("    ds_write_b32 v1, v0"); a("    s_waitcnt lgkmcnt(0)"); a("    s_barrier")
    a(f"    v_mov_b32 v1, {FLAGS_LDS}"); a("    ds_read_b128 v[4:7], v1"); a("    s_waitcnt lgkmcnt(0)")
    a("    v_or_b32 v4, v4, v5"); a("    v_or3_b32 v4, v4, v6, v7"); a("    s_nop 1"); a(f"    v_readfirstlane_b32 {sTODO}, v4"); a(f"    s_mov_b32 {sMODE}, 1"); a("    s_nop 3")
    a("L_todo:")
    a(f"    s_and_b32 {sTODO}, {sTODO}, 7")
    a(f"    s_cbranch_scc0 L_fin")
    a(f"    s_ff1_i32_b32 {sNN}, {sTODO}"); a(f"    s_bitset0_b32 {sTODO}, {sNN}")
    a(f"    s_lshl_b32 {sITEM}, {sNN}, 5"); a(f"    s_add_u32 {sITEM}, {sITEM}, {sXB}"); a(f"    s_mov_b32 {sLEFT}, 1")
    a("    s_waitcnt vmcnt(0) lgkmcnt(0)"); a("    s_barrier"); a("    s_branch L_run")
    a("L_fin:")
    if cfg.stamps:
        a("    s_waitcnt vmcnt(0)")
        a("    s_memtime s[64:65]"); a("    s_memrealtime s[66:67]"); a("    s_waitcnt lgkmcnt(0)")
        a(f"    s_cmp_lg_u32 {sWAVE}, 0"); a("    s_cbranch_scc1 L_end")
        if cfg.stamps == 2:
            a("    s_not_b32 s76, s62"); a("    s_sub_u32 s77, s64, s60"); a("    s_sub_u32 s78, s68, s60"); a("    s_sub_u32 s79, s70, s60"); a("    s_sub_u32 s80, s72, s60")
            a("    s_sub_u32 s81, s66, s62"); a("    s_not_b32 s82, s66"); a("    s_not_b32 s83, s77"); a("    s_not_b32 s84, s78")
            srcs = [66, 76, 62, 82, 77, 83, 78, 84, 79, 80, 81]
            for i, s in enumerate(srcs): a(f"    v_mov_b32 v{i}, s{s}")
            a("    v_mov_b32 v16, 0"); a("    s_mov_b64 exec, 1")
            for i in range(len(srcs)): a(f"    buffer_atomic_umax v{i}, v16, s[56:59], 0 offen offset:{4*i}")
        else:
            order = [2, 8, 4, 5, 7, 9, 3, 0, 0, 0, 0, 0]
            src = [60, 61, 64, 65, 62, 63, 66, 67] + [x for k in order for x in (64 + 2 * k, 65 + 2 * k)]
            for i, s in enumerate(src): a(f"    v_mov_b32 v{i}, s{s}")
            if cfg.trace:
                a("    s_mov_b32 m0, s45"); a("    s_nop 0"); a("    v_writelane_b32 v255, s4, m0"); a("    v_lshlrev_b32 v33, 2, v251"); a("    s_lshl_b32 s41, s2, 8"); a("    s_add_u32 s41, s41, 0x100000")
                a("    buffer_store_dword v255, v33, s[56:59], s41 offen")
            a("    s_lshl_b32 s41, s2, 7"); a("    v_mov_b32 v32, 0"); a("    s_mov_b64 exec, 1")
            for i in range(8): a(f"    buffer_store_dwordx4 v[{4*i}:{4*i+3}], v32, s[56:59], s41 offen offset:{16*i}")
    a("L_end:"); a("    s_endpgm")
    a('.section .rodata,"a"'); a(".p2align 6"); a(f".amdhsa_kernel {NAME}")
    for l in ["next_free_vgpr 512", "next_free_sgpr 102", "accum_offset 256", "group_segment_fixed_size 0", "kernarg_size 48", "user_sgpr_count 2",
              "user_sgpr_kernarg_segment_ptr 1", "system_sgpr_workgroup_id_x 1"]: a("  .amdhsa_" + l)
    a(".end_amdhsa_kernel")
    return "\n".join(out) + "\n"

if __name__ == "__main__":
    kw = {}
    for x in sys.argv[2:]:
        k, v = x.split("=", 1)
        kw[k] = ((" " + v.replace("+", " ")) if v != "-" else "") if k.startswith("pol") else eval(v)
    import subprocess, tempfile, os, io, contextlib
    cfg = Cfg(**kw)
    txt = build(cfg)
    if cfg.ophase is not None:
        with tempfile.TemporaryDirectory() as d:
            open(d + "/t.s", "w").write(txt)
            subprocess.run(["clang", "-x", "assembler", "-target", "amdgcn-amd-amdhsa", "-mcpu=gfx950", "-c", d + "/t.s", "-o", d + "/t.o"], check=True)
            nm = subprocess.run(["llvm-objdump", "-t", d + "/t.o"], capture_output=True, text=True).stdout
        addr = {l.split()[-1]: int(l.split()[0], 16) for l in nm.splitlines() if ".text" in l}
        cfg.pad = (cfg.ophase - addr["L_O"]) % 128
        with contextlib.redirect_stderr(io.StringIO()): txt = build(cfg)
    open(sys.argv[1], "w").write(txt)
```

```python
import sys, struct, math, re
from asmlib import *

NAME = "standalone__gqa_softmax__near_ridge_kernel"
def f2h(x): return "0x%08x" % struct.unpack("<I", struct.pack("<f", x))[0]
CSCALE = (192 ** -0.5) * math.log2(math.e)

class Cfg:
    polkv = " nt"; polq = " nt"; polo = " sc1"
    stamps = False
    nomem = False
    kill = ""
    vsp = 6
    rdend = 38
    q_early = 6
    touch = 0
    trace = 0
    kvpf = 2
    kvpf2 = 3
    kvpf_last = 0
    kvpf_at = 'Y90'
    pad = 0
    ophase = 0
    vtouch = 0
    lfin = 3
    lsp = 3
    lrlo = 0
    stg = (21, 33, 45)
    model = 1
    lk = (2, 4)
    lfin0 = 1
    lin = 6
    learly = (0, 3)
    p2 = 1
    pn = (11, 5, 6, 6, 5, 3)
    lorder = 'K0 A0 K1 B0 A1 B1 K2 A2 K3 B2 A3 B3'
    pf = 16
    pfn = 6
    pfA = 0
    polpf = ''
    exp = ''
    nfw = 12
    zwend = 72
    thresh = 2.0 ** 64
    def __init__(s, **kw): s.__dict__.update(kw)

def Oreg(qb, b): return R("v", (qb * 11 + b) * 4, 4) if b < 11 else R("a", 192 + 4 * qb, 4)
SB = 176; PB = 208
def Sreg(qb, kb): return R("v", SB + qb * 8 + kb * 4, 4)
def Se(qb, e): return f"v{SB + qb * 8 + e}"
def Preg(qb): return R("v", PB + 4 * qb, 4)
KA = ["v224", "v225"]; VA = ["v226", "v227", "v228", "v229"]; VOFF = "v230"; VDR = "v231"
MC = [f"v{232+i}" for i in range(4)]; LS = [f"v{236+i}" for i in range(4)]; LSV = [f"v{240+i}" for i in range(4)]
QA = ["v244", "v245"]; OW = "v246"; VOFO = "v247"; SCW = "v248"; SCR = "v249"; VDR0 = "v250"; VOFV = "v253"
T = ["v251", "v4", "v5", "v6", "v7"]
def Qreg(qb, s): return R("a", (qb * 6 + s) * 4, 4)
def Kreg(kb, s): return R("a", 96 + (kb * 6 + s) * 4, 4)
def Vreg(b): return R("a", 144 + 4 * b, 4)
def Vhalf(b, x): return R("a", 144 + 4 * b + 2 * x, 2)
def DRreg(i): return R("a", 208 + 4 * i, 4)
SRK, SRV, SRQ, SRO = "s[8:11]", "s[12:15]", "s[16:19]", "s[20:23]"
sWAVE, sKEND, sVEND, sNR, sGOF, sC, sCNT, sLEFT, sITEM, sRB, sSTG, sQM, sFLAG = [f"s{i}" for i in range(24, 37)]
sT = [f"s{i}" for i in range(38, 46)]
sQP, sOP = 46, 48
sXB = "s50"
sNN = "s51"
sMODE = "s52"
sTODO = "s53"
sKP, sVP = 6, 54
sKNX, sVNX = 88, 90
sM0 = 4
M0TAB = {("K", 0): 92, ("K", 1): 95, ("V", 0): 98}
def m0reg(which, slot, cb):
    if (which, slot) == ("V", 1): return ["s101", "s37", "s3"][cb]
    return f"s{M0TAB[(which, slot)] + cb}"
KSLOT = [0, 12288]; VSLOT = [24576, 36864]; STG = 49152; STGW = 27648; FLAGS_LDS = 49152 + 4 * 27648
OOR = 0x40000000

def qk_mfmas():
    out = []
    for qb in range(4):
        for kb in range(2):
            for s in range(6):
                out.append(mfma(Sreg(qb, kb), Kreg(kb, s), Qreg(qb, s), "0" if s == 0 else Sreg(qb, kb)))
    return out
def pv_mfmas(c0):
    return [mfma(Oreg(qb, b), Preg(qb), Vreg(b), "0" if c0 else Oreg(qb, b)) for qb in range(4) for b in range(12)]
def k_reads(slot):
    return [ds_read("ds_read_b128", Kreg(kb, s), KA[s & 1], KSLOT[slot] + kb * 6144 + (s >> 1) * 1024) for kb in range(2) for s in range(6)]
def q_reads():
    return [ds_read("ds_read_b128", Qreg(qb, s), QA[s & 1], qb * 6144 + (s >> 1) * 1024) for qb in range(4) for s in range(6)]
def v_reads(slot):
    return [ds_read("ds_read_b64_tr_b16", Vhalf(b, x), VA[b & 3], VSLOT[slot] + x * 6144 + (b >> 2) * 1024) for b in range(12) for x in range(2)]
def kv_dma(cfg, which, slot, tag=None):
    srd = SRK if which == "K" else SRV
    return [(sop("s_mov_b32", "m0", m0reg(which, slot, cb)), dma(VOFF if which == "K" else VOFV, srd, "0", cb * 128, cfg.polkv, tag=tag or which)) for cb in range(3)]
def kv_advance(which, wrap=True):
    lo, end, nx = (8, sKEND, sKNX) if which == "K" else (12, sVEND, sVNX)
    o = [sop("s_add_u32", f"s{lo}", f"s{lo}", "12288"), sop("s_addc_u32", f"s{lo+1}", f"s{lo+1}", "0")]
    if wrap:
        o += [salu(f"s_cmp_eq_u32 s{lo}, {end}", [f"s{lo}", end], ["scc"]),
              sop("s_cselect_b64", R("s", lo, 2), R("s", nx, 2), R("s", lo, 2)), sop("s_cselect_b32", f"s{lo+2}", sNR, f"s{lo+2}")]
    return o

class Op:
    def __init__(s, ins, deps=(), lo=0, hi=95, fixed=None, samegap=()):
        s.ins = ins; s.deps = list(deps); s.lo = lo; s.hi = hi; s.fixed = fixed; s.gap = None; s.samegap = list(samegap)

NEXP_H = 22
def sm_ops(minit=None):
    H, Rr = [], []
    egaps = list(range(2, 96, 3))
    for qb in range(4):
        ready = 12 * qb + 11 + 4
        pre = []
        if minit:
            t, u = MC[qb], LS[qb]
            sv = Op(valu("v_mov_b32", LSV[qb], LS[qb]), lo=(0 if qb < 2 else 12 * qb))
            c = []
            def ch(ins, extra=()):
                o = Op(ins, deps=(c[-1:] if c else []) + list(extra), lo=ready); c.append(o); return o
            if minit == "P":
                ch(valu("v_max3_f32", t, t, Se(qb, 0), Se(qb, 1)))
                ch(valu("v_max3_f32", t, t, Se(qb, 2), Se(qb, 3)))
                ch(valu("v_max3_f32", t, t, Se(qb, 4), Se(qb, 5)))
                ch(valu("v_max3_f32", t, t, Se(qb, 6), Se(qb, 7)))
            else:
                ch(valu("v_max3_f32", t, Se(qb, 0), Se(qb, 1), Se(qb, 2)))
                ch(valu("v_max3_f32", t, t, Se(qb, 3), Se(qb, 4)))
                ch(valu("v_max3_f32", t, t, Se(qb, 5), Se(qb, 6)))
                ch(valu("v_max_f32", t, t, Se(qb, 7)))
            ch(valu("v_mov_b32", u, t), [sv])
            ch(swap("v_permlane32_swap_b32", t, u))
            ch(valu("v_max_f32", t, t, u))
            ch(valu("v_mov_b32", u, t))
            ch(swap("v_permlane16_swap_b32", t, u))
            ch(valu("v_max_f32", t, t, u))
            last = ch(valu("v_mul_f32", t, sC, t))
            z = Op(valu("v_mov_b32", u, "0"), deps=[c[-2]], lo=ready)
            H += [sv] + c + ([z] if qb == 3 else [])
            pre = [last, c[-2]]
        prevadd = None
        ex = []
        for e in range(8):
            n = qb * 8 + e
            inH = n < NEXP_H
            f = Op(valu("v_fma_f32", Se(qb, e), Se(qb, e), sC, "-" + MC[qb]), deps=pre[:1])
            x = Op(valu("v_exp_f32", Se(qb, e), Se(qb, e), kind="E"), deps=[f])
            fH = True
            if fH: f.lo = ready
            else: f.deps = []
            (H if fH else Rr).append(f)
            x.fixed = egaps[(32 - NEXP_H) + n] if inH else egaps[n - NEXP_H]
            if not inH and fH: x.deps = []
            (H if inH else Rr).append(x)
            aH = n < NEXP_H - 2
            a = Op(valu("v_add_f32", LS[qb], LS[qb], Se(qb, e)), deps=([x] if (aH or not inH) else []) + (pre[1:] if aH else []))
            if prevadd is not None and prevadd[1] == aH: a.samegap = [prevadd[0]]
            if not aH: a.hi = 12 * qb - 1
            ex.append((x, inH))
            if minit and qb < 3 and e == 1: a.ins = valu("v_add_f32", LS[qb], Se(qb, 0), Se(qb, 1))
            if not (minit and qb < 3 and e == 0):
                prevadd = (a, aH)
                (H if aH else Rr).append(a)
            if e & 1:
                cv = Op(valu("v_cvt_pk_bf16_f32", f"v{PB + 4*qb + (e >> 1)}", Se(qb, e - 1), Se(qb, e)),
                        deps=[y for (y, h) in ex[-2:] if h == aH])
                if aH: cv.lo = 48 + 12 * qb + 11
                else: cv.hi = 12 * qb - 1
                (H if aH else Rr).append(cv)
        for o in H + Rr:
            if not hasattr(o, "qb"): o.qb = qb
    for k, o in enumerate(H + Rr): o.seq = k
    return H, Rr

def schedule(mf, mem, sal, ops, sq=(), post={}):
    assert all(0 <= g < len(mf) for g in list(mem) + list(sal) + list(post)), (sorted(mem)[-3:], sorted(sal)[-3:])
    sq = list(sq)
    for g in range(len(mf)):
        while sq and sq[0][0] <= g and ((g not in mem and g not in sal) or sq[0][1] <= g):
            sal.setdefault(g, []).append(sq.pop(0)[2])
    assert not sq
    cons = {id(o): [] for o in ops}
    for o in ops:
        for d in o.deps: cons[id(d)].append((o, 1))
        for d in o.samegap: cons[id(d)].append((o, 0))
    def dl(o, memo={}):
        if id(o) in memo: return memo[id(o)]
        v = o.fixed if o.fixed is not None else o.hi
        if o.fixed is None:
            for c, k in cons[id(o)]:
                v = min(v, dl(c, memo) - k - (1 if getattr(c.ins, "perm", False) else 0))
        memo[id(o)] = v
        return v
    memo = {}
    for o in ops: o.dl = dl(o, memo)
    for o in ops: assert o.dl >= o.lo, (o.ins, o.dl, o.lo)
    out = []; over = 0
    todo = [o for o in ops if o.fixed is None]
    fixed = {o.fixed: o for o in ops if o.fixed is not None}
    for g in range(len(mf)):
        if mf[g] is not None: out.append(mf[g])
        m = mem.get(g, []); s = sal.get(g, [])
        room = 2
        out += m; room -= sum(2 if x.kind == 'W' else 1 for x in m)
        out += s; room -= (len(s) if m else max(0, len(s) - 1))
        if MODEL and any(getattr(x, "store", False) for l in mem.values() for x in l):
            if any(getattr(x, "store", False) for x in m): room += 3
            if any(x.text == "s_barrier" for x in s): room -= 2; over -= 0
            if any(getattr(x, "dma", False) for x in m) and not any(x.kind == "G" for k in range(max(0, g - 8), g) for x in mem.get(k, [])): room -= 1
        if g in fixed:
            o = fixed[g]
            assert all(d.gap is not None and d.gap < g for d in o.deps), o.ins
            o.gap = g; out.append(o.ins); room -= 2
        while True:
            rdy = [o for o in todo if o.lo <= g and all(d.gap is not None and d.gap + (1 if getattr(o.ins, "perm", False) else 0) < g for d in o.deps)
                   and all(d.gap is not None for d in o.samegap)]
            if not rdy: break
            cost = lambda o: 2 if (o.ins.kind == "E" or getattr(o.ins, "perm", False)) else 1
            fit = [o for o in rdy if cost(o) <= room or o.dl <= g]
            if not fit: break
            o = min(fit, key=lambda o: (o.dl, -cost(o)))
            o.gap = g; todo.remove(o); out.append(o.ins); room -= cost(o)
        over += max(0, -room)
        out += post.get(g, [])
    assert not todo, [o.ins for o in todo]
    return out, over

def spread(rd, free, M):
    n = len(rd)
    for k, g in enumerate(free):
        while rd and (n - len(rd)) < (n * (k + 1) + len(free) - 1) // len(free) if n > len(free) else (rd and n - len(rd) <= k):
            M(g, rd.pop(0))
    assert not rd

def piece_reads(base, off):
    return [ds_read("ds_read_b64_tr_b16", R("a", base + 2 * x, 2), VDR, off + 64 * x) for x in range(2)]
def drain_reads(n=3): return [r for i in range(n) for r in piece_reads(208 + 4 * i, i * 1024)]
def pc_off(i): return (i // 3) * 3072 + (i % 3) * 128
def o_store(cfg, i): return gstore(DRreg(i), VOFO, SRO, sGOF, pc_off(i), cfg.polo, tag="O")
def q_dma(cfg, i, tag="Q"): return (sop("s_add_u32", "m0", sQM, str((i % 3) * 896)), dma(VOFF, SRQ, "0", pc_off(i), cfg.polq, tag=tag))
def stage_advance(n, o=True):
    return [sop("s_add_u32", "s16", "s16", str(n)), sop("s_addc_u32", "s17", "s17", "0"), sop("s_add_u32", sQM, sQM, str(n))] + ([sop("s_add_u32", sGOF, sGOF, "3072")] if o else [])

def fin_order(): return [(qb, b) for qb in range(4) for b in range(0, 12, 2)]
LIF = lambda qb: SB + 4 * qb
SCROW = [0, 2, 1, 3]

def l_reduce_ops(cfg, deps):
    a, b, c, d = LSV
    s1 = Op(swap("v_permlane32_swap_b32", a, b), deps=deps[:2]); s2 = Op(swap("v_permlane32_swap_b32", c, d), deps=deps[2:])
    a1 = Op(valu("v_add_f32", a, a, b), deps=[s1]); a2 = Op(valu("v_add_f32", c, c, d), deps=[s2])
    s3 = Op(swap("v_permlane16_swap_b32", a, c), deps=[a1, a2]); a3 = Op(valu("v_add_f32", a, a, c), deps=[s3])
    r = Op(I(f"v_rcp_f32 {b}, {a}", "E", [a], [b]), deps=[a3])
    return [s1, s2, a1, a2, s3, a3, r], r

def iteration(cfg, kind):
    par = {"A": 0, "Z": 0, "O": 1, "E": 0, "X": 0, "Y": 1}[kind]
    mf = qk_mfmas() + pv_mfmas(kind in "AZ")
    mem = {}; sal = {}; sq = []
    def M(g, i):
        l = mem.setdefault(g, [])
        l.insert(len([x for x in l if x.kind != "W"]), i) if i.kind == "D" else l.append(i)
    def busy(g): return g in mem and any(x.kind != "W" for x in mem[g])
    def S(g, i): sal.setdefault(g, []).append(i)
    def Q(lo, hi, lst): sq.extend((lo, hi, x) for x in lst)
    ops = sm_ops()[1] + sm_ops({"Y": "Y"}.get(kind))[0]
    sp = cfg.vsp
    nq = {"A": 6, "Z": 3, "E": 3, "Y": 3}.get(kind, 0)
    S(0, salu("s_barrier"))
    for j, (m0, d) in enumerate(kv_dma(cfg, "K", (par + 1) & 1)):
        S(2 + sp * j, m0); M(3 + sp * j, d)
    if kind in "EZX":
        for i in range(3): M(cfg.stg[i], o_store(cfg, i))
    if kind == "A" and cfg.vtouch:
        M(21, I(f"buffer_load_dword v252, v254, s[20:23], 0 offen", "G", ["v254", "s[20:23]"], [], tag="PF"))
        Q(22, 46, [sop("s_mov_b32", "s22", "0")])
    if (kind == "O" or (kind == "A" and cfg.pfA)) and cfg.pf:
        M(21, I(f"buffer_load_dword v252, v254, s[84:87], 0 offen{cfg.polpf}", "G", ["v254", "s[84:87]"], [], tag="PF"))
    if kind == "Z":
        wr = [fin_pair(qb, b, LIF(qb))[1] for qb, b in fin_order()][cfg.nfw:]
        cand = list(range(1, cfg.zwend, 3))
        wg = [cand[int(k * len(cand) / len(wr))] for k in range(len(wr))]
        for g, w in zip(wg, wr): M(g, w)
        assert cfg.nfw >= 8
        for k, d in enumerate(drain_reads(3)): M([6, 6, 7, 7, 12, 12][k], d)
        w = waitcnt(lgkm=0); w.needlg = mem[12][-1]; S(20, w)
        ops.append(Op(valu("v_add_u32", VDR, "3072", VDR), lo=13))
    spread(v_reads(par), [g for g in range(1, cfg.rdend + (5 if kind == "Z" else 0)) if g % 3 != 2 and not busy(g)], M)
    w = waitcnt(vm=0, lgkm=0); w.need = ("K", 2)
    if kind == "Z": w.lgkm = sum(1 for g in range(cfg.rdend + 5, 48) for x in mem.get(g, []) if x.kind == "W")
    S(47, w)
    if kind == "Y": Q(1, 40, newitem_a())
    Q(4 + 2 * sp, 46, kv_advance("K", wrap=(kind == "E")))
    if (kind == "O" or (kind == "A" and cfg.pfA)) and cfg.pf:
        Q(22, 46, [sop("s_add_u32", "s84", "s84", "s0"), sop("s_addc_u32", "s85", "s85", "0"), sop("s_sub_u32", "s1", "s1", "1"), sop("s_cselect_b32", "s86", "0", "s86")])
    if kind == "X" and cfg.kvpf: sq[0:0] = [(1, 46, x) for x in kvpf_setup(cfg)]
    S(48, salu("s_barrier"))
    for j, (m0, d) in enumerate(kv_dma(cfg, "V", par)):
        S(50 + sp * j, m0); M(51 + sp * j, d)
    if kind == "Y": Q(41, 67, newitem_b())
    if kind == "X": Q(49, 70, window_srd(20, sOP, sITEM) + [sop("s_mov_b32", "s22", WIN)])
    qg = [69, 75, 81] if nq == 3 else [66, 69, 75, 78, 84, 87]
    adv = kv_advance("V", wrap=(kind == "O"))
    if nq == 6: Q(64, 64, adv[:2])
    for i in range(nq):
        m0, d = q_dma(cfg, i)
        Q(qg[i] - 1, qg[i] - 1, [m0]); M(qg[i], d)
        if nq == 3 and i == 0: Q(70, 73, adv[:2])
        if nq == 3 and i == 1: Q(76, 79, adv[2:])
    if nq == 6: Q(88, 94, adv[2:])
    if nq == 0: Q(52 + 2 * sp, 90, adv)
    if nq: Q(qg[-1] + 1, 94, stage_advance(nq * 1024, kind != "Y"))
    if kind == cfg.kvpf_at[0] and cfg.kvpf:
        g = int(cfg.kvpf_at[1:])
        M(g, I(f"buffer_load_dword v252, v254, s[84:87], 0 offen{cfg.polpf}", "G", ["v254", "s[84:87]"], [], tag="PF"))
        Q(g + 1, 94, [sop("s_mov_b32", "s86", "0")])
    if kind == "Z" and cfg.kvpf2: sq[2:2] = [(17, 66, x) for x in kvpf2_setup(cfg)]
    rd = k_reads(par) + (q_reads() if kind == "X" else []) + (drain_reads() if kind == "O" else [])
    free = [g for g in range(49, 48 + cfg.rdend) if g % 3 != 2 and not busy(g)]
    if len(rd) <= 12 and kind != "Z": free = [g for g in free if g % 3 == 1]
    elif len(rd) < len(free): free = [free[int(k * len(free) / len(rd))] for k in range(len(rd))]
    spread(rd, free, M)
    if kind == "O": ops.append(Op(valu("v_add_u32", VDR, "3072", VDR), lo=48 + cfg.rdend))
    if kind == "Y":
        ops.append(Op(valu("v_mov_b32", VDR, VDR0)))
        svs = [next(o for o in ops if o.ins.wr == [LSV[q]]) for q in range(4)]
        lr, last = l_reduce_ops(cfg, svs)
        last.hi = 82; ops += lr
        M(85, ds_write("ds_write_b32", SCW, LSV[1], 0))
        fc = flag_check(cfg, LSV[0])
        sq.insert(0, (1, 40, fc[0]))
        ops.append(Op(fc[1], deps=[lr[-2]], hi=86))
        Q(88, 94, fc[2:] + [sop("s_add_u32", sNN, sNN, "1")])
        for o in ops:
            if getattr(o, "qb", 9) < 2 and o.fixed is None: o.hi = min(o.hi, 86)
        for q in range(4): M([87, 87, 88, 88][q], ds_read("ds_read_b128", R("v", LIF(q), 4), SCR, SCROW[q] * 64))
    w = waitcnt(vm=0, lgkm=0); w.need = ("V", 2)
    S(95, w)
    if kind == "O": Q(80, 94, [sop("s_sub_u32", sCNT, sCNT, "1"), salu(f"s_cmp_eq_u32 {sCNT}, 0", [sCNT], ["scc"])])
    out, over = schedule(mf, mem, sal, ops, sq)
    for k, i in enumerate(out):
        if hasattr(i, "needlg"):
            n = sum(1 for x in out[out.index(i.needlg) + 1:k] if x.kind in "DW")
            i.lgkm = n; i.text = f"s_waitcnt lgkmcnt({n})"
    for i in out:
        if "bar" in cfg.kill and i.text == "s_barrier": i.text = "s_nop 0"
        if "dma" in cfg.kill and i.kind == "G": i.text = "s_nop 0"
        if "ds" in cfg.kill and i.kind == "D": i.text = "s_nop 0"
    print(f"iteration {kind}: {len(out)} instrs, overflow slots {over}", file=sys.stderr)
    return out

def linear(ops):
    ops = list(ops); ids = set(id(o) for o in ops); done = {}; out = []
    while ops:
        def rdy(o, slack):
            return all(id(d) not in ids or (id(d) in done and len(out) - done[id(d)] > slack) for d in o.deps + o.samegap)
        o = next((o for o in ops if rdy(o, 2)), None) or next((o for o in ops if rdy(o, 1)), None) or next(o for o in ops if rdy(o, 0))
        ops.remove(o); done[id(o)] = len(out); out.append(o.ins)
    return out

def weave(mf, fill, per=2):
    out = []; fill = list(fill)
    for m in mf:
        out.append(m)
        if m.kind != "M": continue
        room = per
        while fill and room >= (2 if fill[0].kind == "E" else 1):
            f = fill.pop(0); out.append(f); room -= 2 if f.kind == "E" else 1
    return out, fill

def vw(tag, n=1, lgkm=None):
    w = waitcnt(vm=0, lgkm=lgkm); w.need = (tag, n); w.mark = True; return w

def q0_dma(cfg, rg):
    o = []
    for cb in range(3):
        o += [sop("s_add_u32", "m0", sSTG, str(rg * 3072 + cb * 896)), nop(0), dma(VOFF, SRQ, "0", cb * 128, cfg.polq, tag=f"Q{rg}")]
    return o + [sop("s_add_u32", "s16", "s16", "3072"), sop("s_addc_u32", "s17", "s17", "0")]

def prologue(cfg):
    H = sm_ops("P")[0]
    per = [[o for o in H if o.qb == qb] for qb in range(4)]
    qr = q_reads(); mf = qk_mfmas()
    def kv(which, slot, tag=None):
        o = []
        for m0, d in kv_dma(cfg, which, slot, tag): o += [m0, nop(0), d]
        return o + kv_advance(which, wrap=False)
    o = [vw("K0", lgkm=0), salu("s_barrier")] + k_reads(0)
    if cfg.vtouch:
        o += [valu("v_min_u32", "v254", "2", T[0]), valu("v_mul_u32_u24", "v254", "3145728", "v254")] + window_srd(20, sOP, sXB) + [sop("s_mov_b32", "s22", "0" if cfg.nomem else "6316032")]
    o += [valu("v_lshlrev_b32", "v254", "7", T[0])]
    for qb in range(4):
        o += [vw(f"Q{2*qb+1}")] + qr[6 * qb:6 * qb + 6]
        for s in range(6):
            o += [waitcnt(lgkm=5 - s), mf[12 * qb + s]]
        o += mf[12 * qb + 6:12 * qb + 12]
        if qb == 0: o += [label("L_skipq6")] if False else []
        if qb == 0: o += late_q(cfg)
        if qb == 1: o += kv("K", 1, "K1") + kv("V", 0, "V0")
        if qb == 2: o += [salu("s_barrier")] + kv("K", 0) + kv("V", 1) + newitem_a(first=True) + newitem_b()
        if qb == 3: o += [vw("K1"), salu("s_barrier")] + k_reads(1)
        o += linear(per[qb])
    o += [vw("V0", lgkm=0)]
    return o

def sm_full(qb, minit):
    H, Rr = sm_ops(minit)
    ops = [o for o in H + Rr if o.qb == qb]
    last = {}; readers = {}
    for o in sorted(ops, key=lambda o: SM_RANK(o)):
        o.deps = [last[r] for r in set(o.ins.rd + o.ins.wr) if r in last] + [x for r in o.ins.wr for x in readers.get(r, [])]; o.samegap = []
        for r in o.ins.rd: readers.setdefault(r, []).append(o)
        for r in o.ins.wr: last[r] = o; readers[r] = []
    return sorted(ops, key=lambda o: SM_RANK(o))
def SM_RANK(o):
    t = o.ins.text
    if t.startswith("v_fma"): return (1, t)
    if t.startswith("v_exp"): return (2, t)
    if t.startswith("v_add_f32"): return (3, o.ins.rd[-1])
    if t.startswith("v_cvt"): return (4, t)
    return (0, o.seq)

def prologue2(cfg):
    K0 = lambda kb, s: R("a", 208 + (kb * 6 + s) * 4, 4)
    qr = q_reads(); qk1 = qk_mfmas(); pv0 = pv_mfmas(True)
    qk0 = [mfma(Sreg(qb, kb), K0(kb, s), Qreg(qb, s), "0" if s == 0 else Sreg(qb, kb)) for qb in range(4) for kb in range(2) for s in range(6)]
    k0r = [ds_read("ds_read_b128", K0(kb, s), KA[s & 1], KSLOT[0] + kb * 6144 + (s >> 1) * 1024) for kb in range(2) for s in range(6)]
    H1 = sm_ops()[0]
    h1 = [linear([o for o in H1 if o.qb == qb]) for qb in range(4)]
    g = lambda l, q: l[12 * q:12 * q + 12]
    def kv(which, slot, tag=None):
        o = []
        for m0, d in kv_dma(cfg, which, slot, tag): o += [m0, nop(0), d]
        return o + kv_advance(which, wrap=False)
    def first(qb, extra=(), fill=()):
        o = [vw(f"Q{2*qb+1}")] + qr[6 * qb:6 * qb + 6]
        m = []
        for s in range(6): m += [waitcnt(lgkm=5 - s), qk0[12 * qb + s]]
        w, rest = weave(m + qk0[12 * qb + 6:12 * qb + 12], fill)
        return o + w + list(extra) + rest + linear(sm_full(qb, "P"))
    grp = lambda l: [l[3 * k:3 * k + 3] + (l[9:] if k == 2 else []) for k in range(3)]
    pend = init_loads(cfg)[cfg.pn[0]:] + grp(kv("K", 0, "K2")) + grp(kv("V", 1, "V1"))
    def take(n):
        r = [x for d in pend[:n] for x in d]; del pend[:n]; return r
    def sprinkle(o, dmas, skip=8):
        out = []; step = max(1, (len(o) - skip - 2) // (len(dmas) + 1)); dmas = list(dmas)
        for k, x in enumerate(o):
            out.append(x)
            if k >= skip and (k - skip) % step == 0 and dmas: out += dmas.pop(0)
        assert not dmas
        return out
    def takeg(n):
        r = pend[:n]; del pend[:n]; return r
    o = [vw("K0", lgkm=0), salu("s_barrier")] + k0r + [valu("v_lshlrev_b32", "v254", "7", T[0])]
    o += take(cfg.pn[1]) + first(0)
    o += take(cfg.pn[2]) + first(1)
    vr = v_reads(0); kr = k_reads(1)
    assert 21 <= sum(cfg.pn[:4]) <= 33 and sum(cfg.pn[:2]) >= 9 and sum(cfg.pn[:3]) >= 15
    o += take(cfg.pn[3]) + [vw("V0"), salu("s_barrier")] + kr + vr[:12] + newitem_a(first=True) + vr[12:] + [waitcnt(lgkm=15)]
    m = g(qk1, 0) + [waitcnt(lgkm=0), salu("s_barrier")] + g(pv0, 0)[:3]
    w, r0 = weave(g(pv0, 0)[3:] + g(qk1, 1), [x for x in h1[0] if not x.text.startswith("v_cvt")])
    m += w
    w, r1 = weave(g(pv0, 1), r0 + [x for x in h1[0] if x.text.startswith("v_cvt")] + [x for x in h1[1] if not x.text.startswith("v_cvt")])
    m += w + r1 + [x for x in h1[1] if x.text.startswith("v_cvt")]
    o += sprinkle(m, takeg(cfg.pn[4]))
    def ren(ins, qb):
        base = SB + 8 * qb; to = int(regs(Oreg(qb, 9))[0][1:])
        f = lambda r: f"v{int(r[1:]) - base + to}" if r[0] == "v" and r[1:].isdigit() and base <= int(r[1:]) < base + 8 else r
        t = re.sub(r"v\[(\d+):(\d+)\]", lambda m: f"v[{f('v' + m.group(1))[1:]}:{f('v' + m.group(2))[1:]}]", ins.text)
        ins.text = re.sub(r"\bv\d+\b", lambda m: f(m.group(0)), t)
        ins.rd = [f(r) for r in ins.rd]; ins.wr = [f(r) for r in ins.wr]; ins.srcc = [f(r) for r in ins.srcc]
        return ins
    def late(qb, dmas, mid, tailfill):
        o = [vw(f"Q{2*qb+1}")] + qr[6 * qb:6 * qb + 6]
        for s in range(6): o += [waitcnt(lgkm=5 - s), ren(qk0[12 * qb + s], qb)]
        o += [ren(x, qb) for x in qk0[12 * qb + 6:12 * qb + 12]] + g(qk1, qb)[:3]
        w, r = weave(g(qk1, qb)[3:], [ren(x, qb) for x in linear(sm_full(qb, "P"))])
        o += w + r + mid
        nc = [x for x in h1[qb] if not x.text.startswith("v_cvt")]
        w, r = weave(g(pv0, qb), tailfill + nc)
        o += w + r + [x for x in h1[qb] if x.text.startswith("v_cvt")]
        return sprinkle(o, dmas)
    o += take(cfg.pn[5])
    assert len(pend) <= 6
    o += newitem_b() + late(2, takeg(9), [], [])
    dm = [[m0, nop(0), d] for m0, d in kv_dma(cfg, "K", 1) + kv_dma(cfg, "V", 0) + [q_dma(cfg, i) for i in range(6)]]
    o += late(3, dm, [vw("K2"), salu("s_barrier")], k_reads(0))
    o += kv_advance("K", wrap=False) + kv_advance("V", wrap=False) + stage_advance(6144) + [vw("V1", lgkm=0)]
    return o

def init_loads(cfg):
    grp = lambda l: [l[3 * k:3 * k + 3] + (l[9:] if k == 2 else []) for k in range(3)]
    def kv(which, slot, tag):
        o = []
        for m0, d in kv_dma(cfg, which, slot, tag): o += [m0, nop(0), d]
        return grp(o + kv_advance(which, wrap=False))
    l = kv("K", 0, "K0")
    for rg in range(4): l += grp(q0_dma(cfg, rg))
    l += kv("K", 1, "K1") + kv("V", 0, "V0")
    for rg in range(4, 8): l += grp(q0_dma(cfg, rg))
    return l

def late_q(cfg):
    o = []
    for rg in range(cfg.q_early, 8): o += q0_dma(cfg, rg)
    return o

def pkmul(n, l, d=None):
    r2 = R("v", n, 2); l2 = R("v", l, 2); d2 = R("v", n if d is None else d, 2)
    return I(f"v_pk_mul_f32 {d2}, {r2}, {l2}", "V", [r2, l2], [d2])

def fin_pair(qb, b, li):
    cb = b >> 2
    A_, B_, C_ = [int(regs(Oreg(qb, 4 * cb + k))[0][1:]) for k in range(3)]
    D_ = C_ + 4 if cb < 2 else A_ - 4
    Tm = int(LSV[2][1:])
    cv = lambda d, x, y: valu("v_cvt_pk_bf16_f32", f"v{d}", f"v{x}", f"v{y}")
    off = qb * 6144 + (b >> 1) * 512
    if b & 2 == 0:
        o = []
        if cb == 2: o += [I(f"v_accvgpr_read_b32 v{D_+i}, {r}", "V", [r], [f"v{D_+i}"]) for i, r in enumerate(regs(Oreg(qb, 11)))]
        o += [pkmul(A_, li), pkmul(A_ + 2, li + 2, Tm), pkmul(B_, li, A_ + 2), pkmul(C_, li), pkmul(D_, li)]
        o += [cv(A_, A_, A_ + 2), cv(A_ + 2, A_ + 1, A_ + 3), cv(A_ + 1, C_, D_), cv(A_ + 3, C_ + 1, D_ + 1)]
        return o, ds_write("ds_write_b128", OW, R("v", A_, 4), off)
    o = [pkmul(B_ + 2, li + 2), pkmul(C_ + 2, li + 2), pkmul(D_ + 2, li + 2)]
    o += [cv(B_, Tm, B_ + 2), cv(B_ + 2, Tm + 1, B_ + 3), cv(B_ + 1, C_ + 2, D_ + 2), cv(B_ + 3, C_ + 3, D_ + 3)]
    return o, ds_write("ds_write_b128", OW, R("v", B_, 4), off)

def flag_check(cfg, v):
    return [sop("s_mov_b32", sT[4], f2h(cfg.thresh)), I(f"v_cmp_nge_f32 vcc, {sT[4]}, {v}", "V", [sT[4], v], ["vcc"]),
            salu("s_cmp_lg_u64 vcc, 0", ["vcc"], ["scc"]), sop("s_cselect_b32", sT[4], "1", "0"), sop("s_lshl_b32", sT[4], sT[4], sNN), sop("s_or_b32", sFLAG, sFLAG, sT[4])]

def finalize(cfg):
    a, b, c, d = LSV
    o = []
    if cfg.kvpf and cfg.kvpf_at == "F":
        o += [I(f"buffer_load_dword v252, v254, s[84:87], 0 offen{cfg.polpf}", "G", ["v254", "s[84:87]"], [], tag="PF")]
        if cfg.kvpf > 4:
            o += [sop("s_mov_b32", sT[5], "8192"), I(f"buffer_load_dword v252, v254, s[84:87], {sT[5]} offen{cfg.polpf}", "G", ["v254", "s[84:87]", sT[5]], [], tag="PF")]
        o += [sop("s_mov_b32", "s86", "0")]
    o += [I(".p2align 3", "L")]
    pend = []; done = 0
    for k, (qb, b_) in enumerate(fin_order()):
        v, w = fin_pair(qb, b_, LIF(qb))
        o += v; pend.append(w)
        while done < cfg.nfw and done < (k + 1) * cfg.nfw // 24:
            o.append(pend[done]); done += 1
    return o

def last_block(cfg):
    v2base = lambda b: 220 + 4 * b if b < 9 else 4 * (b - 9)
    P2 = lambda qb: R("v", SB + 8 * qb, 4)
    qk = qk_mfmas()
    grp_mf = {"K": lambda q: qk[12 * q:12 * q + 12],
              "A": lambda q: [mfma(Oreg(q, b), Preg(q), Vreg(b), Oreg(q, b)) for b in range(12)],
              "B": lambda q: [mfma(Oreg(q, b), P2(q), R("a", v2base(b), 4), Oreg(q, b)) for b in range(12)]}
    seqm = cfg.lorder.split()
    at = {x: 12 * k for k, x in enumerate(seqm)}
    mf = [m for x in seqm for m in grp_mf[x[0]](int(x[1]))]
    n = len(mf)
    mem = {}; sal = {}; sq = []; post = {}
    def M(g, i):
        l = mem.setdefault(g, [])
        l.insert(len([x for x in l if x.kind != "W"]), i) if i.kind == "D" else l.append(i)
    def S(g, i): sal.setdefault(g, []).append(i)
    ops = sm_ops()[1]
    for o in ops:
        o.fixed = None; o.hi = min(at[f"K{o.qb}"] - 1, at[f"A{o.qb}"] - 2); o.lo = cfg.lrlo
    radd = {q: [o for o in ops if o.qb == q and o.ins.wr == [LS[q]]][-1:] for q in range(4)}
    lrd = []
    for qb in range(4):
        due = at[f"B{qb}"] - 2; end = at[f"B{qb}"] + 11
        adds = []; xs = []; cvs = []
        for e in range(8):
            ready = at[f"K{qb}"] + (9 if e < 4 else 15)
            f = Op(valu("v_fma_f32", Se(qb, e), Se(qb, e), sC, "-" + MC[qb]), lo=ready, hi=due)
            x = Op(valu("v_exp_f32", Se(qb, e), Se(qb, e), kind="E"), deps=[f], hi=due)
            a = Op(valu("v_add_f32", LS[qb], LS[qb], Se(qb, e)), deps=[x], samegap=adds[-1:] or radd[qb], hi=due + 8)
            ops += [f, x, a]; adds.append(a); xs.append(x)
            if e & 1:
                jj = e >> 1
                cv = Op(valu("v_cvt_pk_bf16_f32", Se(qb, jj), Se(qb, e - 1), Se(qb, e)), deps=xs[-2:], samegap=[adds[jj]] + cvs[-1:], hi=due)
                ops.append(cv); cvs.append(cv)
        a_, b_ = LSV[qb & 1], LS[qb]
        c = [adds[-1]]
        def ch(ins):
            o = Op(ins, deps=c[-1:], hi=end - 5); c.append(o); ops.append(o)
        ch(valu("v_mov_b32", a_, b_)); ch(swap("v_permlane32_swap_b32", a_, b_)); ch(valu("v_add_f32", a_, a_, b_))
        ch(valu("v_mov_b32", b_, a_)); ch(swap("v_permlane16_swap_b32", a_, b_)); ch(valu("v_add_f32", b_, a_, b_))
        fc = flag_check(cfg, b_)
        ops.append(Op(fc[1], deps=c[-1:], lo=end - 6, hi=end - 2))
        sq += [(end - 12, end - 8, fc[0])] + [(end - 1, end + 8 if qb < 3 else end, x) for x in fc[2:]]
        ch(I(f"v_rcp_f32 {a_}, {b_}", "E", [b_], [a_]))
        M(end - 4, ds_write("ds_write_b32", SCW, a_, 0))
        lrd.append(ds_read("ds_read_b128", R("v", SB + 8 * qb + 4, 4), SCR, 0)); M(end - 3, lrd[-1])
    S(0, salu("s_barrier"))
    v1 = v_reads(0)
    for b in range(12): M(1 + b, v1[2 * b]); M(1 + b, v1[2 * b + 1])
    for b in (2, 5, 8, 11):
        w = waitcnt(lgkm=0); w.needlg = v1[2 * b + 1]; S(at["A0"] + b - 3, w)
    S(13, waitcnt(vm=0)); S(14, salu("s_barrier"))
    for i in range(3): M(15 + 7 * i, o_store(cfg, i))
    ws_ = window_srd(20, sOP, sITEM)
    sq[0:0] = [(1, 29, x) for x in ws_[:3]] + [(30, 34, x) for x in ws_[3:] + [sop("s_mov_b32", "s22", WIN)]]
    ops.append(Op(valu("v_mov_b32", VDR, VDR0), hi=40))
    v2 = [ds_read("ds_read_b64_tr_b16", R("a", v2base(b) + 2 * x, 2), VA[b & 3], VSLOT[1] + x * 6144 + (b >> 2) * 1024) for b in range(12) for x in range(2)]
    g = 16
    for b in range(12):
        while g in mem or g in sal: g += 1
        M(g, v2[2 * b]); M(g, v2[2 * b + 1]); g += 2
    for b in (2, 5, 8, 11):
        w = waitcnt(lgkm=0); w.needlg = v2[2 * b + 1]; S(at["B0"] + b - 3, w)
    pb = {0: [24, 28, 32, 36, 40, 44], 1: [12, 16, 20, 208, 212, 216], 2: [48, 52, 56, 60, 64, 68], 3: [72, 76, 80, 84, 88, 92]}
    order = [0, 3, 1, 4, 2, 5]
    late = []
    for qb in range(4):
        end = at[f"B{qb}"] + 11
        st = lambda i: gstore(R("a", pb[qb][i], 4), VOFO, SRO, sGOF, pc_off(i), cfg.polo, tag="O")
        grp = [fin_pair(qb, b, SB + 8 * qb + 4) for b in range(0, 12, 2)]
        rds = [piece_reads(pb[qb][i], (6 * qb + i) * 1024) for i in range(6)]
        w = waitcnt(lgkm=0); w.needlg = lrd[qb]
        blk = (late + [nop(3)] if qb == 3 else []) + [w, I(".p2align 3", "L")]
        seq = []
        for k, i in enumerate(order):
            w = waitcnt(lgkm=0); w.needlg = rds[order[k | 1]][1]
            seq.append(([w] if k % 2 == 0 else []) + ([sop("s_mov_b32", sGOF, str(qb * 6144))] if k == 0 else []) + [st(i)])
        defer = []
        nin = 6 if qb == 3 else cfg.lin
        for k, gq in enumerate(grp):
            blk += gq[0]
            if k < nin:
                blk += [gq[1]]
                if k & 1: blk += rds[k >> 1] + rds[3 + (k >> 1)]
                if qb in cfg.learly and k in cfg.lk: blk += seq.pop(0) + seq.pop(0) + [I(".p2align 3", "L")]
            else:
                defer.append([gq[1]])
                if k & 1: defer += [rds[k >> 1], rds[3 + (k >> 1)]]
        if cfg.trace == 3:
            blk = [I("; mark", "L", mark3=True)] + blk + [I("; mark", "L", mark3=True)]
        if qb < 3:
            g0 = end + (cfg.lfin if qb else cfg.lfin0)
            post[g0] = blk
            g = g0 + 1
            for x in defer:
                while g in mem: g += 1
                for ins in x: M(g, ins)
                g += 1 + (x[0].kind == "W")
            g += 4
            for x in seq:
                while g in mem or g - 1 in mem: g += 1
                for ins in x:
                    if g >= n: late.append(ins)
                    elif ins.kind == "S": S(g - 1, ins)
                    else: M(g, ins)
                g += cfg.lsp
        else:
            for x in seq: blk += x
            post[end] = blk
    out, over = schedule(mf, mem, sal, ops, sq, post)
    for k, i in enumerate(out):
        if hasattr(i, "needlg"):
            c = sum(1 for x in out[out.index(i.needlg) + 1:k] if x.kind in "DW")
            assert out.index(i.needlg) < k
            c = min(c, 15)
            i.lgkm = c; i.text = f"s_waitcnt lgkmcnt({c})"
    print(f"last block: {len(out)} instrs, overflow slots {over}", file=sys.stderr)
    return out

def fixnops(seq, name):
    import re
    for _ in range(400):
        p = [x for x in check(seq, name) if "dist" in x]
        if not p: return seq
        for k in range(1, len(seq) + 1):
            q = [x for x in check(seq[:k], name) if "dist" in x]
            if q:
                m = re.search(r"dist (\d+)(?: < (\d+))?", q[0])
                need = int(m.group(2) or 8) - int(m.group(1))
                seq = seq[:k - 1] + [nop(need - 1)] + seq[k - 1:]
                break
    raise RuntimeError("fixnops")

def window_srd(srd_lo, ptr, item):
    return [sop("s_mul_i32", sT[1], item, "98304"), sop("s_mul_i32", sT[2], sWAVE, "24576"), sop("s_add_u32", sT[1], sT[1], sT[2]),
            sop("s_add_u32", f"s{srd_lo}", f"s{ptr}", sT[1]), sop("s_addc_u32", f"s{srd_lo+1}", f"s{ptr+1}", "0")]

def head_base(dst, item):
    return [sop("s_mul_hi_u32", dst, item, "0x55555556"), sop("s_mul_i32", dst, dst, "196608"), sop("s_add_u32", dst, dst, sRB)]

def newitem_a(first=False):
    o = [] if first else [sop("s_sub_u32", sLEFT, sLEFT, "1"), sop("s_add_u32", sITEM, sITEM, "32")]
    o += head_base(sT[0], sITEM) + [sop("s_add_u32", sT[0], sT[0], "196608"), sop("s_add_u32", sKEND, f"s{sKP}", sT[0]), sop("s_add_u32", sVEND, f"s{sVP}", sT[0])]
    o += [sop("s_add_u32", sT[3], sITEM, "32"), sop("s_min_u32", sT[3], sT[3], "767")]
    o += head_base(sT[0], sT[3])
    o += [sop("s_add_u32", f"s{sKNX}", f"s{sKP}", sT[0]), sop("s_addc_u32", f"s{sKNX+1}", f"s{sKP+1}", "0")]
    return o
def kv_slice(cfg, item, unit, first_tile, last_left):
    a_, b_, c_ = sT[5], sT[6], sT[2]
    return [sop("s_mul_hi_u32", a_, item, "0x55555556"), sop("s_mul_i32", b_, a_, "3"), sop("s_sub_u32", c_, item, b_), sop("s_mul_i32", a_, a_, "196608"),
            sop("s_lshl_b32", b_, sLEFT, "8"), sop("s_add_u32", b_, b_, "s2"), salu(f"s_cmp_lt_u32 {b_}, {256 * last_left + 16}", [b_], ["scc"]),
            sop("s_cselect_b32", b_, "3", "2"), sop("s_subb_u32", c_, c_, "0"), sop("s_mul_i32", b_, b_, str(unit)),
            sop("s_lshl_b32", c_, c_, "1"), salu(f"s_bitcmp1_b32 {sWAVE}, 0", [sWAVE], ["scc"]), sop("s_addc_u32", c_, c_, "0"), sop("s_mul_i32", c_, c_, b_),
            sop("s_add_u32", a_, a_, c_), sop("s_add_u32", a_, a_, str(first_tile * 12288)),
            salu(f"s_cmp_lt_u32 {sWAVE}, 2", [sWAVE], ["scc"]), sop("s_cselect_b64", "s[84:85]", R("s", sKP, 2), R("s", sVP, 2)),
            sop("s_add_u32", "s84", "s84", a_), sop("s_addc_u32", "s85", "s85", "0")]

def kvpf_setup(cfg):
    assert cfg.kvpf <= 2
    return [sop("s_add_u32", sT[4], sITEM, "32")] + kv_slice(cfg, sT[4], cfg.kvpf * 1024, 16 - cfg.kvpf, 2) + (
           [salu(f"s_cmp_eq_u32 {sLEFT}, 2", [sLEFT], ["scc"]), sop("s_cselect_b32", "s86", sT[6], "0")] if cfg.kvpf_last else [sop("s_mov_b32", "s86", "0" if cfg.nomem else sT[6])])

def kvpf2_setup(cfg):
    return kv_slice(cfg, sITEM, 1024, 16 - cfg.kvpf - cfg.kvpf2, 1) + [
            salu(f"s_cmp_eq_u32 {sLEFT}, 1", [sLEFT], ["scc"]), sop("s_cselect_b32", "s86", "0" if cfg.nomem else sT[6], "0"),
            sop("s_mov_b32", "s0", "12288"), sop("s_mov_b32", "s1", str(cfg.kvpf2 - 1))]

def newitem_b():
    o = [sop("s_add_u32", f"s{sVNX}", f"s{sVP}", sT[0]), sop("s_addc_u32", f"s{sVNX+1}", f"s{sVP+1}", "0")]
    o += window_srd(16, sQP, sT[3])
    o += [salu(f"s_cmp_gt_u32 {sLEFT}, 1", [sLEFT], ["scc"]), sop("s_cselect_b32", sNR, KVWIN, "0"), sop("s_cselect_b32", "s18", QWIN, "0"),
          sop("s_mov_b32", sGOF, "0"), sop("s_mov_b32", sQM, sSTG), sop("s_mov_b32", sCNT, "7")]
    return o

def setup(cfg):
    o = []
    x = lambda t: o.append(salu(t))
    x("s_cmp_ge_u32 s2, 256"); x("s_cbranch_scc1 L_end")
    x(f"s_load_dwordx4 s[4:7], s[0:1], 0"); x(f"s_load_dwordx2 s[{sVP}:{sVP+1}], s[0:1], 16"); x(f"s_load_dwordx2 s[{sOP}:{sOP+1}], s[0:1], 24")
    if cfg.stamps: x("s_memtime s[60:61]"); x("s_memrealtime s[62:63]")
    if cfg.stamps: x(f"s_load_dwordx2 s[56:57], s[0:1], {32 if cfg.stamps == 2 else 40}")
    L, N, G, A, B_ = T
    o += [valu("v_lshrrev_b32", A, "6", "v0"), valu("v_and_b32", L, "63", "v0"), I(f"v_readfirstlane_b32 {sWAVE}, {A}", "V", [A], [sWAVE])]
    o += [valu("v_lshrrev_b32", A, "3", L), valu("v_and_b32", B_, "7", L), valu("v_xor_b32", B_, B_, A), valu("v_mul_u32_u24", A, "384", A), valu("v_lshl_add_u32", VOFF, B_, "4", A)]
    o += [valu("v_lshrrev_b32", N, "4", L), valu("v_and_b32", B_, "7", L), valu("v_xor_b32", B_, B_, N), valu("v_lshl_add_u32", VOFV, B_, "4", A)]
    o += [sop("s_mul_i32", sRB, sWAVE, "3072"), sop("s_mul_i32", sSTG, sWAVE, str(STGW)), sop("s_add_u32", sSTG, sSTG, str(STG)), sop("s_mov_b32", sC, f2h(CSCALE))]
    o += [sop("s_and_b32", sT[0], "s2", "7"), sop("s_mul_i32", sT[0], sT[0], "96"), sop("s_lshr_b32", sT[1], "s2", "3"), sop("s_add_u32", sXB, sT[0], sT[1])]
    for lo in (8, 12): x(f"s_mov_b32 s{lo+3}, 0x20000")
    for which, tab in (("K", KSLOT), ("V", VSLOT)):
        for slot in range(2):
            for cb in range(3): o.append(sop("s_add_u32", m0reg(which, slot, cb), sRB, str(tab[slot] + cb * 896)))
    x("s_mov_b32 s19, 0x20000"); x("s_mov_b32 s23, 0x20000")
    if cfg.stamps: x(f"s_mov_b32 s58, {256 if cfg.stamps == 2 else 301989888}"); x("s_mov_b32 s59, 0x20000")
    o += [sop("s_mov_b32", sITEM, sXB), sop("s_mov_b32", sLEFT, "3"), sop("s_mov_b32", sNN, "0"), sop("s_mov_b32", sFLAG, "0"), sop("s_mov_b32", sMODE, "0"), sop("s_mov_b32", sTODO, "0")]
    x("s_waitcnt lgkmcnt(0)")
    x(f"s_mov_b32 s{sQP}, s4"); x(f"s_mov_b32 s{sQP+1}, s5")
    return o

def addr_setup():
    L, N, G, A, B_ = T
    o = [valu("v_and_b32", N, "15", L), valu("v_lshrrev_b32", G, "4", L)]
    o += [valu("v_lshrrev_b32", A, "3", N), valu("v_mul_u32_u24", "v0", "3072", A), valu("v_and_b32", "v1", "7", N), valu("v_lshl_add_u32", "v0", "v1", "7", "v0")]
    for e in range(2):
        o += [valu("v_add_u32", A, str(4 * e), G), valu("v_xor_b32", A, A, "v1"), valu("v_lshl_add_u32", KA[e], A, "4", "v0"), valu("v_add_u32", QA[e], sSTG, KA[e])]
    o += [valu("v_lshrrev_b32", "v2", "5", L), valu("v_mul_u32_u24", "v3", "3072", "v2"), valu("v_and_b32", A, "31", L), valu("v_lshl_add_u32", "v3", A, "4", "v3"),
          valu("v_add_u32", "v3", sSTG, "v3"), valu("v_add_u32", OW, "3072", "v3")]
    o += [valu("v_lshrrev_b32", A, "3", L), valu("v_mul_u32_u24", A, "384", A), valu("v_and_b32", B_, "7", L), valu("v_lshl_add_u32", VOFO, B_, "4", A)]
    o += [valu("v_lshlrev_b32", "v3", "8", "v2"), valu("v_and_b32", A, "1", G), valu("v_lshl_add_u32", "v3", A, "9", "v3"), valu("v_and_b32", A, "1", L), valu("v_lshl_add_u32", "v3", A, "7", "v3"),
          valu("v_bfe_u32", A, L, "2", "2"), valu("v_lshl_add_u32", "v3", A, "4", "v3"), valu("v_bfe_u32", A, L, "1", "1"), valu("v_lshl_add_u32", "v3", A, "3", "v3"),
          valu("v_add_u32", "v3", sSTG, "v3"), valu("v_add_u32", VDR0, "3072", "v3")]
    o += [valu("v_mov_b32", A, sWAVE), valu("v_lshlrev_b32", A, "8", A), valu("v_add_u32", A, str(FLAGS_LDS + 256), A), valu("v_lshl_add_u32", SCW, L, "2", A), valu("v_lshl_add_u32", SCR, G, "4", A)]
    o += [valu("v_lshrrev_b32", B_, "2", L), valu("v_lshrrev_b32", A, "3", B_), valu("v_mul_u32_u24", "v0", "3072", A), valu("v_and_b32", "v1", "7", B_),
          valu("v_lshl_add_u32", "v0", "v1", "7", "v0"), valu("v_and_b32", A, "1", L), valu("v_lshl_add_u32", "v0", A, "3", "v0"), valu("v_bfe_u32", "v2", L, "1", "1"),
          valu("v_lshl_add_u32", "v0", "v2", "6", "v0"), valu("v_lshrrev_b32", "v1", "1", "v1")]
    for j in range(4):
        o += [valu("v_xor_b32", A, str(j), "v1"), valu("v_lshl_add_u32", VA[j], A, "4", "v0")]
    for qb in range(4): o += [valu("v_mov_b32", MC[qb], "0xff800000"), valu("v_mov_b32", LS[qb], "0")]
    return o

def touch_pages(cfg):
    o = []
    def ld(ptr, off): o.append(salu(f"s_load_dword s4, s[{ptr}:{ptr+1}], {off}"))
    o += [sop("s_min_u32", sT[1], sWAVE, "2"), sop("s_lshl_b32", sT[1], sT[1], "5"), sop("s_add_u32", sT[1], sT[1], sXB), sop("s_mul_i32", sT[2], sT[1], "98304")]
    ld(sOP, sT[2])
    if cfg.touch > 1: ld(sQP, sT[2])
    o += [sop("s_add_u32", sT[3], sT[2], "98300")]
    ld(sOP, sT[3])
    if cfg.touch > 1:
        ld(sQP, sT[3])
        o += [sop("s_mul_hi_u32", sT[4], sT[1], "0x55555556"), sop("s_mul_i32", sT[4], sT[4], "196608")]
        ld(sKP, sT[4]); ld(sVP, sT[4])
        o += [sop("s_add_u32", sT[5], sT[4], "196604")]
        ld(sKP, sT[5]); ld(sVP, sT[5])
    return o

def start_run(cfg):
    o = head_base(sT[0], sITEM)
    o += [sop("s_add_u32", "s8", f"s{sKP}", sT[0]), sop("s_addc_u32", "s9", f"s{sKP+1}", "0"), sop("s_mov_b32", "s10", KVWIN)]
    if cfg.p2:
        il = init_loads(cfg)[:cfg.pn[0]]
        o += [x for d in il[:3] for x in d]
        o += window_srd(16, sQP, sITEM) + [sop("s_mov_b32", "s18", QWIN)]
        o += [sop("s_add_u32", "s12", f"s{sVP}", sT[0]), sop("s_addc_u32", "s13", f"s{sVP+1}", "0"), sop("s_mov_b32", "s14", KVWIN)]
        o += [x for d in il[3:] for x in d]
    else:
        for m0, d in kv_dma(cfg, "K", 0, "K0"): o += [m0, nop(0), d]
        o += window_srd(16, sQP, sITEM) + [sop("s_mov_b32", "s18", QWIN)]
        for rg in range(cfg.q_early): o += q0_dma(cfg, rg)
    fill = addr_setup(); mixed = []
    for x in o:
        if x.text == "s_nop 0" and fill:
            mixed += fill[:6]; del fill[:6]
        else: mixed.append(x)
    o = mixed + fill
    if cfg.touch: o += touch_pages(cfg)
    if not cfg.p2: o += kv_advance("K", wrap=False) + [sop("s_add_u32", "s12", f"s{sVP}", sT[0]), sop("s_addc_u32", "s13", f"s{sVP+1}", "0"), sop("s_mov_b32", "s14", KVWIN)]
    o += [sop("s_mov_b32", "s20", f"s{sOP}"), sop("s_mov_b32", "s21", f"s{sOP+1}"), sop("s_mov_b32", "s22", "0"), valu("v_add_u32", VDR, "3072", VDR0)]
    if cfg.pf:
        o += [sop("s_add_u32", sT[4], sXB, "64")] + window_srd(84, sQP, sT[4])
        o += [salu(f"s_cmp_eq_u32 {sLEFT}, 3", [sLEFT], ["scc"]), sop("s_cselect_b32", "s86", "0" if cfg.nomem else str(cfg.pf * 128), "0"), sop("s_mov_b32", "s87", "0x20000"),
              sop("s_mov_b32", "s0", str(24576 // cfg.pfn)), sop("s_mov_b32", "s1", str(cfg.pfn - 1))]
    if cfg.exp == "early_o":
        o += [sop("s_add_u32", sT[4], sITEM, "64")] + window_srd(20, sOP, sT[4]) + [sop("s_mov_b32", "s22", WIN)]
    return o

def max_pass(cfg):
    L, N, G, A, B_ = T
    o = [valu("v_and_b32", N, "15", L), valu("v_lshrrev_b32", G, "4", L), valu("v_mul_u32_u24", A, "384", N), valu("v_lshl_add_u32", A, G, "4", A)]
    o += window_srd(20, sQP, sITEM) + [sop("s_mov_b32", "s22", WIN)]
    for qb in range(4):
        o.append(sop("s_mov_b32", sT[5], str(qb * 6144)))
        for s in range(6): o.append(gload(Qreg(qb, s), A, SRO, sT[5], s * 64))
    o += [sop("s_mul_hi_u32", sT[5], sITEM, "0x55555556"), sop("s_mul_i32", sT[5], sT[5], "196608"), sop("s_mov_b32", sT[6], "16")]
    o += [sop("s_mov_b32", "s20", f"s{sKP}"), sop("s_mov_b32", "s21", f"s{sKP+1}"), sop("s_mov_b32", "s22", "0" if cfg.nomem else "50331648")]
    o += [label("L_maxloop")]
    body = []
    for kb in range(2):
        if kb: body.append(sop("s_add_u32", sT[5], sT[5], "6144"))
        for s in range(6): body.append(gload(Kreg(kb, s), A, SRO, sT[5], s * 64))
    body += [sop("s_add_u32", sT[5], sT[5], "6144"), waitcnt(vm=0)]
    body += qk_mfmas() + [nop(7)]
    for qb in range(4):
        for e in range(0, 8, 2): body.append(valu("v_max3_f32", MC[qb], MC[qb], Se(qb, e), Se(qb, e + 1)))
    body += [sop("s_sub_u32", sT[6], sT[6], "1"), salu(f"s_cmp_lg_u32 {sT[6]}, 0"), salu("s_cbranch_scc1 L_maxloop")]
    return o + body + [sop("s_mov_b32", "s20", f"s{sOP}"), sop("s_mov_b32", "s21", f"s{sOP+1}"), sop("s_mov_b32", "s22", "0")]

def stamp(idx):
    if TR3: return []
    return [salu(f"s_memtime s[{64+2*idx}:{65+2*idx}]")]

def build(cfg):
    cfg._m = 68
    global WIN, KVWIN, QWIN, TR3, MODEL
    MODEL = cfg.model
    TR3 = cfg.trace == 3
    WIN = "0" if cfg.nomem else "24576"
    KVWIN = "0" if cfg.nomem else "3072"
    QWIN = "0" if cfg.nomem else "6144"
    blk = {}
    for k in "AZOEXY": blk[k] = fixnops(iteration(cfg, k), k)
    blk["setup"] = fixnops(setup(cfg), "setup")
    blk["start"] = fixnops(start_run(cfg), "start")
    blk["max"] = max_pass(cfg)
    blk["P"] = fixnops((prologue2 if cfg.p2 else prologue)(cfg), "P")
    if cfg.p2: blk["A"] = []
    blk["F"] = fixnops(finalize(cfg), "F")
    blk["T"] = fixnops(last_block(cfg), "T")
    br = lambda t: [salu(t)]
    def item(z="Z"): return blk[z] + (br("b") if z == "A" else []) + (blk["O"] + br("b") + blk["E"] + br("b")) * 6 + blk["O"] + br("b") + br("b") + br("b")
    mid = blk["X"] + blk["Y"] + blk["F"]
    tr1 = blk["setup"] + blk["start"] + br("b") + br("b") + blk["P"] + item("A") + mid + item() + mid + item() + blk["T"]
    tr2 = blk["setup"] + blk["start"] + br("b") + br("b") + blk["max"] + blk["P"] + item("A") + blk["T"]
    best = {}
    for tr in (tr1, tr2):
        vm = []
        for ins in tr:
            if ins.kind == "G": vm.append(ins.tag)
            if getattr(ins, "need", None):
                tag, nb = ins.need
                seen = 0; cnt = None
                for j in range(len(vm) - 1, -1, -1):
                    if vm[j] == tag:
                        if seen == 3 * (nb - 1): cnt = len(vm) - 1 - j; break
                        seen += 1
                assert cnt is not None
                best[id(ins)] = (min(cnt, best.get(id(ins), (99,))[0]), ins)
    for cnt, ins in best.values():
        ins.vm = cnt; ins.text = f"s_waitcnt vmcnt({cnt})" + (f" lgkmcnt({ins.lgkm})" if ins.lgkm is not None else "")
    for tr, n in ((tr1, "tr1"), (tr2, "tr2")):
        p = check(tr, n)
        for x in sorted(set(p)): print("HAZARD", x, file=sys.stderr)
        assert not p
    out = []
    a = out.append
    def emit(seq):
        if cfg.trace == 1 and any(seq is blk[k] for k in "AZOEXYTF"):
            a("    s_mov_b32 m0, s45"); a("    s_nop 0"); a("    v_writelane_b32 v255, s4, m0"); a("    s_add_u32 s45, s45, 1"); a("    s_nop 0"); a("    s_memtime s[4:5]")
        tp = ["    s_memtime s[4:5]", "    s_waitcnt lgkmcnt(0)", "    s_mov_b32 m0, s45", "    s_nop 0", "    v_writelane_b32 v255, s4, m0", "    s_add_u32 s45, s45, 1"]
        for i in seq:
            mk = cfg.trace == 2 and getattr(i, "mark", False)
            if mk: out.extend(tp)
            if cfg.trace == 3 and (getattr(i, "mark3", False) or (seq is blk["T"] and (i is seq[0] or i is seq[-1]))):
                out.extend([f"    s_memtime s[{cfg._m}:{cfg._m+1}]"]); cfg._m += 2
            a(("" if i.kind == "L" else "    ") + i.text)
            if mk: out.extend(tp)
    a("; @launch grid=(256,1,1) block=(256,1,1) lds=163840")
    a('.amdgcn_target "amdgcn-amd-amdhsa--gfx950"'); a(".text"); a(f".globl {NAME}"); a(".p2align 8"); a(f".type {NAME},@function"); a(f"{NAME}:")
    emit(blk["setup"])
    a("L_run:")
    emit(blk["start"])
    a(f"    s_cmp_eq_u32 {sMODE}, 0"); a("    s_cbranch_scc1 L_k0")
    emit(blk["max"])
    a("L_k0:")
    if cfg.trace: a("    s_mov_b32 s45, 0"); a("    s_mov_b32 s4, s60")
    if cfg.trace == 2: a("    v_writelane_b32 v255, s4, 0"); a("    s_mov_b32 s45, 1")
    if cfg.stamps: emit(stamp(2))
    emit(blk["P"])
    if cfg.stamps: emit(stamp(8))
    a(".p2align 3")
    emit(blk["A"])
    a("    s_branch L_O")
    a(".p2align 7")
    if cfg.pad: a(f".fill {cfg.pad // 4}, 4, 0xbf800000")
    a("L_X:")
    a(f"    s_cmp_eq_u32 {sLEFT}, 1"); a("    s_cbranch_scc1 L_T")
    emit(blk["X"])
    a(".p2align 3")
    if cfg.stamps: a("    s_mov_b64 s[72:73], s[74:75]"); a("    s_nop 0"); emit(stamp(5))
    emit(blk["Y"])
    emit(blk["F"])
    a(".p2align 3"); a("L_Z:")
    if cfg.stamps: emit(stamp(7))
    emit(blk["Z"])
    a(".p2align 3"); a("L_O:")
    emit(blk["O"])
    a("    s_cbranch_scc1 L_X")
    a(".p2align 3")
    emit(blk["E"])
    a("    s_branch L_O")
    a(".p2align 6"); a("L_T:")
    if cfg.stamps: emit(stamp(9))
    emit(blk["T"])
    if cfg.stamps: emit(stamp(3))
    a(f"    s_cmp_lg_u32 {sMODE}, 0"); a("    s_cbranch_scc1 L_todo")
    a(f"    v_mov_b32 v0, {sFLAG}"); a(f"    s_lshl_b32 {sT[0]}, {sWAVE}, 2"); a(f"    s_add_u32 {sT[0]}, {sT[0]}, {FLAGS_LDS}"); a(f"    v_mov_b32 v1, {sT[0]}")
    a("    ds_write_b32 v1, v0"); a("    s_waitcnt lgkmcnt(0)"); a("    s_barrier")
    a(f"    v_mov_b32 v1, {FLAGS_LDS}"); a("    ds_read_b128 v[4:7], v1"); a("    s_waitcnt lgkmcnt(0)")
    a("    v_or_b32 v4, v4, v5"); a("    v_or3_b32 v4, v4, v6, v7"); a("    s_nop 1"); a(f"    v_readfirstlane_b32 {sTODO}, v4"); a(f"    s_mov_b32 {sMODE}, 1"); a("    s_nop 3")
    a("L_todo:")
    a(f"    s_and_b32 {sTODO}, {sTODO}, 7")
    a(f"    s_cbranch_scc0 L_fin")
    a(f"    s_ff1_i32_b32 {sNN}, {sTODO}"); a(f"    s_bitset0_b32 {sTODO}, {sNN}")
    a(f"    s_lshl_b32 {sITEM}, {sNN}, 5"); a(f"    s_add_u32 {sITEM}, {sITEM}, {sXB}"); a(f"    s_mov_b32 {sLEFT}, 1")
    a("    s_waitcnt vmcnt(0) lgkmcnt(0)"); a("    s_barrier"); a("    s_branch L_run")
    a("L_fin:")
    if cfg.stamps:
        a("    s_waitcnt vmcnt(0)")
        a("    s_memtime s[64:65]"); a("    s_memrealtime s[66:67]"); a("    s_waitcnt lgkmcnt(0)")
        a(f"    s_cmp_lg_u32 {sWAVE}, 0"); a("    s_cbranch_scc1 L_end")
        if cfg.stamps == 2:
            a("    s_not_b32 s76, s62"); a("    s_sub_u32 s77, s64, s60"); a("    s_sub_u32 s78, s68, s60"); a("    s_sub_u32 s79, s70, s60"); a("    s_sub_u32 s80, s72, s60")
            a("    s_sub_u32 s81, s66, s62"); a("    s_not_b32 s82, s66"); a("    s_not_b32 s83, s77"); a("    s_not_b32 s84, s78")
            srcs = [66, 76, 62, 82, 77, 83, 78, 84, 79, 80, 81]
            for i, s in enumerate(srcs): a(f"    v_mov_b32 v{i}, s{s}")
            a("    v_mov_b32 v16, 0"); a("    s_mov_b64 exec, 1")
            for i in range(len(srcs)): a(f"    buffer_atomic_umax v{i}, v16, s[56:59], 0 offen offset:{4*i}")
        else:
            order = [2, 8, 4, 5, 7, 9, 3, 0, 0, 0, 0, 0] if cfg.trace != 3 else [2, 3, 4, 5, 6, 7, 8, 9, 10, 11, 0, 0]
            src = [60, 61, 64, 65, 62, 63, 66, 67] + [x for k in order for x in (64 + 2 * k, 65 + 2 * k)]
            for i, s in enumerate(src): a(f"    v_mov_b32 v{i}, s{s}")
            if cfg.trace:
                a("    s_mov_b32 m0, s45"); a("    s_nop 0"); a("    v_writelane_b32 v255, s4, m0"); a("    v_lshlrev_b32 v33, 2, v251"); a("    s_lshl_b32 s41, s2, 8"); a("    s_add_u32 s41, s41, 0x100000")
                a("    buffer_store_dword v255, v33, s[56:59], s41 offen")
            a("    s_lshl_b32 s41, s2, 7"); a("    v_mov_b32 v32, 0"); a("    s_mov_b64 exec, 1")
            for i in range(8): a(f"    buffer_store_dwordx4 v[{4*i}:{4*i+3}], v32, s[56:59], s41 offen offset:{16*i}")
    a("L_end:"); a("    s_endpgm")
    a('.section .rodata,"a"'); a(".p2align 6"); a(f".amdhsa_kernel {NAME}")
    for l in ["next_free_vgpr 512", "next_free_sgpr 102", "accum_offset 256", "group_segment_fixed_size 0", "kernarg_size 48", "user_sgpr_count 2",
              "user_sgpr_kernarg_segment_ptr 1", "system_sgpr_workgroup_id_x 1"]: a("  .amdhsa_" + l)
    a(".end_amdhsa_kernel")
    return "\n".join(out) + "\n"

if __name__ == "__main__":
    kw = {}
    for x in sys.argv[2:]:
        k, v = x.split("=", 1)
        kw[k] = ((" " + v.replace("+", " ")) if v != "-" else "") if k.startswith("pol") else eval(v)
    import subprocess, tempfile, os, io, contextlib
    cfg = Cfg(**kw)
    txt = build(cfg)
    if cfg.ophase is not None:
        with tempfile.TemporaryDirectory() as d:
            open(d + "/t.s", "w").write(txt)
            subprocess.run(["clang", "-x", "assembler", "-target", "amdgcn-amd-amdhsa", "-mcpu=gfx950", "-c", d + "/t.s", "-o", d + "/t.o"], check=True)
            nm = subprocess.run(["llvm-objdump", "-t", d + "/t.o"], capture_output=True, text=True).stdout
        addr = {l.split()[-1]: int(l.split()[0], 16) for l in nm.splitlines() if ".text" in l}
        cfg.pad = (cfg.ophase - addr["L_O"]) % 128
        with contextlib.redirect_stderr(io.StringIO()): txt = build(cfg)
    open(sys.argv[1], "w").write(txt)
```

```python
import sys, struct, math, re
from asmlib import *

NAME = "standalone__gqa_softmax__near_ridge_kernel"
def f2h(x): return "0x%08x" % struct.unpack("<I", struct.pack("<f", x))[0]
CSCALE = (192 ** -0.5) * math.log2(math.e)

class Cfg:
    polkv = " nt"; polq = " nt"; polo = " sc1"
    stamps = False
    nomem = False
    kill = ""
    vsp = 6
    rdend = 38
    q_early = 6
    touch = 0
    trace = 0
    kvpf = 2
    kvpf2 = 3
    kvpf_last = 0
    kvpf_at = 'Y90'
    pad = 0
    ophase = 0
    vtouch = 0
    lfin = 3
    lsp = 3
    lrlo = 0
    cpf = 0
    stg = (21, 33, 45)
    model = 1
    lk = (2, 4)
    lfin0 = 1
    lin = 6
    learly = (0, 3)
    p2 = 1
    pn = (11, 5, 6, 6, 5, 3)
    lorder = 'K0 A0 K1 B0 A1 B1 K2 A2 K3 B2 A3 B3'
    pf = 16
    pfn = 6
    pfA = 0
    polpf = ''
    exp = ''
    nfw = 12
    zwend = 72
    thresh = 2.0 ** 64
    def __init__(s, **kw): s.__dict__.update(kw)

def Oreg(qb, b): return R("v", (qb * 11 + b) * 4, 4) if b < 11 else R("a", 192 + 4 * qb, 4)
SB = 176; PB = 208
def Sreg(qb, kb): return R("v", SB + qb * 8 + kb * 4, 4)
def Se(qb, e): return f"v{SB + qb * 8 + e}"
def Preg(qb): return R("v", PB + 4 * qb, 4)
KA = ["v224", "v225"]; VA = ["v226", "v227", "v228", "v229"]; VOFF = "v230"; VDR = "v231"
MC = [f"v{232+i}" for i in range(4)]; LS = [f"v{236+i}" for i in range(4)]; LSV = [f"v{240+i}" for i in range(4)]
QA = ["v244", "v245"]; OW = "v246"; VOFO = "v247"; SCW = "v248"; SCR = "v249"; VDR0 = "v250"; VOFV = "v253"
T = ["v251", "v4", "v5", "v6", "v7"]
def Qreg(qb, s): return R("a", (qb * 6 + s) * 4, 4)
def Kreg(kb, s): return R("a", 96 + (kb * 6 + s) * 4, 4)
def Vreg(b): return R("a", 144 + 4 * b, 4)
def Vhalf(b, x): return R("a", 144 + 4 * b + 2 * x, 2)
def DRreg(i): return R("a", 208 + 4 * i, 4)
SRK, SRV, SRQ, SRO = "s[8:11]", "s[12:15]", "s[16:19]", "s[20:23]"
sWAVE, sKEND, sVEND, sNR, sGOF, sC, sCNT, sLEFT, sITEM, sRB, sSTG, sQM, sFLAG = [f"s{i}" for i in range(24, 37)]
sT = [f"s{i}" for i in range(38, 46)]
sQP, sOP = 46, 48
sXB = "s50"
sNN = "s51"
sMODE = "s52"
sTODO = "s53"
sKP, sVP = 6, 54
sKNX, sVNX = 88, 90
sM0 = 4
M0TAB = {("K", 0): 92, ("K", 1): 95, ("V", 0): 98}
def m0reg(which, slot, cb):
    if (which, slot) == ("V", 1): return ["s101", "s37", "s3"][cb]
    return f"s{M0TAB[(which, slot)] + cb}"
KSLOT = [0, 12288]; VSLOT = [24576, 36864]; STG = 49152; STGW = 27648; FLAGS_LDS = 49152 + 4 * 27648
OOR = 0x40000000

def qk_mfmas():
    out = []
    for qb in range(4):
        for kb in range(2):
            for s in range(6):
                out.append(mfma(Sreg(qb, kb), Kreg(kb, s), Qreg(qb, s), "0" if s == 0 else Sreg(qb, kb)))
    return out
def pv_mfmas(c0):
    return [mfma(Oreg(qb, b), Preg(qb), Vreg(b), "0" if c0 else Oreg(qb, b)) for qb in range(4) for b in range(12)]
def k_reads(slot):
    return [ds_read("ds_read_b128", Kreg(kb, s), KA[s & 1], KSLOT[slot] + kb * 6144 + (s >> 1) * 1024) for kb in range(2) for s in range(6)]
def q_reads():
    return [ds_read("ds_read_b128", Qreg(qb, s), QA[s & 1], qb * 6144 + (s >> 1) * 1024) for qb in range(4) for s in range(6)]
def v_reads(slot):
    return [ds_read("ds_read_b64_tr_b16", Vhalf(b, x), VA[b & 3], VSLOT[slot] + x * 6144 + (b >> 2) * 1024) for b in range(12) for x in range(2)]
def kv_dma(cfg, which, slot, tag=None):
    srd = SRK if which == "K" else SRV
    return [(sop("s_mov_b32", "m0", m0reg(which, slot, cb)), dma(VOFF if which == "K" else VOFV, srd, "0", cb * 128, cfg.polkv, tag=tag or which)) for cb in range(3)]
def kv_advance(which, wrap=True):
    lo, end, nx = (8, sKEND, sKNX) if which == "K" else (12, sVEND, sVNX)
    o = [sop("s_add_u32", f"s{lo}", f"s{lo}", "12288"), sop("s_addc_u32", f"s{lo+1}", f"s{lo+1}", "0")]
    if wrap:
        o += [salu(f"s_cmp_eq_u32 s{lo}, {end}", [f"s{lo}", end], ["scc"]),
              sop("s_cselect_b64", R("s", lo, 2), R("s", nx, 2), R("s", lo, 2)), sop("s_cselect_b32", f"s{lo+2}", sNR, f"s{lo+2}")]
    return o

class Op:
    def __init__(s, ins, deps=(), lo=0, hi=95, fixed=None, samegap=()):
        s.ins = ins; s.deps = list(deps); s.lo = lo; s.hi = hi; s.fixed = fixed; s.gap = None; s.samegap = list(samegap)

NEXP_H = 22
def sm_ops(minit=None):
    H, Rr = [], []
    egaps = list(range(2, 96, 3))
    for qb in range(4):
        ready = 12 * qb + 11 + 4
        pre = []
        if minit:
            t, u = MC[qb], LS[qb]
            sv = Op(valu("v_mov_b32", LSV[qb], LS[qb]), lo=(0 if qb < 2 else 12 * qb))
            c = []
            def ch(ins, extra=()):
                o = Op(ins, deps=(c[-1:] if c else []) + list(extra), lo=ready); c.append(o); return o
            if minit == "P":
                ch(valu("v_max3_f32", t, t, Se(qb, 0), Se(qb, 1)))
                ch(valu("v_max3_f32", t, t, Se(qb, 2), Se(qb, 3)))
                ch(valu("v_max3_f32", t, t, Se(qb, 4), Se(qb, 5)))
                ch(valu("v_max3_f32", t, t, Se(qb, 6), Se(qb, 7)))
            else:
                ch(valu("v_max3_f32", t, Se(qb, 0), Se(qb, 1), Se(qb, 2)))
                ch(valu("v_max3_f32", t, t, Se(qb, 3), Se(qb, 4)))
                ch(valu("v_max3_f32", t, t, Se(qb, 5), Se(qb, 6)))
                ch(valu("v_max_f32", t, t, Se(qb, 7)))
            ch(valu("v_mov_b32", u, t), [sv])
            ch(swap("v_permlane32_swap_b32", t, u))
            ch(valu("v_max_f32", t, t, u))
            ch(valu("v_mov_b32", u, t))
            ch(swap("v_permlane16_swap_b32", t, u))
            ch(valu("v_max_f32", t, t, u))
            last = ch(valu("v_mul_f32", t, sC, t))
            z = Op(valu("v_mov_b32", u, "0"), deps=[c[-2]], lo=ready)
            H += [sv] + c + ([z] if qb == 3 else [])
            pre = [last, c[-2]]
        prevadd = None
        ex = []
        for e in range(8):
            n = qb * 8 + e
            inH = n < NEXP_H
            f = Op(valu("v_fma_f32", Se(qb, e), Se(qb, e), sC, "-" + MC[qb]), deps=pre[:1])
            x = Op(valu("v_exp_f32", Se(qb, e), Se(qb, e), kind="E"), deps=[f])
            fH = True
            if fH: f.lo = ready
            else: f.deps = []
            (H if fH else Rr).append(f)
            x.fixed = egaps[(32 - NEXP_H) + n] if inH else egaps[n - NEXP_H]
            if not inH and fH: x.deps = []
            (H if inH else Rr).append(x)
            aH = n < NEXP_H - 2
            a = Op(valu("v_add_f32", LS[qb], LS[qb], Se(qb, e)), deps=([x] if (aH or not inH) else []) + (pre[1:] if aH else []))
            if prevadd is not None and prevadd[1] == aH: a.samegap = [prevadd[0]]
            if not aH: a.hi = 12 * qb - 1
            ex.append((x, inH))
            if minit and qb < 3 and e == 1: a.ins = valu("v_add_f32", LS[qb], Se(qb, 0), Se(qb, 1))
            if not (minit and qb < 3 and e == 0):
                prevadd = (a, aH)
                (H if aH else Rr).append(a)
            if e & 1:
                cv = Op(valu("v_cvt_pk_bf16_f32", f"v{PB + 4*qb + (e >> 1)}", Se(qb, e - 1), Se(qb, e)),
                        deps=[y for (y, h) in ex[-2:] if h == aH])
                if aH: cv.lo = 48 + 12 * qb + 11
                else: cv.hi = 12 * qb - 1
                (H if aH else Rr).append(cv)
        for o in H + Rr:
            if not hasattr(o, "qb"): o.qb = qb
    for k, o in enumerate(H + Rr): o.seq = k
    return H, Rr

def schedule(mf, mem, sal, ops, sq=(), post={}):
    assert all(0 <= g < len(mf) for g in list(mem) + list(sal) + list(post)), (sorted(mem)[-3:], sorted(sal)[-3:])
    sq = list(sq)
    for g in range(len(mf)):
        while sq and sq[0][0] <= g and ((g not in mem and g not in sal) or sq[0][1] <= g):
            sal.setdefault(g, []).append(sq.pop(0)[2])
    assert not sq
    cons = {id(o): [] for o in ops}
    for o in ops:
        for d in o.deps: cons[id(d)].append((o, 1))
        for d in o.samegap: cons[id(d)].append((o, 0))
    def dl(o, memo={}):
        if id(o) in memo: return memo[id(o)]
        v = o.fixed if o.fixed is not None else o.hi
        if o.fixed is None:
            for c, k in cons[id(o)]:
                v = min(v, dl(c, memo) - k - (1 if getattr(c.ins, "perm", False) else 0))
        memo[id(o)] = v
        return v
    memo = {}
    for o in ops: o.dl = dl(o, memo)
    for o in ops: assert o.dl >= o.lo, (o.ins, o.dl, o.lo)
    out = []; over = 0
    todo = [o for o in ops if o.fixed is None]
    fixed = {o.fixed: o for o in ops if o.fixed is not None}
    for g in range(len(mf)):
        if mf[g] is not None: out.append(mf[g])
        m = mem.get(g, []); s = sal.get(g, [])
        room = 2
        out += m; room -= sum(2 if x.kind == 'W' else 1 for x in m)
        out += s; room -= (len(s) if m else max(0, len(s) - 1))
        if MODEL and any(getattr(x, "store", False) for l in mem.values() for x in l):
            if any(getattr(x, "store", False) for x in m): room += 3
            if any(x.text == "s_barrier" for x in s): room -= 2; over -= 0
            if any(getattr(x, "dma", False) for x in m) and not any(x.kind == "G" for k in range(max(0, g - 8), g) for x in mem.get(k, [])): room -= 1
        if g in fixed:
            o = fixed[g]
            assert all(d.gap is not None and d.gap < g for d in o.deps), o.ins
            o.gap = g; out.append(o.ins); room -= 2
        while True:
            rdy = [o for o in todo if o.lo <= g and all(d.gap is not None and d.gap + (1 if getattr(o.ins, "perm", False) else 0) < g for d in o.deps)
                   and all(d.gap is not None for d in o.samegap)]
            if not rdy: break
            cost = lambda o: 2 if (o.ins.kind == "E" or getattr(o.ins, "perm", False)) else 1
            fit = [o for o in rdy if cost(o) <= room or o.dl <= g]
            if not fit: break
            o = min(fit, key=lambda o: (o.dl, -cost(o)))
            o.gap = g; todo.remove(o); out.append(o.ins); room -= cost(o)
        over += max(0, -room)
        out += post.get(g, [])
    assert not todo, [o.ins for o in todo]
    return out, over

def spread(rd, free, M):
    n = len(rd)
    for k, g in enumerate(free):
        while rd and (n - len(rd)) < (n * (k + 1) + len(free) - 1) // len(free) if n > len(free) else (rd and n - len(rd) <= k):
            M(g, rd.pop(0))
    assert not rd

def piece_reads(base, off):
    return [ds_read("ds_read_b64_tr_b16", R("a", base + 2 * x, 2), VDR, off + 64 * x) for x in range(2)]
def drain_reads(n=3): return [r for i in range(n) for r in piece_reads(208 + 4 * i, i * 1024)]
def pc_off(i): return (i // 3) * 3072 + (i % 3) * 128
def o_store(cfg, i): return gstore(DRreg(i), VOFO, SRO, sGOF, pc_off(i), cfg.polo, tag="O")
def q_dma(cfg, i, tag="Q"): return (sop("s_add_u32", "m0", sQM, str((i % 3) * 896)), dma(VOFF, SRQ, "0", pc_off(i), cfg.polq, tag=tag))
def stage_advance(n, o=True):
    return [sop("s_add_u32", "s16", "s16", str(n)), sop("s_addc_u32", "s17", "s17", "0"), sop("s_add_u32", sQM, sQM, str(n))] + ([sop("s_add_u32", sGOF, sGOF, "3072")] if o else [])

def fin_order(): return [(qb, b) for qb in range(4) for b in range(0, 12, 2)]
LIF = lambda qb: SB + 4 * qb
SCROW = [0, 2, 1, 3]

def l_reduce_ops(cfg, deps):
    a, b, c, d = LSV
    s1 = Op(swap("v_permlane32_swap_b32", a, b), deps=deps[:2]); s2 = Op(swap("v_permlane32_swap_b32", c, d), deps=deps[2:])
    a1 = Op(valu("v_add_f32", a, a, b), deps=[s1]); a2 = Op(valu("v_add_f32", c, c, d), deps=[s2])
    s3 = Op(swap("v_permlane16_swap_b32", a, c), deps=[a1, a2]); a3 = Op(valu("v_add_f32", a, a, c), deps=[s3])
    r = Op(I(f"v_rcp_f32 {b}, {a}", "E", [a], [b]), deps=[a3])
    return [s1, s2, a1, a2, s3, a3, r], r

def iteration(cfg, kind):
    par = {"A": 0, "Z": 0, "O": 1, "E": 0, "X": 0, "Y": 1}[kind]
    mf = qk_mfmas() + pv_mfmas(kind in "AZ")
    mem = {}; sal = {}; sq = []
    def M(g, i):
        l = mem.setdefault(g, [])
        l.insert(len([x for x in l if x.kind != "W"]), i) if i.kind == "D" else l.append(i)
    def busy(g): return g in mem and any(x.kind != "W" for x in mem[g])
    def S(g, i): sal.setdefault(g, []).append(i)
    def Q(lo, hi, lst): sq.extend((lo, hi, x) for x in lst)
    ops = sm_ops()[1] + sm_ops({"Y": "Y"}.get(kind))[0]
    sp = cfg.vsp
    nq = {"A": 6, "Z": 3, "E": 3, "Y": 3}.get(kind, 0)
    S(0, salu("s_barrier"))
    for j, (m0, d) in enumerate(kv_dma(cfg, "K", (par + 1) & 1)):
        S(2 + sp * j, m0); M(3 + sp * j, d)
    if kind in "EZX":
        for i in range(3): M(cfg.stg[i], o_store(cfg, i))
    if kind == "A" and cfg.vtouch:
        M(21, I(f"buffer_load_dword v252, v254, s[20:23], 0 offen", "G", ["v254", "s[20:23]"], [], tag="PF"))
        Q(22, 46, [sop("s_mov_b32", "s22", "0")])
    if (kind == "O" or (kind == "A" and cfg.pfA)) and cfg.pf:
        M(21, I(f"buffer_load_dword v252, v254, s[84:87], 0 offen{cfg.polpf}", "G", ["v254", "s[84:87]"], [], tag="PF"))
    if kind == "Z":
        wr = [fin_pair(qb, b, LIF(qb))[1] for qb, b in fin_order()][cfg.nfw:]
        cand = list(range(1, cfg.zwend, 3))
        wg = [cand[int(k * len(cand) / len(wr))] for k in range(len(wr))]
        for g, w in zip(wg, wr): M(g, w)
        assert cfg.nfw >= 8
        for k, d in enumerate(drain_reads(3)): M([6, 6, 7, 7, 12, 12][k], d)
        w = waitcnt(lgkm=0); w.needlg = mem[12][-1]; S(20, w)
        ops.append(Op(valu("v_add_u32", VDR, "3072", VDR), lo=13))
    spread(v_reads(par), [g for g in range(1, cfg.rdend + (5 if kind == "Z" else 0)) if g % 3 != 2 and not busy(g)], M)
    w = waitcnt(vm=0, lgkm=0); w.need = ("K", 2)
    if kind == "Z": w.lgkm = sum(1 for g in range(cfg.rdend + 5, 48) for x in mem.get(g, []) if x.kind == "W")
    S(47, w)
    if kind == "Y": Q(1, 40, newitem_a())
    Q(4 + 2 * sp, 46, kv_advance("K", wrap=(kind == "E")))
    if (kind == "O" or (kind == "A" and cfg.pfA)) and cfg.pf:
        Q(22, 46, [sop("s_add_u32", "s84", "s84", "s0"), sop("s_addc_u32", "s85", "s85", "0"), sop("s_sub_u32", "s1", "s1", "1"), sop("s_cselect_b32", "s86", "0", "s86")])
    if kind == "X" and cfg.kvpf: sq[0:0] = [(1, 46, x) for x in kvpf_setup(cfg)]
    S(48, salu("s_barrier"))
    for j, (m0, d) in enumerate(kv_dma(cfg, "V", par)):
        S(50 + sp * j, m0); M(51 + sp * j, d)
    if kind == "Y": Q(41, 67, newitem_b())
    if kind == "X": Q(49, 70, window_srd(20, sOP, sITEM) + [sop("s_mov_b32", "s22", WIN)])
    qg = [69, 75, 81] if nq == 3 else [66, 69, 75, 78, 84, 87]
    adv = kv_advance("V", wrap=(kind == "O"))
    if nq == 6: Q(64, 64, adv[:2])
    for i in range(nq):
        m0, d = q_dma(cfg, i)
        Q(qg[i] - 1, qg[i] - 1, [m0]); M(qg[i], d)
        if nq == 3 and i == 0: Q(70, 73, adv[:2])
        if nq == 3 and i == 1: Q(76, 79, adv[2:])
    if nq == 6: Q(88, 94, adv[2:])
    if nq == 0: Q(52 + 2 * sp, 90, adv)
    if nq: Q(qg[-1] + 1, 94, stage_advance(nq * 1024, kind != "Y"))
    if kind == cfg.kvpf_at[0] and cfg.kvpf:
        g = int(cfg.kvpf_at[1:])
        M(g, I(f"buffer_load_dword v252, v254, s[84:87], 0 offen{cfg.polpf}", "G", ["v254", "s[84:87]"], [], tag="PF"))
        Q(g + 1, 94, [sop("s_mov_b32", "s86", "0")])
    if kind == "Z" and cfg.kvpf2: sq[2:2] = [(17, 66, x) for x in kvpf2_setup(cfg)]
    rd = k_reads(par) + (q_reads() if kind == "X" else []) + (drain_reads() if kind == "O" else [])
    free = [g for g in range(49, 48 + cfg.rdend) if g % 3 != 2 and not busy(g)]
    if len(rd) <= 12 and kind != "Z": free = [g for g in free if g % 3 == 1]
    elif len(rd) < len(free): free = [free[int(k * len(free) / len(rd))] for k in range(len(rd))]
    spread(rd, free, M)
    if kind == "O": ops.append(Op(valu("v_add_u32", VDR, "3072", VDR), lo=48 + cfg.rdend))
    if kind == "Y":
        ops.append(Op(valu("v_mov_b32", VDR, VDR0)))
        svs = [next(o for o in ops if o.ins.wr == [LSV[q]]) for q in range(4)]
        lr, last = l_reduce_ops(cfg, svs)
        last.hi = 82; ops += lr
        M(85, ds_write("ds_write_b32", SCW, LSV[1], 0))
        fc = flag_check(cfg, LSV[0])
        sq.insert(0, (1, 40, fc[0]))
        ops.append(Op(fc[1], deps=[lr[-2]], hi=86))
        Q(88, 94, fc[2:] + [sop("s_add_u32", sNN, sNN, "1")])
        for o in ops:
            if getattr(o, "qb", 9) < 2 and o.fixed is None: o.hi = min(o.hi, 86)
        for q in range(4): M([87, 87, 88, 88][q], ds_read("ds_read_b128", R("v", LIF(q), 4), SCR, SCROW[q] * 64))
    w = waitcnt(vm=0, lgkm=0); w.need = ("V", 2)
    S(95, w)
    if kind == "O": Q(80, 94, [sop("s_sub_u32", sCNT, sCNT, "1"), salu(f"s_cmp_eq_u32 {sCNT}, 0", [sCNT], ["scc"])])
    out, over = schedule(mf, mem, sal, ops, sq)
    for k, i in enumerate(out):
        if hasattr(i, "needlg"):
            n = sum(1 for x in out[out.index(i.needlg) + 1:k] if x.kind in "DW")
            i.lgkm = n; i.text = f"s_waitcnt lgkmcnt({n})"
    for i in out:
        if "bar" in cfg.kill and i.text == "s_barrier": i.text = "s_nop 0"
        if "dma" in cfg.kill and i.kind == "G": i.text = "s_nop 0"
        if "ds" in cfg.kill and i.kind == "D": i.text = "s_nop 0"
    print(f"iteration {kind}: {len(out)} instrs, overflow slots {over}", file=sys.stderr)
    return out

def linear(ops):
    ops = list(ops); ids = set(id(o) for o in ops); done = {}; out = []
    while ops:
        def rdy(o, slack):
            return all(id(d) not in ids or (id(d) in done and len(out) - done[id(d)] > slack) for d in o.deps + o.samegap)
        o = next((o for o in ops if rdy(o, 2)), None) or next((o for o in ops if rdy(o, 1)), None) or next(o for o in ops if rdy(o, 0))
        ops.remove(o); done[id(o)] = len(out); out.append(o.ins)
    return out

def weave(mf, fill, per=2):
    out = []; fill = list(fill)
    for m in mf:
        out.append(m)
        if m.kind != "M": continue
        room = per
        while fill and room >= (2 if fill[0].kind == "E" else 1):
            f = fill.pop(0); out.append(f); room -= 2 if f.kind == "E" else 1
    return out, fill

def vw(tag, n=1, lgkm=None):
    w = waitcnt(vm=0, lgkm=lgkm); w.need = (tag, n); w.mark = True; return w

def q0_dma(cfg, rg):
    o = []
    for cb in range(3):
        o += [sop("s_add_u32", "m0", sSTG, str(rg * 3072 + cb * 896)), nop(0), dma(VOFF, SRQ, "0", cb * 128, cfg.polq, tag=f"Q{rg}")]
    return o + [sop("s_add_u32", "s16", "s16", "3072"), sop("s_addc_u32", "s17", "s17", "0")]

def prologue(cfg):
    H = sm_ops("P")[0]
    per = [[o for o in H if o.qb == qb] for qb in range(4)]
    qr = q_reads(); mf = qk_mfmas()
    def kv(which, slot, tag=None):
        o = []
        for m0, d in kv_dma(cfg, which, slot, tag): o += [m0, nop(0), d]
        return o + kv_advance(which, wrap=False)
    o = [vw("K0", lgkm=0), salu("s_barrier")] + k_reads(0)
    if cfg.vtouch:
        o += [valu("v_min_u32", "v254", "2", T[0]), valu("v_mul_u32_u24", "v254", "3145728", "v254")] + window_srd(20, sOP, sXB) + [sop("s_mov_b32", "s22", "0" if cfg.nomem else "6316032")]
    o += [valu("v_lshlrev_b32", "v254", "7", T[0])]
    for qb in range(4):
        o += [vw(f"Q{2*qb+1}")] + qr[6 * qb:6 * qb + 6]
        for s in range(6):
            o += [waitcnt(lgkm=5 - s), mf[12 * qb + s]]
        o += mf[12 * qb + 6:12 * qb + 12]
        if qb == 0: o += [label("L_skipq6")] if False else []
        if qb == 0: o += late_q(cfg)
        if qb == 1: o += kv("K", 1, "K1") + kv("V", 0, "V0")
        if qb == 2: o += [salu("s_barrier")] + kv("K", 0) + kv("V", 1) + newitem_a(first=True) + newitem_b()
        if qb == 3: o += [vw("K1"), salu("s_barrier")] + k_reads(1)
        o += linear(per[qb])
    o += [vw("V0", lgkm=0)]
    return o

def sm_full(qb, minit):
    H, Rr = sm_ops(minit)
    ops = [o for o in H + Rr if o.qb == qb]
    last = {}; readers = {}
    for o in sorted(ops, key=lambda o: SM_RANK(o)):
        o.deps = [last[r] for r in set(o.ins.rd + o.ins.wr) if r in last] + [x for r in o.ins.wr for x in readers.get(r, [])]; o.samegap = []
        for r in o.ins.rd: readers.setdefault(r, []).append(o)
        for r in o.ins.wr: last[r] = o; readers[r] = []
    return sorted(ops, key=lambda o: SM_RANK(o))
def SM_RANK(o):
    t = o.ins.text
    if t.startswith("v_fma"): return (1, t)
    if t.startswith("v_exp"): return (2, t)
    if t.startswith("v_add_f32"): return (3, o.ins.rd[-1])
    if t.startswith("v_cvt"): return (4, t)
    return (0, o.seq)

def prologue2(cfg):
    K0 = lambda kb, s: R("a", 208 + (kb * 6 + s) * 4, 4)
    qr = q_reads(); qk1 = qk_mfmas(); pv0 = pv_mfmas(True)
    qk0 = [mfma(Sreg(qb, kb), K0(kb, s), Qreg(qb, s), "0" if s == 0 else Sreg(qb, kb)) for qb in range(4) for kb in range(2) for s in range(6)]
    k0r = [ds_read("ds_read_b128", K0(kb, s), KA[s & 1], KSLOT[0] + kb * 6144 + (s >> 1) * 1024) for kb in range(2) for s in range(6)]
    H1 = sm_ops()[0]
    h1 = [linear([o for o in H1 if o.qb == qb]) for qb in range(4)]
    g = lambda l, q: l[12 * q:12 * q + 12]
    def kv(which, slot, tag=None):
        o = []
        for m0, d in kv_dma(cfg, which, slot, tag): o += [m0, nop(0), d]
        return o + kv_advance(which, wrap=False)
    def first(qb, extra=(), fill=()):
        o = [vw(f"Q{2*qb+1}")] + qr[6 * qb:6 * qb + 6]
        m = []
        for s in range(6): m += [waitcnt(lgkm=5 - s), qk0[12 * qb + s]]
        w, rest = weave(m + qk0[12 * qb + 6:12 * qb + 12], fill)
        return o + w + list(extra) + rest + linear(sm_full(qb, "P"))
    grp = lambda l: [l[3 * k:3 * k + 3] + (l[9:] if k == 2 else []) for k in range(3)]
    pend = init_loads(cfg)[cfg.pn[0]:] + grp(kv("K", 0, "K2")) + grp(kv("V", 1, "V1"))
    def take(n):
        r = [x for d in pend[:n] for x in d]; del pend[:n]; return r
    def sprinkle(o, dmas, skip=8):
        out = []; step = max(1, (len(o) - skip - 2) // (len(dmas) + 1)); dmas = list(dmas)
        for k, x in enumerate(o):
            out.append(x)
            if k >= skip and (k - skip) % step == 0 and dmas: out += dmas.pop(0)
        assert not dmas
        return out
    def takeg(n):
        r = pend[:n]; del pend[:n]; return r
    o = [vw("K0", lgkm=0), salu("s_barrier")] + k0r + [valu("v_lshlrev_b32", "v254", "7", T[0])]
    o += take(cfg.pn[1]) + first(0)
    o += take(cfg.pn[2]) + first(1)
    vr = v_reads(0); kr = k_reads(1)
    assert 21 <= sum(cfg.pn[:4]) <= 33 and sum(cfg.pn[:2]) >= 9 and sum(cfg.pn[:3]) >= 15
    o += take(cfg.pn[3]) + [vw("V0"), salu("s_barrier")] + kr + vr[:12] + newitem_a(first=True) + vr[12:] + [waitcnt(lgkm=15)]
    m = g(qk1, 0) + [waitcnt(lgkm=0), salu("s_barrier")] + g(pv0, 0)[:3]
    w, r0 = weave(g(pv0, 0)[3:] + g(qk1, 1), [x for x in h1[0] if not x.text.startswith("v_cvt")])
    m += w
    w, r1 = weave(g(pv0, 1), r0 + [x for x in h1[0] if x.text.startswith("v_cvt")] + [x for x in h1[1] if not x.text.startswith("v_cvt")])
    m += w + r1 + [x for x in h1[1] if x.text.startswith("v_cvt")]
    o += sprinkle(m, takeg(cfg.pn[4]))
    def ren(ins, qb):
        base = SB + 8 * qb; to = int(regs(Oreg(qb, 9))[0][1:])
        f = lambda r: f"v{int(r[1:]) - base + to}" if r[0] == "v" and r[1:].isdigit() and base <= int(r[1:]) < base + 8 else r
        t = re.sub(r"v\[(\d+):(\d+)\]", lambda m: f"v[{f('v' + m.group(1))[1:]}:{f('v' + m.group(2))[1:]}]", ins.text)
        ins.text = re.sub(r"\bv\d+\b", lambda m: f(m.group(0)), t)
        ins.rd = [f(r) for r in ins.rd]; ins.wr = [f(r) for r in ins.wr]; ins.srcc = [f(r) for r in ins.srcc]
        return ins
    def late(qb, dmas, mid, tailfill):
        o = [vw(f"Q{2*qb+1}")] + qr[6 * qb:6 * qb + 6]
        for s in range(6): o += [waitcnt(lgkm=5 - s), ren(qk0[12 * qb + s], qb)]
        o += [ren(x, qb) for x in qk0[12 * qb + 6:12 * qb + 12]] + g(qk1, qb)[:3]
        w, r = weave(g(qk1, qb)[3:], [ren(x, qb) for x in linear(sm_full(qb, "P"))])
        o += w + r + mid
        nc = [x for x in h1[qb] if not x.text.startswith("v_cvt")]
        w, r = weave(g(pv0, qb), tailfill + nc)
        o += w + r + [x for x in h1[qb] if x.text.startswith("v_cvt")]
        return sprinkle(o, dmas)
    o += take(cfg.pn[5])
    assert len(pend) <= 6
    o += newitem_b() + late(2, takeg(9), [], [])
    dm = [[m0, nop(0), d] for m0, d in kv_dma(cfg, "K", 1) + kv_dma(cfg, "V", 0) + [q_dma(cfg, i) for i in range(6)]]
    o += late(3, dm, [vw("K2"), salu("s_barrier")], k_reads(0))
    o += kv_advance("K", wrap=False) + kv_advance("V", wrap=False) + stage_advance(6144) + [vw("V1", lgkm=0)]
    return o

def init_loads(cfg):
    grp = lambda l: [l[3 * k:3 * k + 3] + (l[9:] if k == 2 else []) for k in range(3)]
    def kv(which, slot, tag):
        o = []
        for m0, d in kv_dma(cfg, which, slot, tag): o += [m0, nop(0), d]
        return grp(o + kv_advance(which, wrap=False))
    l = kv("K", 0, "K0")
    for rg in range(4): l += grp(q0_dma(cfg, rg))
    l += kv("K", 1, "K1") + kv("V", 0, "V0")
    for rg in range(4, 8): l += grp(q0_dma(cfg, rg))
    return l

def late_q(cfg):
    o = []
    for rg in range(cfg.q_early, 8): o += q0_dma(cfg, rg)
    return o

def pkmul(n, l, d=None):
    r2 = R("v", n, 2); l2 = R("v", l, 2); d2 = R("v", n if d is None else d, 2)
    return I(f"v_pk_mul_f32 {d2}, {r2}, {l2}", "V", [r2, l2], [d2])

def fin_pair(qb, b, li):
    cb = b >> 2
    A_, B_, C_ = [int(regs(Oreg(qb, 4 * cb + k))[0][1:]) for k in range(3)]
    D_ = C_ + 4 if cb < 2 else A_ - 4
    Tm = int(LSV[2][1:])
    cv = lambda d, x, y: valu("v_cvt_pk_bf16_f32", f"v{d}", f"v{x}", f"v{y}")
    off = qb * 6144 + (b >> 1) * 512
    if b & 2 == 0:
        o = []
        if cb == 2: o += [I(f"v_accvgpr_read_b32 v{D_+i}, {r}", "V", [r], [f"v{D_+i}"]) for i, r in enumerate(regs(Oreg(qb, 11)))]
        o += [pkmul(A_, li), pkmul(A_ + 2, li + 2, Tm), pkmul(B_, li, A_ + 2), pkmul(C_, li), pkmul(D_, li)]
        o += [cv(A_, A_, A_ + 2), cv(A_ + 2, A_ + 1, A_ + 3), cv(A_ + 1, C_, D_), cv(A_ + 3, C_ + 1, D_ + 1)]
        return o, ds_write("ds_write_b128", OW, R("v", A_, 4), off)
    o = [pkmul(B_ + 2, li + 2), pkmul(C_ + 2, li + 2), pkmul(D_ + 2, li + 2)]
    o += [cv(B_, Tm, B_ + 2), cv(B_ + 2, Tm + 1, B_ + 3), cv(B_ + 1, C_ + 2, D_ + 2), cv(B_ + 3, C_ + 3, D_ + 3)]
    return o, ds_write("ds_write_b128", OW, R("v", B_, 4), off)

def flag_check(cfg, v):
    return [sop("s_mov_b32", sT[4], f2h(cfg.thresh)), I(f"v_cmp_nge_f32 vcc, {sT[4]}, {v}", "V", [sT[4], v], ["vcc"]),
            salu("s_cmp_lg_u64 vcc, 0", ["vcc"], ["scc"]), sop("s_cselect_b32", sT[4], "1", "0"), sop("s_lshl_b32", sT[4], sT[4], sNN), sop("s_or_b32", sFLAG, sFLAG, sT[4])]

def finalize(cfg):
    a, b, c, d = LSV
    o = []
    if cfg.kvpf and cfg.kvpf_at == "F":
        o += [I(f"buffer_load_dword v252, v254, s[84:87], 0 offen{cfg.polpf}", "G", ["v254", "s[84:87]"], [], tag="PF")]
        if cfg.kvpf > 4:
            o += [sop("s_mov_b32", sT[5], "8192"), I(f"buffer_load_dword v252, v254, s[84:87], {sT[5]} offen{cfg.polpf}", "G", ["v254", "s[84:87]", sT[5]], [], tag="PF")]
        o += [sop("s_mov_b32", "s86", "0")]
    o += [I(".p2align 3", "L")]
    pend = []; done = 0
    for k, (qb, b_) in enumerate(fin_order()):
        v, w = fin_pair(qb, b_, LIF(qb))
        o += v; pend.append(w)
        while done < cfg.nfw and done < (k + 1) * cfg.nfw // 24:
            o.append(pend[done]); done += 1
    return o

def last_block(cfg):
    v2base = lambda b: 220 + 4 * b if b < 9 else 4 * (b - 9)
    P2 = lambda qb: R("v", SB + 8 * qb, 4)
    qk = qk_mfmas()
    grp_mf = {"K": lambda q: qk[12 * q:12 * q + 12],
              "A": lambda q: [mfma(Oreg(q, b), Preg(q), Vreg(b), Oreg(q, b)) for b in range(12)],
              "B": lambda q: [mfma(Oreg(q, b), P2(q), R("a", v2base(b), 4), Oreg(q, b)) for b in range(12)]}
    seqm = cfg.lorder.split()
    at = {x: 12 * k for k, x in enumerate(seqm)}
    mf = [m for x in seqm for m in grp_mf[x[0]](int(x[1]))]
    n = len(mf)
    mem = {}; sal = {}; sq = []; post = {}
    def M(g, i):
        l = mem.setdefault(g, [])
        l.insert(len([x for x in l if x.kind != "W"]), i) if i.kind == "D" else l.append(i)
    def S(g, i): sal.setdefault(g, []).append(i)
    ops = sm_ops()[1]
    for o in ops:
        o.fixed = None; o.hi = min(at[f"K{o.qb}"] - 1, at[f"A{o.qb}"] - 2); o.lo = cfg.lrlo
    radd = {q: [o for o in ops if o.qb == q and o.ins.wr == [LS[q]]][-1:] for q in range(4)}
    lrd = []
    for qb in range(4):
        due = at[f"B{qb}"] - 2; end = at[f"B{qb}"] + 11
        adds = []; xs = []; cvs = []
        for e in range(8):
            ready = at[f"K{qb}"] + (9 if e < 4 else 15)
            f = Op(valu("v_fma_f32", Se(qb, e), Se(qb, e), sC, "-" + MC[qb]), lo=ready, hi=due)
            x = Op(valu("v_exp_f32", Se(qb, e), Se(qb, e), kind="E"), deps=[f], hi=due)
            a = Op(valu("v_add_f32", LS[qb], LS[qb], Se(qb, e)), deps=[x], samegap=adds[-1:] or radd[qb], hi=due + 8)
            ops += [f, x, a]; adds.append(a); xs.append(x)
            if e & 1:
                jj = e >> 1
                cv = Op(valu("v_cvt_pk_bf16_f32", Se(qb, jj), Se(qb, e - 1), Se(qb, e)), deps=xs[-2:], samegap=[adds[jj]] + cvs[-1:], hi=due)
                ops.append(cv); cvs.append(cv)
        a_, b_ = LSV[qb & 1], LS[qb]
        c = [adds[-1]]
        def ch(ins):
            o = Op(ins, deps=c[-1:], hi=end - 5); c.append(o); ops.append(o)
        ch(valu("v_mov_b32", a_, b_)); ch(swap("v_permlane32_swap_b32", a_, b_)); ch(valu("v_add_f32", a_, a_, b_))
        ch(valu("v_mov_b32", b_, a_)); ch(swap("v_permlane16_swap_b32", a_, b_)); ch(valu("v_add_f32", b_, a_, b_))
        fc = flag_check(cfg, b_)
        ops.append(Op(fc[1], deps=c[-1:], lo=end - 6, hi=end - 2))
        sq += [(end - 12, end - 8, fc[0])] + [(end - 1, end + 8 if qb < 3 else end, x) for x in fc[2:]]
        ch(I(f"v_rcp_f32 {a_}, {b_}", "E", [b_], [a_]))
        M(end - 4, ds_write("ds_write_b32", SCW, a_, 0))
        lrd.append(ds_read("ds_read_b128", R("v", SB + 8 * qb + 4, 4), SCR, 0)); M(end - 3, lrd[-1])
    S(0, salu("s_barrier"))
    v1 = v_reads(0)
    for b in range(12): M(1 + b, v1[2 * b]); M(1 + b, v1[2 * b + 1])
    for b in (2, 5, 8, 11):
        w = waitcnt(lgkm=0); w.needlg = v1[2 * b + 1]; S(at["A0"] + b - 3, w)
    S(13, waitcnt(vm=0)); S(14, salu("s_barrier"))
    for i in range(3): M(15 + 7 * i, o_store(cfg, i))
    ws_ = window_srd(20, sOP, sITEM)
    sq[0:0] = [(1, 29, x) for x in ws_[:3]] + [(30, 34, x) for x in ws_[3:] + [sop("s_mov_b32", "s22", WIN)]]
    ops.append(Op(valu("v_mov_b32", VDR, VDR0), hi=40))
    v2 = [ds_read("ds_read_b64_tr_b16", R("a", v2base(b) + 2 * x, 2), VA[b & 3], VSLOT[1] + x * 6144 + (b >> 2) * 1024) for b in range(12) for x in range(2)]
    g = 16
    for b in range(12):
        while g in mem or g in sal: g += 1
        M(g, v2[2 * b]); M(g, v2[2 * b + 1]); g += 2
    for b in (2, 5, 8, 11):
        w = waitcnt(lgkm=0); w.needlg = v2[2 * b + 1]; S(at["B0"] + b - 3, w)
    pb = {0: [24, 28, 32, 36, 40, 44], 1: [12, 16, 20, 208, 212, 216], 2: [48, 52, 56, 60, 64, 68], 3: [72, 76, 80, 84, 88, 92]}
    order = [0, 3, 1, 4, 2, 5]
    late = []
    for qb in range(4):
        end = at[f"B{qb}"] + 11
        st = lambda i: gstore(R("a", pb[qb][i], 4), VOFO, SRO, sGOF, pc_off(i), cfg.polo, tag="O")
        grp = [fin_pair(qb, b, SB + 8 * qb + 4) for b in range(0, 12, 2)]
        rds = [piece_reads(pb[qb][i], (6 * qb + i) * 1024) for i in range(6)]
        w = waitcnt(lgkm=0); w.needlg = lrd[qb]
        blk = (late + [nop(3)] if qb == 3 else []) + [w, I(".p2align 3", "L")]
        seq = []
        for k, i in enumerate(order):
            w = waitcnt(lgkm=0); w.needlg = rds[order[k | 1]][1]
            seq.append(([w] if k % 2 == 0 else []) + ([sop("s_mov_b32", sGOF, str(qb * 6144))] if k == 0 else []) + [st(i)])
        defer = []
        nin = 6 if qb == 3 else cfg.lin
        for k, gq in enumerate(grp):
            blk += gq[0]
            if k < nin:
                blk += [gq[1]]
                if k & 1: blk += rds[k >> 1] + rds[3 + (k >> 1)]
                if qb in cfg.learly and k in cfg.lk: blk += seq.pop(0) + seq.pop(0) + [I(".p2align 3", "L")]
            else:
                defer.append([gq[1]])
                if k & 1: defer += [rds[k >> 1], rds[3 + (k >> 1)]]
        if cfg.trace == 3:
            blk = [I("; mark", "L", mark3=True)] + blk + [I("; mark", "L", mark3=True)]
        if qb < 3:
            g0 = end + (cfg.lfin if qb else cfg.lfin0)
            post[g0] = blk
            g = g0 + 1
            for x in defer:
                while g in mem: g += 1
                for ins in x: M(g, ins)
                g += 1 + (x[0].kind == "W")
            g += 4
            for x in seq:
                while g in mem or g - 1 in mem: g += 1
                for ins in x:
                    if g >= n: late.append(ins)
                    elif ins.kind == "S": S(g - 1, ins)
                    else: M(g, ins)
                g += cfg.lsp
        else:
            for x in seq: blk += x
            post[end] = blk
    out, over = schedule(mf, mem, sal, ops, sq, post)
    for k, i in enumerate(out):
        if hasattr(i, "needlg"):
            c = sum(1 for x in out[out.index(i.needlg) + 1:k] if x.kind in "DW")
            assert out.index(i.needlg) < k
            c = min(c, 15)
            i.lgkm = c; i.text = f"s_waitcnt lgkmcnt({c})"
    print(f"last block: {len(out)} instrs, overflow slots {over}", file=sys.stderr)
    return out

def fixnops(seq, name):
    import re
    for _ in range(400):
        p = [x for x in check(seq, name) if "dist" in x]
        if not p: return seq
        for k in range(1, len(seq) + 1):
            q = [x for x in check(seq[:k], name) if "dist" in x]
            if q:
                m = re.search(r"dist (\d+)(?: < (\d+))?", q[0])
                need = int(m.group(2) or 8) - int(m.group(1))
                seq = seq[:k - 1] + [nop(need - 1)] + seq[k - 1:]
                break
    raise RuntimeError("fixnops")

def window_srd(srd_lo, ptr, item):
    return [sop("s_mul_i32", sT[1], item, "98304"), sop("s_mul_i32", sT[2], sWAVE, "24576"), sop("s_add_u32", sT[1], sT[1], sT[2]),
            sop("s_add_u32", f"s{srd_lo}", f"s{ptr}", sT[1]), sop("s_addc_u32", f"s{srd_lo+1}", f"s{ptr+1}", "0")]

def head_base(dst, item):
    return [sop("s_mul_hi_u32", dst, item, "0x55555556"), sop("s_mul_i32", dst, dst, "196608"), sop("s_add_u32", dst, dst, sRB)]

def newitem_a(first=False):
    o = [] if first else [sop("s_sub_u32", sLEFT, sLEFT, "1"), sop("s_add_u32", sITEM, sITEM, "32")]
    o += head_base(sT[0], sITEM) + [sop("s_add_u32", sT[0], sT[0], "196608"), sop("s_add_u32", sKEND, f"s{sKP}", sT[0]), sop("s_add_u32", sVEND, f"s{sVP}", sT[0])]
    o += [sop("s_add_u32", sT[3], sITEM, "32"), sop("s_min_u32", sT[3], sT[3], "767")]
    o += head_base(sT[0], sT[3])
    o += [sop("s_add_u32", f"s{sKNX}", f"s{sKP}", sT[0]), sop("s_addc_u32", f"s{sKNX+1}", f"s{sKP+1}", "0")]
    return o
def kv_slice(cfg, item, unit, first_tile, last_left):
    a_, b_, c_ = sT[5], sT[6], sT[2]
    return [sop("s_mul_hi_u32", a_, item, "0x55555556"), sop("s_mul_i32", b_, a_, "3"), sop("s_sub_u32", c_, item, b_), sop("s_mul_i32", a_, a_, "196608"),
            sop("s_lshl_b32", b_, sLEFT, "8"), sop("s_add_u32", b_, b_, "s2"), salu(f"s_cmp_lt_u32 {b_}, {256 * last_left + 16}", [b_], ["scc"]),
            sop("s_cselect_b32", b_, "3", "2"), sop("s_subb_u32", c_, c_, "0"), sop("s_mul_i32", b_, b_, str(unit)),
            sop("s_lshl_b32", c_, c_, "1"), salu(f"s_bitcmp1_b32 {sWAVE}, 0", [sWAVE], ["scc"]), sop("s_addc_u32", c_, c_, "0"), sop("s_mul_i32", c_, c_, b_),
            sop("s_add_u32", a_, a_, c_), sop("s_add_u32", a_, a_, str(first_tile * 12288)),
            salu(f"s_cmp_lt_u32 {sWAVE}, 2", [sWAVE], ["scc"]), sop("s_cselect_b64", "s[84:85]", R("s", sKP, 2), R("s", sVP, 2)),
            sop("s_add_u32", "s84", "s84", a_), sop("s_addc_u32", "s85", "s85", "0")]

def kvpf_setup(cfg):
    assert cfg.kvpf <= 2
    return [sop("s_add_u32", sT[4], sITEM, "32")] + kv_slice(cfg, sT[4], cfg.kvpf * 1024, 16 - cfg.kvpf, 2) + (
           [salu(f"s_cmp_eq_u32 {sLEFT}, 2", [sLEFT], ["scc"]), sop("s_cselect_b32", "s86", sT[6], "0")] if cfg.kvpf_last else [sop("s_mov_b32", "s86", "0" if cfg.nomem else sT[6])])

def kvpf2_setup(cfg):
    return kv_slice(cfg, sITEM, 1024, 16 - cfg.kvpf - cfg.kvpf2, 1) + [
            salu(f"s_cmp_eq_u32 {sLEFT}, 1", [sLEFT], ["scc"]), sop("s_cselect_b32", "s86", "0" if cfg.nomem else sT[6], "0"),
            sop("s_mov_b32", "s0", "12288"), sop("s_mov_b32", "s1", str(cfg.kvpf2 - 1))]

def newitem_b():
    o = [sop("s_add_u32", f"s{sVNX}", f"s{sVP}", sT[0]), sop("s_addc_u32", f"s{sVNX+1}", f"s{sVP+1}", "0")]
    o += window_srd(16, sQP, sT[3])
    o += [salu(f"s_cmp_gt_u32 {sLEFT}, 1", [sLEFT], ["scc"]), sop("s_cselect_b32", sNR, KVWIN, "0"), sop("s_cselect_b32", "s18", QWIN, "0"),
          sop("s_mov_b32", sGOF, "0"), sop("s_mov_b32", sQM, sSTG), sop("s_mov_b32", sCNT, "7")]
    return o

def setup(cfg):
    o = []
    x = lambda t: o.append(salu(t))
    x("s_cmp_ge_u32 s2, 256"); x("s_cbranch_scc1 L_end")
    x(f"s_load_dwordx4 s[4:7], s[0:1], 0"); x(f"s_load_dwordx2 s[{sVP}:{sVP+1}], s[0:1], 16"); x(f"s_load_dwordx2 s[{sOP}:{sOP+1}], s[0:1], 24")
    if cfg.stamps: x("s_memtime s[60:61]"); x("s_memrealtime s[62:63]")
    if cfg.stamps: x(f"s_load_dwordx2 s[56:57], s[0:1], {32 if cfg.stamps == 2 else 40}")
    L, N, G, A, B_ = T
    o += [valu("v_lshrrev_b32", A, "6", "v0"), valu("v_and_b32", L, "63", "v0"), I(f"v_readfirstlane_b32 {sWAVE}, {A}", "V", [A], [sWAVE])]
    o += [valu("v_lshrrev_b32", A, "3", L), valu("v_and_b32", B_, "7", L), valu("v_xor_b32", B_, B_, A), valu("v_mul_u32_u24", A, "384", A), valu("v_lshl_add_u32", VOFF, B_, "4", A)]
    o += [valu("v_lshrrev_b32", N, "4", L), valu("v_and_b32", B_, "7", L), valu("v_xor_b32", B_, B_, N), valu("v_lshl_add_u32", VOFV, B_, "4", A)]
    o += [sop("s_mul_i32", sRB, sWAVE, "3072"), sop("s_mul_i32", sSTG, sWAVE, str(STGW)), sop("s_add_u32", sSTG, sSTG, str(STG)), sop("s_mov_b32", sC, f2h(CSCALE))]
    o += [sop("s_and_b32", sT[0], "s2", "7"), sop("s_mul_i32", sT[0], sT[0], "96"), sop("s_lshr_b32", sT[1], "s2", "3"), sop("s_add_u32", sXB, sT[0], sT[1])]
    for lo in (8, 12): x(f"s_mov_b32 s{lo+3}, 0x20000")
    for which, tab in (("K", KSLOT), ("V", VSLOT)):
        for slot in range(2):
            for cb in range(3): o.append(sop("s_add_u32", m0reg(which, slot, cb), sRB, str(tab[slot] + cb * 896)))
    x("s_mov_b32 s19, 0x20000"); x("s_mov_b32 s23, 0x20000")
    if cfg.stamps: x(f"s_mov_b32 s58, {256 if cfg.stamps == 2 else 301989888}"); x("s_mov_b32 s59, 0x20000")
    o += [sop("s_mov_b32", sITEM, sXB), sop("s_mov_b32", sLEFT, "3"), sop("s_mov_b32", sNN, "0"), sop("s_mov_b32", sFLAG, "0"), sop("s_mov_b32", sMODE, "0"), sop("s_mov_b32", sTODO, "0")]
    if cfg.cpf:
        x("s_getpc_b64 s[84:85]"); x("s_and_b32 s84, s84, 0xffffff00"); x("s_mov_b32 s86, CODE_BYTES"); x("s_mov_b32 s87, 0x20000")
        o += [valu("v_lshlrev_b32", "v254", "7", "v0"), I("buffer_load_dword v252, v254, s[84:87], 0 offen", "G", ["v254"], [], tag="PF")]
    x("s_waitcnt lgkmcnt(0)")
    x(f"s_mov_b32 s{sQP}, s4"); x(f"s_mov_b32 s{sQP+1}, s5")
    return o

def addr_setup():
    L, N, G, A, B_ = T
    o = [valu("v_and_b32", N, "15", L), valu("v_lshrrev_b32", G, "4", L)]
    o += [valu("v_lshrrev_b32", A, "3", N), valu("v_mul_u32_u24", "v0", "3072", A), valu("v_and_b32", "v1", "7", N), valu("v_lshl_add_u32", "v0", "v1", "7", "v0")]
    for e in range(2):
        o += [valu("v_add_u32", A, str(4 * e), G), valu("v_xor_b32", A, A, "v1"), valu("v_lshl_add_u32", KA[e], A, "4", "v0"), valu("v_add_u32", QA[e], sSTG, KA[e])]
    o += [valu("v_lshrrev_b32", "v2", "5", L), valu("v_mul_u32_u24", "v3", "3072", "v2"), valu("v_and_b32", A, "31", L), valu("v_lshl_add_u32", "v3", A, "4", "v3"),
          valu("v_add_u32", "v3", sSTG, "v3"), valu("v_add_u32", OW, "3072", "v3")]
    o += [valu("v_lshrrev_b32", A, "3", L), valu("v_mul_u32_u24", A, "384", A), valu("v_and_b32", B_, "7", L), valu("v_lshl_add_u32", VOFO, B_, "4", A)]
    o += [valu("v_lshlrev_b32", "v3", "8", "v2"), valu("v_and_b32", A, "1", G), valu("v_lshl_add_u32", "v3", A, "9", "v3"), valu("v_and_b32", A, "1", L), valu("v_lshl_add_u32", "v3", A, "7", "v3"),
          valu("v_bfe_u32", A, L, "2", "2"), valu("v_lshl_add_u32", "v3", A, "4", "v3"), valu("v_bfe_u32", A, L, "1", "1"), valu("v_lshl_add_u32", "v3", A, "3", "v3"),
          valu("v_add_u32", "v3", sSTG, "v3"), valu("v_add_u32", VDR0, "3072", "v3")]
    o += [valu("v_mov_b32", A, sWAVE), valu("v_lshlrev_b32", A, "8", A), valu("v_add_u32", A, str(FLAGS_LDS + 256), A), valu("v_lshl_add_u32", SCW, L, "2", A), valu("v_lshl_add_u32", SCR, G, "4", A)]
    o += [valu("v_lshrrev_b32", B_, "2", L), valu("v_lshrrev_b32", A, "3", B_), valu("v_mul_u32_u24", "v0", "3072", A), valu("v_and_b32", "v1", "7", B_),
          valu("v_lshl_add_u32", "v0", "v1", "7", "v0"), valu("v_and_b32", A, "1", L), valu("v_lshl_add_u32", "v0", A, "3", "v0"), valu("v_bfe_u32", "v2", L, "1", "1"),
          valu("v_lshl_add_u32", "v0", "v2", "6", "v0"), valu("v_lshrrev_b32", "v1", "1", "v1")]
    for j in range(4):
        o += [valu("v_xor_b32", A, str(j), "v1"), valu("v_lshl_add_u32", VA[j], A, "4", "v0")]
    for qb in range(4): o += [valu("v_mov_b32", MC[qb], "0xff800000"), valu("v_mov_b32", LS[qb], "0")]
    return o

def touch_pages(cfg):
    o = []
    def ld(ptr, off): o.append(salu(f"s_load_dword s4, s[{ptr}:{ptr+1}], {off}"))
    o += [sop("s_min_u32", sT[1], sWAVE, "2"), sop("s_lshl_b32", sT[1], sT[1], "5"), sop("s_add_u32", sT[1], sT[1], sXB), sop("s_mul_i32", sT[2], sT[1], "98304")]
    ld(sOP, sT[2])
    if cfg.touch > 1: ld(sQP, sT[2])
    o += [sop("s_add_u32", sT[3], sT[2], "98300")]
    ld(sOP, sT[3])
    if cfg.touch > 1:
        ld(sQP, sT[3])
        o += [sop("s_mul_hi_u32", sT[4], sT[1], "0x55555556"), sop("s_mul_i32", sT[4], sT[4], "196608")]
        ld(sKP, sT[4]); ld(sVP, sT[4])
        o += [sop("s_add_u32", sT[5], sT[4], "196604")]
        ld(sKP, sT[5]); ld(sVP, sT[5])
    return o

def start_run(cfg):
    o = head_base(sT[0], sITEM)
    o += [sop("s_add_u32", "s8", f"s{sKP}", sT[0]), sop("s_addc_u32", "s9", f"s{sKP+1}", "0"), sop("s_mov_b32", "s10", KVWIN)]
    if cfg.p2:
        il = init_loads(cfg)[:cfg.pn[0]]
        o += [x for d in il[:3] for x in d]
        o += window_srd(16, sQP, sITEM) + [sop("s_mov_b32", "s18", QWIN)]
        o += [sop("s_add_u32", "s12", f"s{sVP}", sT[0]), sop("s_addc_u32", "s13", f"s{sVP+1}", "0"), sop("s_mov_b32", "s14", KVWIN)]
        o += [x for d in il[3:] for x in d]
    else:
        for m0, d in kv_dma(cfg, "K", 0, "K0"): o += [m0, nop(0), d]
        o += window_srd(16, sQP, sITEM) + [sop("s_mov_b32", "s18", QWIN)]
        for rg in range(cfg.q_early): o += q0_dma(cfg, rg)
    fill = addr_setup(); mixed = []
    for x in o:
        if x.text == "s_nop 0" and fill:
            mixed += fill[:6]; del fill[:6]
        else: mixed.append(x)
    o = mixed + fill
    if cfg.touch: o += touch_pages(cfg)
    if not cfg.p2: o += kv_advance("K", wrap=False) + [sop("s_add_u32", "s12", f"s{sVP}", sT[0]), sop("s_addc_u32", "s13", f"s{sVP+1}", "0"), sop("s_mov_b32", "s14", KVWIN)]
    o += [sop("s_mov_b32", "s20", f"s{sOP}"), sop("s_mov_b32", "s21", f"s{sOP+1}"), sop("s_mov_b32", "s22", "0"), valu("v_add_u32", VDR, "3072", VDR0)]
    if cfg.pf:
        o += [sop("s_add_u32", sT[4], sXB, "64")] + window_srd(84, sQP, sT[4])
        o += [salu(f"s_cmp_eq_u32 {sLEFT}, 3", [sLEFT], ["scc"]), sop("s_cselect_b32", "s86", "0" if cfg.nomem else str(cfg.pf * 128), "0"), sop("s_mov_b32", "s87", "0x20000"),
              sop("s_mov_b32", "s0", str(24576 // cfg.pfn)), sop("s_mov_b32", "s1", str(cfg.pfn - 1))]
    if cfg.exp == "early_o":
        o += [sop("s_add_u32", sT[4], sITEM, "64")] + window_srd(20, sOP, sT[4]) + [sop("s_mov_b32", "s22", WIN)]
    return o

def max_pass(cfg):
    L, N, G, A, B_ = T
    o = [valu("v_and_b32", N, "15", L), valu("v_lshrrev_b32", G, "4", L), valu("v_mul_u32_u24", A, "384", N), valu("v_lshl_add_u32", A, G, "4", A)]
    o += window_srd(20, sQP, sITEM) + [sop("s_mov_b32", "s22", WIN)]
    for qb in range(4):
        o.append(sop("s_mov_b32", sT[5], str(qb * 6144)))
        for s in range(6): o.append(gload(Qreg(qb, s), A, SRO, sT[5], s * 64))
    o += [sop("s_mul_hi_u32", sT[5], sITEM, "0x55555556"), sop("s_mul_i32", sT[5], sT[5], "196608"), sop("s_mov_b32", sT[6], "16")]
    o += [sop("s_mov_b32", "s20", f"s{sKP}"), sop("s_mov_b32", "s21", f"s{sKP+1}"), sop("s_mov_b32", "s22", "0" if cfg.nomem else "50331648")]
    o += [label("L_maxloop")]
    body = []
    for kb in range(2):
        if kb: body.append(sop("s_add_u32", sT[5], sT[5], "6144"))
        for s in range(6): body.append(gload(Kreg(kb, s), A, SRO, sT[5], s * 64))
    body += [sop("s_add_u32", sT[5], sT[5], "6144"), waitcnt(vm=0)]
    body += qk_mfmas() + [nop(7)]
    for qb in range(4):
        for e in range(0, 8, 2): body.append(valu("v_max3_f32", MC[qb], MC[qb], Se(qb, e), Se(qb, e + 1)))
    body += [sop("s_sub_u32", sT[6], sT[6], "1"), salu(f"s_cmp_lg_u32 {sT[6]}, 0"), salu("s_cbranch_scc1 L_maxloop")]
    return o + body + [sop("s_mov_b32", "s20", f"s{sOP}"), sop("s_mov_b32", "s21", f"s{sOP+1}"), sop("s_mov_b32", "s22", "0")]

def stamp(idx):
    if TR3: return []
    return [salu(f"s_memtime s[{64+2*idx}:{65+2*idx}]")]

def build(cfg):
    cfg._m = 68
    global WIN, KVWIN, QWIN, TR3, MODEL
    MODEL = cfg.model
    TR3 = cfg.trace == 3
    WIN = "0" if cfg.nomem else "24576"
    KVWIN = "0" if cfg.nomem else "3072"
    QWIN = "0" if cfg.nomem else "6144"
    blk = {}
    for k in "AZOEXY": blk[k] = fixnops(iteration(cfg, k), k)
    blk["setup"] = fixnops(setup(cfg), "setup")
    blk["start"] = fixnops(start_run(cfg), "start")
    blk["max"] = max_pass(cfg)
    blk["P"] = fixnops((prologue2 if cfg.p2 else prologue)(cfg), "P")
    if cfg.p2: blk["A"] = []
    blk["F"] = fixnops(finalize(cfg), "F")
    blk["T"] = fixnops(last_block(cfg), "T")
    br = lambda t: [salu(t)]
    def item(z="Z"): return blk[z] + (br("b") if z == "A" else []) + (blk["O"] + br("b") + blk["E"] + br("b")) * 6 + blk["O"] + br("b") + br("b") + br("b")
    mid = blk["X"] + blk["Y"] + blk["F"]
    tr1 = blk["setup"] + blk["start"] + br("b") + br("b") + blk["P"] + item("A") + mid + item() + mid + item() + blk["T"]
    tr2 = blk["setup"] + blk["start"] + br("b") + br("b") + blk["max"] + blk["P"] + item("A") + blk["T"]
    best = {}
    for tr in (tr1, tr2):
        vm = []
        for ins in tr:
            if ins.kind == "G": vm.append(ins.tag)
            if getattr(ins, "need", None):
                tag, nb = ins.need
                seen = 0; cnt = None
                for j in range(len(vm) - 1, -1, -1):
                    if vm[j] == tag:
                        if seen == 3 * (nb - 1): cnt = len(vm) - 1 - j; break
                        seen += 1
                assert cnt is not None
                best[id(ins)] = (min(cnt, best.get(id(ins), (99,))[0]), ins)
    for cnt, ins in best.values():
        ins.vm = cnt; ins.text = f"s_waitcnt vmcnt({cnt})" + (f" lgkmcnt({ins.lgkm})" if ins.lgkm is not None else "")
    for tr, n in ((tr1, "tr1"), (tr2, "tr2")):
        p = check(tr, n)
        for x in sorted(set(p)): print("HAZARD", x, file=sys.stderr)
        assert not p
    out = []
    a = out.append
    def emit(seq):
        if cfg.trace == 1 and any(seq is blk[k] for k in "AZOEXYTF"):
            a("    s_mov_b32 m0, s45"); a("    s_nop 0"); a("    v_writelane_b32 v255, s4, m0"); a("    s_add_u32 s45, s45, 1"); a("    s_nop 0"); a("    s_memtime s[4:5]")
        tp = ["    s_memtime s[4:5]", "    s_waitcnt lgkmcnt(0)", "    s_mov_b32 m0, s45", "    s_nop 0", "    v_writelane_b32 v255, s4, m0", "    s_add_u32 s45, s45, 1"]
        for i in seq:
            mk = cfg.trace == 2 and getattr(i, "mark", False)
            if mk: out.extend(tp)
            if cfg.trace == 3 and (getattr(i, "mark3", False) or (seq is blk["T"] and (i is seq[0] or i is seq[-1]))):
                out.extend([f"    s_memtime s[{cfg._m}:{cfg._m+1}]"]); cfg._m += 2
            a(("" if i.kind == "L" else "    ") + i.text)
            if mk: out.extend(tp)
    a("; @launch grid=(256,1,1) block=(256,1,1) lds=163840")
    a('.amdgcn_target "amdgcn-amd-amdhsa--gfx950"'); a(".text"); a(f".globl {NAME}"); a(".p2align 8"); a(f".type {NAME},@function"); a(f"{NAME}:")
    emit(blk["setup"])
    a("L_run:")
    emit(blk["start"])
    a(f"    s_cmp_eq_u32 {sMODE}, 0"); a("    s_cbranch_scc1 L_k0")
    emit(blk["max"])
    a("L_k0:")
    if cfg.trace: a("    s_mov_b32 s45, 0"); a("    s_mov_b32 s4, s60")
    if cfg.trace == 2: a("    v_writelane_b32 v255, s4, 0"); a("    s_mov_b32 s45, 1")
    if cfg.stamps: emit(stamp(2))
    emit(blk["P"])
    if cfg.stamps: emit(stamp(8))
    a(".p2align 3")
    emit(blk["A"])
    a("    s_branch L_O")
    a(".p2align 7")
    if cfg.pad: a(f".fill {cfg.pad // 4}, 4, 0xbf800000")
    a("L_X:")
    a(f"    s_cmp_eq_u32 {sLEFT}, 1"); a("    s_cbranch_scc1 L_T")
    emit(blk["X"])
    a(".p2align 3")
    if cfg.stamps: a("    s_mov_b64 s[72:73], s[74:75]"); a("    s_nop 0"); emit(stamp(5))
    emit(blk["Y"])
    emit(blk["F"])
    a(".p2align 3"); a("L_Z:")
    if cfg.stamps: emit(stamp(7))
    emit(blk["Z"])
    a(".p2align 3"); a("L_O:")
    emit(blk["O"])
    a("    s_cbranch_scc1 L_X")
    a(".p2align 3")
    emit(blk["E"])
    a("    s_branch L_O")
    a(".p2align 6"); a("L_T:")
    if cfg.stamps: emit(stamp(9))
    emit(blk["T"])
    if cfg.stamps: emit(stamp(3))
    a(f"    s_cmp_lg_u32 {sMODE}, 0"); a("    s_cbranch_scc1 L_todo")
    a(f"    v_mov_b32 v0, {sFLAG}"); a(f"    s_lshl_b32 {sT[0]}, {sWAVE}, 2"); a(f"    s_add_u32 {sT[0]}, {sT[0]}, {FLAGS_LDS}"); a(f"    v_mov_b32 v1, {sT[0]}")
    a("    ds_write_b32 v1, v0"); a("    s_waitcnt lgkmcnt(0)"); a("    s_barrier")
    a(f"    v_mov_b32 v1, {FLAGS_LDS}"); a("    ds_read_b128 v[4:7], v1"); a("    s_waitcnt lgkmcnt(0)")
    a("    v_or_b32 v4, v4, v5"); a("    v_or3_b32 v4, v4, v6, v7"); a("    s_nop 1"); a(f"    v_readfirstlane_b32 {sTODO}, v4"); a(f"    s_mov_b32 {sMODE}, 1"); a("    s_nop 3")
    a("L_todo:")
    a(f"    s_and_b32 {sTODO}, {sTODO}, 7")
    a(f"    s_cbranch_scc0 L_fin")
    a(f"    s_ff1_i32_b32 {sNN}, {sTODO}"); a(f"    s_bitset0_b32 {sTODO}, {sNN}")
    a(f"    s_lshl_b32 {sITEM}, {sNN}, 5"); a(f"    s_add_u32 {sITEM}, {sITEM}, {sXB}"); a(f"    s_mov_b32 {sLEFT}, 1")
    a("    s_waitcnt vmcnt(0) lgkmcnt(0)"); a("    s_barrier"); a("    s_branch L_run")
    a("L_fin:")
    if cfg.stamps:
        a("    s_waitcnt vmcnt(0)")
        a("    s_memtime s[64:65]"); a("    s_memrealtime s[66:67]"); a("    s_waitcnt lgkmcnt(0)")
        a(f"    s_cmp_lg_u32 {sWAVE}, 0"); a("    s_cbranch_scc1 L_end")
        if cfg.stamps == 2:
            a("    s_not_b32 s76, s62"); a("    s_sub_u32 s77, s64, s60"); a("    s_sub_u32 s78, s68, s60"); a("    s_sub_u32 s79, s70, s60"); a("    s_sub_u32 s80, s72, s60")
            a("    s_sub_u32 s81, s66, s62"); a("    s_not_b32 s82, s66"); a("    s_not_b32 s83, s77"); a("    s_not_b32 s84, s78")
            srcs = [66, 76, 62, 82, 77, 83, 78, 84, 79, 80, 81]
            for i, s in enumerate(srcs): a(f"    v_mov_b32 v{i}, s{s}")
            a("    v_mov_b32 v16, 0"); a("    s_mov_b64 exec, 1")
            for i in range(len(srcs)): a(f"    buffer_atomic_umax v{i}, v16, s[56:59], 0 offen offset:{4*i}")
        else:
            order = [2, 8, 4, 5, 7, 9, 3, 0, 0, 0, 0, 0] if cfg.trace != 3 else [2, 3, 4, 5, 6, 7, 8, 9, 10, 11, 0, 0]
            src = [60, 61, 64, 65, 62, 63, 66, 67] + [x for k in order for x in (64 + 2 * k, 65 + 2 * k)]
            for i, s in enumerate(src): a(f"    v_mov_b32 v{i}, s{s}")
            if cfg.trace:
                a("    s_mov_b32 m0, s45"); a("    s_nop 0"); a("    v_writelane_b32 v255, s4, m0"); a("    v_lshlrev_b32 v33, 2, v251"); a("    s_lshl_b32 s41, s2, 8"); a("    s_add_u32 s41, s41, 0x100000")
                a("    buffer_store_dword v255, v33, s[56:59], s41 offen")
            a("    s_lshl_b32 s41, s2, 7"); a("    v_mov_b32 v32, 0"); a("    s_mov_b64 exec, 1")
            for i in range(8): a(f"    buffer_store_dwordx4 v[{4*i}:{4*i+3}], v32, s[56:59], s41 offen offset:{16*i}")
    a("L_end:"); a("    s_endpgm")
    a(f".set CODE_BYTES, L_end - {NAME} - 256")
    a('.section .rodata,"a"'); a(".p2align 6"); a(f".amdhsa_kernel {NAME}")
    for l in ["next_free_vgpr 512", "next_free_sgpr 102", "accum_offset 256", "group_segment_fixed_size 0", "kernarg_size 48", "user_sgpr_count 2",
              "user_sgpr_kernarg_segment_ptr 1", "system_sgpr_workgroup_id_x 1"]: a("  .amdhsa_" + l)
    a(".end_amdhsa_kernel")
    return "\n".join(out) + "\n"

if __name__ == "__main__":
    kw = {}
    for x in sys.argv[2:]:
        k, v = x.split("=", 1)
        kw[k] = ((" " + v.replace("+", " ")) if v != "-" else "") if k.startswith("pol") else eval(v)
    import subprocess, tempfile, os, io, contextlib
    cfg = Cfg(**kw)
    txt = build(cfg)
    if cfg.ophase is not None:
        with tempfile.TemporaryDirectory() as d:
            open(d + "/t.s", "w").write(txt)
            subprocess.run(["clang", "-x", "assembler", "-target", "amdgcn-amd-amdhsa", "-mcpu=gfx950", "-c", d + "/t.s", "-o", d + "/t.o"], check=True)
            nm = subprocess.run(["llvm-objdump", "-t", d + "/t.o"], capture_output=True, text=True).stdout
        addr = {l.split()[-1]: int(l.split()[0], 16) for l in nm.splitlines() if ".text" in l}
        cfg.pad = (cfg.ophase - addr["L_O"]) % 128
        with contextlib.redirect_stderr(io.StringIO()): txt = build(cfg)
    open(sys.argv[1], "w").write(txt)
```

```python
import sys, struct, math, re
from asmlib import *

NAME = "standalone__gqa_softmax__near_ridge_kernel"
def f2h(x): return "0x%08x" % struct.unpack("<I", struct.pack("<f", x))[0]
CSCALE = (192 ** -0.5) * math.log2(math.e)

class Cfg:
    polkv = " nt"; polq = " nt"; polo = " sc1"
    stamps = False
    nomem = False
    kill = ""
    vsp = 6
    rdend = 38
    q_early = 6
    touch = 0
    trace = 0
    kvpf = 2
    kvpf2 = 3
    kvpf_last = 0
    kvpf_at = 'Y90'
    pad = 0
    ophase = None
    oalign = 5
    vtouch = 0
    lfin = 3
    lsp = 3
    lrlo = 0
    cpf = 1
    cpf2 = 0
    cpf64 = 0
    shift = 0
    wbfrom = 4
    pfin = 'O'
    stag = ()
    stagwg = 120
    tailpad = 8192
    cpfat = 8
    stg = (21, 33, 45)
    model = 1
    lk = (2, 4)
    lfin0 = 1
    lin = 6
    learly = (0, 3)
    p2 = 1
    pn = (11, 5, 6, 6, 5, 3)
    lorder = 'K0 A0 K1 B0 A1 B1 K2 A2 K3 B2 A3 B3'
    pf = 16
    pfn = 6
    pfA = 0
    polpf = ''
    exp = ''
    nfw = 12
    zwend = 72
    thresh = 2.0 ** 40
    def __init__(s, **kw): s.__dict__.update(kw)

def Oreg(qb, b): return R("v", (qb * 11 + b) * 4, 4) if b < 11 else R("a", 192 + 4 * qb, 4)
SB = 176; PB = 208
def Sreg(qb, kb): return R("v", SB + qb * 8 + kb * 4, 4)
def Se(qb, e): return f"v{SB + qb * 8 + e}"
def Preg(qb): return R("v", PB + 4 * qb, 4)
KA = ["v224", "v225"]; VA = ["v226", "v227", "v228", "v229"]; VOFF = "v230"; VDR = "v231"
MC = [f"v{232+i}" for i in range(4)]; LS = [f"v{236+i}" for i in range(4)]; LSV = [f"v{240+i}" for i in range(4)]
QA = ["v244", "v245"]; OW = "v246"; VOFO = "v247"; SCW = "v248"; SCR = "v249"; VDR0 = "v250"; VOFV = "v253"
T = ["v251", "v4", "v5", "v6", "v7"]
def Qreg(qb, s): return R("a", (qb * 6 + s) * 4, 4)
def Kreg(kb, s): return R("a", 96 + (kb * 6 + s) * 4, 4)
def Vreg(b): return R("a", 144 + 4 * b, 4)
def Vhalf(b, x): return R("a", 144 + 4 * b + 2 * x, 2)
def DRreg(i): return R("a", 208 + 4 * i, 4)
SRK, SRV, SRQ, SRO = "s[8:11]", "s[12:15]", "s[16:19]", "s[20:23]"
sWAVE, sKEND, sVEND, sNR, sGOF, sC, sCNT, sLEFT, sITEM, sRB, sSTG, sQM, sFLAG = [f"s{i}" for i in range(24, 37)]
sT = [f"s{i}" for i in range(38, 46)]
sQP, sOP = 46, 48
sXB = "s50"
sNN = "s51"
sMODE = "s52"
sTODO = "s53"
sKP, sVP = 6, 54
sKNX, sVNX = 88, 90
sM0 = 4
M0TAB = {("K", 0): 92, ("K", 1): 95, ("V", 0): 98}
def m0reg(which, slot, cb):
    if (which, slot) == ("V", 1): return ["s101", "s37", "s3"][cb]
    return f"s{M0TAB[(which, slot)] + cb}"
KSLOT = [0, 12288]; VSLOT = [24576, 36864]; STG = 49152; STGW = 27648; FLAGS_LDS = 49152 + 4 * 27648
OOR = 0x40000000

def qk_mfmas():
    out = []
    for qb in range(4):
        for kb in range(2):
            for s in range(6):
                out.append(mfma(Sreg(qb, kb), Kreg(kb, s), Qreg(qb, s), "0" if s == 0 else Sreg(qb, kb)))
    return out
def pv_mfmas(c0):
    return [mfma(Oreg(qb, b), Preg(qb), Vreg(b), "0" if c0 else Oreg(qb, b)) for qb in range(4) for b in range(12)]
def k_reads(slot):
    return [ds_read("ds_read_b128", Kreg(kb, s), KA[s & 1], KSLOT[slot] + kb * 6144 + (s >> 1) * 1024) for kb in range(2) for s in range(6)]
def q_reads():
    return [ds_read("ds_read_b128", Qreg(qb, s), QA[s & 1], qb * 6144 + (s >> 1) * 1024) for qb in range(4) for s in range(6)]
def v_reads(slot):
    return [ds_read("ds_read_b64_tr_b16", Vhalf(b, x), VA[b & 3], VSLOT[slot] + x * 6144 + (b >> 2) * 1024) for b in range(12) for x in range(2)]
def kv_dma(cfg, which, slot, tag=None):
    srd = SRK if which == "K" else SRV
    return [(sop("s_mov_b32", "m0", m0reg(which, slot, cb)), dma(VOFF if which == "K" else VOFV, srd, "0", cb * 128, cfg.polkv, tag=tag or which)) for cb in range(3)]
def kv_advance(which, wrap=True):
    lo, end, nx = (8, sKEND, sKNX) if which == "K" else (12, sVEND, sVNX)
    o = [sop("s_add_u32", f"s{lo}", f"s{lo}", "12288"), sop("s_addc_u32", f"s{lo+1}", f"s{lo+1}", "0")]
    if wrap:
        o += [salu(f"s_cmp_eq_u32 s{lo}, {end}", [f"s{lo}", end], ["scc"]),
              sop("s_cselect_b64", R("s", lo, 2), R("s", nx, 2), R("s", lo, 2)), sop("s_cselect_b32", f"s{lo+2}", sNR, f"s{lo+2}")]
    return o

class Op:
    def __init__(s, ins, deps=(), lo=0, hi=95, fixed=None, samegap=()):
        s.ins = ins; s.deps = list(deps); s.lo = lo; s.hi = hi; s.fixed = fixed; s.gap = None; s.samegap = list(samegap)

NEXP_H = 22
def sm_ops(minit=None):
    H, Rr = [], []
    egaps = list(range(2, 96, 3))
    for qb in range(4):
        ready = 12 * qb + 11 + 4
        pre = []
        if minit:
            t, u = MC[qb], LS[qb]
            sv = Op(valu("v_mov_b32", LSV[qb], LS[qb]), lo=(0 if qb < 2 else 12 * qb))
            c = []
            def ch(ins, extra=()):
                o = Op(ins, deps=(c[-1:] if c else []) + list(extra), lo=ready); c.append(o); return o
            if minit == "P":
                ch(valu("v_max3_f32", t, t, Se(qb, 0), Se(qb, 1)))
                ch(valu("v_max3_f32", t, t, Se(qb, 2), Se(qb, 3)))
                ch(valu("v_max3_f32", t, t, Se(qb, 4), Se(qb, 5)))
                ch(valu("v_max3_f32", t, t, Se(qb, 6), Se(qb, 7)))
            else:
                ch(valu("v_max3_f32", t, Se(qb, 0), Se(qb, 1), Se(qb, 2)))
                ch(valu("v_max3_f32", t, t, Se(qb, 3), Se(qb, 4)))
                ch(valu("v_max3_f32", t, t, Se(qb, 5), Se(qb, 6)))
                ch(valu("v_max_f32", t, t, Se(qb, 7)))
            ch(valu("v_mov_b32", u, t), [sv])
            ch(swap("v_permlane32_swap_b32", t, u))
            ch(valu("v_max_f32", t, t, u))
            ch(valu("v_mov_b32", u, t))
            ch(swap("v_permlane16_swap_b32", t, u))
            ch(valu("v_max_f32", t, t, u))
            last = ch(valu("v_mul_f32", t, sC, t))
            z = Op(valu("v_mov_b32", u, "0"), deps=[c[-2]], lo=ready)
            H += [sv] + c + ([z] if qb == 3 else [])
            pre = [last, c[-2]]
        prevadd = None
        ex = []
        for e in range(8):
            n = qb * 8 + e
            inH = n < NEXP_H
            f = Op(valu("v_fma_f32", Se(qb, e), Se(qb, e), sC, "-" + MC[qb]), deps=pre[:1])
            x = Op(valu("v_exp_f32", Se(qb, e), Se(qb, e), kind="E"), deps=[f])
            fH = True
            if fH: f.lo = ready
            else: f.deps = []
            (H if fH else Rr).append(f)
            x.fixed = egaps[(32 - NEXP_H) + n] if inH else egaps[n - NEXP_H]
            if not inH and fH: x.deps = []
            (H if inH else Rr).append(x)
            aH = n < NEXP_H - 2
            a = Op(valu("v_add_f32", LS[qb], LS[qb], Se(qb, e)), deps=([x] if (aH or not inH) else []) + (pre[1:] if aH else []))
            if prevadd is not None and prevadd[1] == aH: a.samegap = [prevadd[0]]
            if not aH: a.hi = 12 * qb - 1
            ex.append((x, inH))
            if minit and qb < 3 and e == 1: a.ins = valu("v_add_f32", LS[qb], Se(qb, 0), Se(qb, 1))
            if not (minit and qb < 3 and e == 0):
                prevadd = (a, aH)
                (H if aH else Rr).append(a)
            if e & 1:
                cv = Op(valu("v_cvt_pk_bf16_f32", f"v{PB + 4*qb + (e >> 1)}", Se(qb, e - 1), Se(qb, e)),
                        deps=[y for (y, h) in ex[-2:] if h == aH])
                if aH: cv.lo = 48 + 12 * qb + 11
                else: cv.hi = 12 * qb - 1
                (H if aH else Rr).append(cv)
        for o in H + Rr:
            if not hasattr(o, "qb"): o.qb = qb
    for k, o in enumerate(H + Rr): o.seq = k
    return H, Rr

def schedule(mf, mem, sal, ops, sq=(), post={}):
    assert all(0 <= g < len(mf) for g in list(mem) + list(sal) + list(post)), (sorted(mem)[-3:], sorted(sal)[-3:])
    sq = list(sq)
    for g in range(len(mf)):
        while sq and sq[0][0] <= g and ((g not in mem and g not in sal) or sq[0][1] <= g):
            sal.setdefault(g, []).append(sq.pop(0)[2])
    assert not sq
    cons = {id(o): [] for o in ops}
    for o in ops:
        for d in o.deps: cons[id(d)].append((o, 1))
        for d in o.samegap: cons[id(d)].append((o, 0))
    def dl(o, memo={}):
        if id(o) in memo: return memo[id(o)]
        v = o.fixed if o.fixed is not None else o.hi
        if o.fixed is None:
            for c, k in cons[id(o)]:
                v = min(v, dl(c, memo) - k - (1 if getattr(c.ins, "perm", False) else 0))
        memo[id(o)] = v
        return v
    memo = {}
    for o in ops: o.dl = dl(o, memo)
    for o in ops: assert o.dl >= o.lo, (o.ins, o.dl, o.lo)
    out = []; over = 0
    todo = [o for o in ops if o.fixed is None]
    fixed = {o.fixed: o for o in ops if o.fixed is not None}
    for g in range(len(mf)):
        if mf[g] is not None: out.append(mf[g])
        m = mem.get(g, []); s = sal.get(g, [])
        room = 2
        out += m; room -= sum(2 if x.kind == 'W' else 1 for x in m)
        out += s; room -= (len(s) if m else max(0, len(s) - 1))
        if MODEL == 2 or (MODEL and any(getattr(x, "store", False) for l in mem.values() for x in l)):
            if any(getattr(x, "store", False) for x in m): room += 3
            if any(x.text == "s_barrier" for x in s): room -= 2; over -= 0
            if any(getattr(x, "dma", False) for x in m) and not any(x.kind == "G" for k in range(max(0, g - 8), g) for x in mem.get(k, [])): room -= 1
        if g in fixed:
            o = fixed[g]
            assert all(d.gap is not None and d.gap < g for d in o.deps), o.ins
            o.gap = g; out.append(o.ins); room -= 2
        while True:
            rdy = [o for o in todo if o.lo <= g and all(d.gap is not None and d.gap + (1 if getattr(o.ins, "perm", False) else 0) < g for d in o.deps)
                   and all(d.gap is not None for d in o.samegap)]
            if not rdy: break
            cost = lambda o: 2 if (o.ins.kind == "E" or getattr(o.ins, "perm", False)) else 1
            fit = [o for o in rdy if cost(o) <= room or o.dl <= g]
            if not fit: break
            o = min(fit, key=lambda o: (o.dl, -cost(o)))
            o.gap = g; todo.remove(o); out.append(o.ins); room -= cost(o)
        over += max(0, -room)
        out += post.get(g, [])
    assert not todo, [o.ins for o in todo]
    return out, over

def spread(rd, free, M):
    n = len(rd)
    for k, g in enumerate(free):
        while rd and (n - len(rd)) < (n * (k + 1) + len(free) - 1) // len(free) if n > len(free) else (rd and n - len(rd) <= k):
            M(g, rd.pop(0))
    assert not rd

def piece_reads(base, off):
    return [ds_read("ds_read_b64_tr_b16", R("a", base + 2 * x, 2), VDR, off + 64 * x) for x in range(2)]
def drain_reads(n=3): return [r for i in range(n) for r in piece_reads(208 + 4 * i, i * 1024)]
def pc_off(i): return (i // 3) * 3072 + (i % 3) * 128
def o_store(cfg, i): return gstore(DRreg(i), VOFO, SRO, sGOF, pc_off(i), cfg.polo, tag="O")
def q_dma(cfg, i, tag="Q"): return (sop("s_add_u32", "m0", sQM, str((i % 3) * 896)), dma(VOFF, SRQ, "0", pc_off(i), cfg.polq, tag=tag))
def stage_advance(n, o=True):
    return [sop("s_add_u32", "s16", "s16", str(n)), sop("s_addc_u32", "s17", "s17", "0"), sop("s_add_u32", sQM, sQM, str(n))] + ([sop("s_add_u32", sGOF, sGOF, "3072")] if o else [])

def fin_order(): return [(qb, b) for qb in range(4) for b in range(0, 12, 2)]
LIF = lambda qb: SB + 4 * qb
SCROW = [0, 2, 1, 3]

def l_reduce_ops(cfg, deps):
    a, b, c, d = LSV
    s1 = Op(swap("v_permlane32_swap_b32", a, b), deps=deps[:2]); s2 = Op(swap("v_permlane32_swap_b32", c, d), deps=deps[2:])
    a1 = Op(valu("v_add_f32", a, a, b), deps=[s1]); a2 = Op(valu("v_add_f32", c, c, d), deps=[s2])
    s3 = Op(swap("v_permlane16_swap_b32", a, c), deps=[a1, a2]); a3 = Op(valu("v_add_f32", a, a, c), deps=[s3])
    r = Op(I(f"v_rcp_f32 {b}, {a}", "E", [a], [b]), deps=[a3])
    return [s1, s2, a1, a2, s3, a3, r], r

def iteration(cfg, kind):
    par = {"A": 0, "Z": 0, "O": 1, "E": 0, "X": 0, "Y": 1}[kind]
    mf = qk_mfmas() + pv_mfmas(kind in "AZ")
    mem = {}; sal = {}; sq = []
    def M(g, i):
        l = mem.setdefault(g, [])
        l.insert(len([x for x in l if x.kind != "W"]), i) if i.kind == "D" else l.append(i)
    def busy(g): return g in mem and any(x.kind != "W" for x in mem[g])
    def S(g, i): sal.setdefault(g, []).append(i)
    def Q(lo, hi, lst): sq.extend((lo, hi, x) for x in lst)
    ops = sm_ops()[1] + sm_ops({"Y": "Y"}.get(kind))[0]
    sp = cfg.vsp
    nq = {"A": 6, "Z": 3, "E": 3, "Y": 3}.get(kind, 0)
    S(0, salu("s_barrier"))
    for j, (m0, d) in enumerate(kv_dma(cfg, "K", (par + 1) & 1)):
        S(2 + sp * j, m0); M(3 + sp * j, d)
    if kind in "EZX":
        for i in range(3): M(cfg.stg[i], o_store(cfg, i))
    if kind == "A" and cfg.vtouch:
        M(21, I(f"buffer_load_dword v252, v254, s[20:23], 0 offen", "G", ["v254", "s[20:23]"], [], tag="PF"))
        Q(22, 46, [sop("s_mov_b32", "s22", "0")])
    if kind == cfg.pfin and cfg.pf:
        M(21 if kind == "O" else 27, I(f"buffer_load_dword v252, v254, s[84:87], 0 offen{cfg.polpf}", "G", ["v254", "s[84:87]"], [], tag="PF"))
    if kind == "Z":
        wr = [fin_pair(qb, b, LIF(qb))[1] for qb, b in fin_order()][cfg.nfw:]
        cand = list(range(1, cfg.zwend, 3))
        wg = [cand[int(k * len(cand) / len(wr))] for k in range(len(wr))]
        for g, w in zip(wg, wr): M(g, w)
        assert cfg.nfw >= 8
        for k, d in enumerate(drain_reads(3)): M([6, 6, 7, 7, 12, 12][k], d)
        w = waitcnt(lgkm=0); w.needlg = mem[12][-1]; S(20, w)
        ops.append(Op(valu("v_add_u32", VDR, "3072", VDR), lo=13))
    spread(v_reads(par), [g for g in range(1, cfg.rdend + (5 if kind == "Z" else 0)) if g % 3 != 2 and not busy(g)], M)
    w = waitcnt(vm=0, lgkm=0); w.need = ("K", 2)
    if kind == "Z": w.lgkm = sum(1 for g in range(cfg.rdend + 5, 48) for x in mem.get(g, []) if x.kind == "W")
    S(47, w)
    if kind == "Y": Q(1, 40, newitem_a())
    Q(4 + 2 * sp, 46, kv_advance("K", wrap=(kind == "E")))
    if kind == cfg.pfin and cfg.pf:
        Q(28, 46, [sop("s_add_u32", "s84", "s84", "s0"), sop("s_addc_u32", "s85", "s85", "0"), sop("s_sub_u32", "s1", "s1", "1"), sop("s_cselect_b32", "s86", "0", "s86")])
    if kind == "X" and cfg.kvpf: sq[0:0] = [(1, 46, x) for x in kvpf_setup(cfg)]
    S(48, salu("s_barrier"))
    for j, (m0, d) in enumerate(kv_dma(cfg, "V", par)):
        S(50 + sp * j, m0); M(51 + sp * j, d)
    if kind == "Y": Q(41, 67, newitem_b())
    if kind == "X": Q(49, 70, window_srd(20, sOP, sITEM) + [sop("s_mov_b32", "s22", WIN)])
    qg = [69, 75, 81] if nq == 3 else [66, 69, 75, 78, 84, 87]
    adv = kv_advance("V", wrap=(kind == "O"))
    if nq == 6: Q(64, 64, adv[:2])
    for i in range(nq):
        m0, d = q_dma(cfg, i)
        Q(qg[i] - 1, qg[i] - 1, [m0]); M(qg[i], d)
        if nq == 3 and i == 0: Q(70, 73, adv[:2])
        if nq == 3 and i == 1: Q(76, 79, adv[2:])
    if nq == 6: Q(88, 94, adv[2:])
    if nq == 0: Q(52 + 2 * sp, 90, adv)
    if nq: Q(qg[-1] + 1, 94, stage_advance(nq * 1024, kind != "Y"))
    if kind == cfg.kvpf_at[0] and cfg.kvpf:
        g = int(cfg.kvpf_at[1:])
        M(g, I(f"buffer_load_dword v252, v254, s[84:87], 0 offen{cfg.polpf}", "G", ["v254", "s[84:87]"], [], tag="PF"))
        Q(g + 1, 94, [sop("s_mov_b32", "s86", "0")])
    if kind == "Z" and cfg.kvpf2: sq[2:2] = [(17, 66, x) for x in kvpf2_setup(cfg)]
    rd = k_reads(par) + (q_reads() if kind == "X" else []) + (drain_reads() if kind == "O" else [])
    free = [g for g in range(49, 48 + cfg.rdend) if g % 3 != 2 and not busy(g)]
    if len(rd) <= 12 and kind != "Z": free = [g for g in free if g % 3 == 1]
    elif len(rd) < len(free): free = [free[int(k * len(free) / len(rd))] for k in range(len(rd))]
    spread(rd, free, M)
    if kind == "E": ops.append(Op(valu("v_add_u32", VDR, "3072", VDR)))
    if kind == "Y":
        ops.append(Op(valu("v_mov_b32", VDR, VDR0)))
        svs = [next(o for o in ops if o.ins.wr == [LSV[q]]) for q in range(4)]
        lr, last = l_reduce_ops(cfg, svs)
        last.hi = 82; ops += lr
        M(85, ds_write("ds_write_b32", SCW, LSV[1], 0))
        fc = flag_check(cfg, LSV[0])
        sq.insert(0, (1, 40, fc[0]))
        ops.append(Op(fc[1], deps=[lr[-2]], hi=86))
        Q(88, 94, fc[2:] + [sop("s_add_u32", sNN, sNN, "1")])
        for o in ops:
            if getattr(o, "qb", 9) < 2 and o.fixed is None: o.hi = min(o.hi, 86)
        for q in range(4): M([87, 87, 88, 88][q], ds_read("ds_read_b128", R("v", LIF(q), 4), SCR, SCROW[q] * 64))
    w = waitcnt(vm=0, lgkm=0); w.need = ("V", 2)
    S(95, w)
    if kind == "O": Q(80, 94, [sop("s_sub_u32", sCNT, sCNT, "1"), salu(f"s_cmp_eq_u32 {sCNT}, 0", [sCNT], ["scc"])])
    post = {}
    if cfg.exp in ("m4", "m16") and kind in "OE":
        ops = [o for o in ops if not o.ins.text.startswith("v_add_f32")]
        for qb in range(4):
            acc = R("a", 224 + 4 * qb, 4)
            if cfg.exp == "m16": post[48 + 12 * qb + 4] = [mfma(acc, Preg(qb), "a[240:243]", acc)]
            else:
                for h in range(2):
                    post[48 + 12 * qb + 3 + 3 * h] = [I(f"v_mfma_f32_4x4x4_16b_bf16 {acc}, a[240:241], {R('v', PB + 4 * qb + 2 * h, 2)}, {acc}", "S")]
    out, over = schedule(mf, mem, sal, ops, sq, post)
    for k, i in enumerate(out):
        if hasattr(i, "needlg"):
            n = sum(1 for x in out[out.index(i.needlg) + 1:k] if x.kind in "DW")
            i.lgkm = n; i.text = f"s_waitcnt lgkmcnt({n})"
    for i in out:
        if "bar" in cfg.kill and i.text == "s_barrier": i.text = "s_nop 0"
        if "b1" in cfg.kill and i is out[1]: i.text = "s_nop 0"
        if kind in "OE":
            if "add" in cfg.kill and i.text.startswith("v_add_f32"): i.text = "s_nop 0"
            if "kr" in cfg.kill and i.text.startswith("ds_read_b128"): i.text = "s_nop 0"
            if "vr" in cfg.kill and i.text.startswith("ds_read_b64_tr") and VDR not in i.rd: i.text = "s_nop 0"
            if "kv" in cfg.kill and i.kind == "G" and i.tag in "KV": i.text = "s_nop 0"
            if "sm" in cfg.kill and i.kind in "VE": i.text = "s_nop 0"
            if "exp" in cfg.kill and i.kind == "E": i.text = i.text.replace("v_exp_f32", "v_mov_b32")
        if "dma" in cfg.kill and i.kind == "G": i.text = "s_nop 0"
        if "ds" in cfg.kill and i.kind == "D": i.text = "s_nop 0"
    print(f"iteration {kind}: {len(out)} instrs, overflow slots {over}", file=sys.stderr)
    return out

def linear(ops):
    ops = list(ops); ids = set(id(o) for o in ops); done = {}; out = []
    while ops:
        def rdy(o, slack):
            return all(id(d) not in ids or (id(d) in done and len(out) - done[id(d)] > slack) for d in o.deps + o.samegap)
        o = next((o for o in ops if rdy(o, 2)), None) or next((o for o in ops if rdy(o, 1)), None) or next(o for o in ops if rdy(o, 0))
        ops.remove(o); done[id(o)] = len(out); out.append(o.ins)
    return out

def weave(mf, fill, per=2):
    out = []; fill = list(fill)
    for m in mf:
        out.append(m)
        if m.kind != "M": continue
        room = per
        while fill and room >= (2 if fill[0].kind == "E" else 1):
            f = fill.pop(0); out.append(f); room -= 2 if f.kind == "E" else 1
    return out, fill

def vw(tag, n=1, lgkm=None):
    w = waitcnt(vm=0, lgkm=lgkm); w.need = (tag, n); w.mark = True; return w

def q0_dma(cfg, rg):
    o = []
    for cb in range(3):
        o += [sop("s_add_u32", "m0", sSTG, str(rg * 3072 + cb * 896)), nop(0), dma(VOFF, SRQ, "0", cb * 128, cfg.polq, tag=f"Q{rg}")]
    return o + [sop("s_add_u32", "s16", "s16", "3072"), sop("s_addc_u32", "s17", "s17", "0")]

def prologue(cfg):
    H = sm_ops("P")[0]
    per = [[o for o in H if o.qb == qb] for qb in range(4)]
    qr = q_reads(); mf = qk_mfmas()
    def kv(which, slot, tag=None):
        o = []
        for m0, d in kv_dma(cfg, which, slot, tag): o += [m0, nop(0), d]
        return o + kv_advance(which, wrap=False)
    o = [vw("K0", lgkm=0), salu("s_barrier")] + k_reads(0)
    if cfg.vtouch:
        o += [valu("v_min_u32", "v254", "2", T[0]), valu("v_mul_u32_u24", "v254", "3145728", "v254")] + window_srd(20, sOP, sXB) + [sop("s_mov_b32", "s22", "0" if cfg.nomem else "6316032")]
    o += [valu("v_lshlrev_b32", "v254", "7", T[0])]
    for qb in range(4):
        o += [vw(f"Q{2*qb+1}")] + qr[6 * qb:6 * qb + 6]
        for s in range(6):
            o += [waitcnt(lgkm=5 - s), mf[12 * qb + s]]
        o += mf[12 * qb + 6:12 * qb + 12]
        if qb == 0: o += [label("L_skipq6")] if False else []
        if qb == 0: o += late_q(cfg)
        if qb == 1: o += kv("K", 1, "K1") + kv("V", 0, "V0")
        if qb == 2: o += [salu("s_barrier")] + kv("K", 0) + kv("V", 1) + newitem_a(first=True) + newitem_b()
        if qb == 3: o += [vw("K1"), salu("s_barrier")] + k_reads(1)
        o += linear(per[qb])
    o += [vw("V0", lgkm=0)]
    return o

def sm_full(qb, minit):
    H, Rr = sm_ops(minit)
    ops = [o for o in H + Rr if o.qb == qb]
    last = {}; readers = {}
    for o in sorted(ops, key=lambda o: SM_RANK(o)):
        o.deps = [last[r] for r in set(o.ins.rd + o.ins.wr) if r in last] + [x for r in o.ins.wr for x in readers.get(r, [])]; o.samegap = []
        for r in o.ins.rd: readers.setdefault(r, []).append(o)
        for r in o.ins.wr: last[r] = o; readers[r] = []
    return sorted(ops, key=lambda o: SM_RANK(o))
def SM_RANK(o):
    t = o.ins.text
    if t.startswith("v_fma"): return (1, t)
    if t.startswith("v_exp"): return (2, t)
    if t.startswith("v_add_f32"): return (3, o.ins.rd[-1])
    if t.startswith("v_cvt"): return (4, t)
    return (0, o.seq)

def prologue2(cfg):
    K0 = lambda kb, s: R("a", 208 + (kb * 6 + s) * 4, 4)
    qr = q_reads(); qk1 = qk_mfmas(); pv0 = pv_mfmas(True)
    qk0 = [mfma(Sreg(qb, kb), K0(kb, s), Qreg(qb, s), "0" if s == 0 else Sreg(qb, kb)) for qb in range(4) for kb in range(2) for s in range(6)]
    k0r = [ds_read("ds_read_b128", K0(kb, s), KA[s & 1], KSLOT[0] + kb * 6144 + (s >> 1) * 1024) for kb in range(2) for s in range(6)]
    H1 = sm_ops()[0]
    h1 = [linear([o for o in H1 if o.qb == qb]) for qb in range(4)]
    g = lambda l, q: l[12 * q:12 * q + 12]
    def kv(which, slot, tag=None):
        o = []
        for m0, d in kv_dma(cfg, which, slot, tag): o += [m0, nop(0), d]
        return o + kv_advance(which, wrap=False)
    def first(qb, extra=(), fill=()):
        o = [vw(f"Q{2*qb+1}")] + qr[6 * qb:6 * qb + 6]
        m = []
        for s in range(6): m += [waitcnt(lgkm=5 - s), qk0[12 * qb + s]]
        w, rest = weave(m + qk0[12 * qb + 6:12 * qb + 12], fill)
        return o + w + list(extra) + rest + linear(sm_full(qb, "P"))
    grp = lambda l: [l[3 * k:3 * k + 3] + (l[9:] if k == 2 else []) for k in range(3)]
    pend = init_loads(cfg)[cfg.pn[0]:] + grp(kv("K", 0, "K2")) + grp(kv("V", 1, "V1"))
    def take(n):
        r = [x for d in pend[:n] for x in d]; del pend[:n]; return r
    def sprinkle(o, dmas, skip=8):
        out = []; step = max(1, (len(o) - skip - 2) // (len(dmas) + 1)); dmas = list(dmas)
        for k, x in enumerate(o):
            out.append(x)
            if k >= skip and (k - skip) % step == 0 and dmas: out += dmas.pop(0)
        assert not dmas
        return out
    def takeg(n):
        r = pend[:n]; del pend[:n]; return r
    o = [vw("K0", lgkm=0), salu("s_barrier")] + k0r + [valu("v_lshlrev_b32", "v254", "7", T[0])]
    o += take(cfg.pn[1]) + first(0)
    o += take(cfg.pn[2]) + first(1)
    vr = v_reads(0); kr = k_reads(1)
    assert 21 <= sum(cfg.pn[:4]) <= 33 and sum(cfg.pn[:2]) >= 9 and sum(cfg.pn[:3]) >= 15
    o += take(cfg.pn[3]) + [vw("V0"), salu("s_barrier")] + kr + vr[:12] + newitem_a(first=True) + vr[12:] + [waitcnt(lgkm=15)]
    m = g(qk1, 0) + [waitcnt(lgkm=0), salu("s_barrier")] + g(pv0, 0)[:3]
    w, r0 = weave(g(pv0, 0)[3:] + g(qk1, 1), [x for x in h1[0] if not x.text.startswith("v_cvt")])
    m += w
    w, r1 = weave(g(pv0, 1), r0 + [x for x in h1[0] if x.text.startswith("v_cvt")] + [x for x in h1[1] if not x.text.startswith("v_cvt")])
    m += w + r1 + [x for x in h1[1] if x.text.startswith("v_cvt")]
    o += sprinkle(m, takeg(cfg.pn[4]))
    def ren(ins, qb):
        base = SB + 8 * qb; to = int(regs(Oreg(qb, 9))[0][1:])
        f = lambda r: f"v{int(r[1:]) - base + to}" if r[0] == "v" and r[1:].isdigit() and base <= int(r[1:]) < base + 8 else r
        t = re.sub(r"v\[(\d+):(\d+)\]", lambda m: f"v[{f('v' + m.group(1))[1:]}:{f('v' + m.group(2))[1:]}]", ins.text)
        ins.text = re.sub(r"\bv\d+\b", lambda m: f(m.group(0)), t)
        ins.rd = [f(r) for r in ins.rd]; ins.wr = [f(r) for r in ins.wr]; ins.srcc = [f(r) for r in ins.srcc]
        return ins
    def late(qb, dmas, mid, tailfill):
        o = [vw(f"Q{2*qb+1}")] + qr[6 * qb:6 * qb + 6]
        for s in range(6): o += [waitcnt(lgkm=5 - s), ren(qk0[12 * qb + s], qb)]
        o += [ren(x, qb) for x in qk0[12 * qb + 6:12 * qb + 12]] + g(qk1, qb)[:3]
        w, r = weave(g(qk1, qb)[3:], [ren(x, qb) for x in linear(sm_full(qb, "P"))])
        o += w + r + mid
        nc = [x for x in h1[qb] if not x.text.startswith("v_cvt")]
        w, r = weave(g(pv0, qb), tailfill + nc)
        o += w + r + [x for x in h1[qb] if x.text.startswith("v_cvt")]
        return sprinkle(o, dmas)
    o += take(cfg.pn[5])
    assert len(pend) <= 6
    o += newitem_b() + late(2, takeg(9), [], [])
    dm = [[m0, nop(0), d] for m0, d in kv_dma(cfg, "K", 1) + kv_dma(cfg, "V", 0) + [q_dma(cfg, i) for i in range(6)]]
    o += late(3, dm, [vw("K2"), salu("s_barrier")], k_reads(0))
    o += kv_advance("K", wrap=False) + kv_advance("V", wrap=False) + stage_advance(6144) + [vw("V1", lgkm=0)]
    if cfg.exp in ("m4", "m16"):
        o += [valu("v_mov_b32", "v255", "0x3f803f80")] + [I(f"v_accvgpr_write_b32 a{240+k}, v255", "V", ["v255"], [f"a{240+k}"]) for k in range(4)] + [I(f"v_accvgpr_write_b32 a{224+k}, 0", "V", [], [f"a{224+k}"]) for k in range(16)]
    return o

def init_loads(cfg):
    grp = lambda l: [l[3 * k:3 * k + 3] + (l[9:] if k == 2 else []) for k in range(3)]
    def kv(which, slot, tag):
        o = []
        for m0, d in kv_dma(cfg, which, slot, tag): o += [m0, nop(0), d]
        return grp(o + kv_advance(which, wrap=False))
    l = kv("K", 0, "K0")
    for rg in range(4): l += grp(q0_dma(cfg, rg))
    l += kv("K", 1, "K1") + kv("V", 0, "V0")
    for rg in range(4, 8): l += grp(q0_dma(cfg, rg))
    return l

def late_q(cfg):
    o = []
    for rg in range(cfg.q_early, 8): o += q0_dma(cfg, rg)
    return o

def pkmul(n, l, d=None):
    r2 = R("v", n, 2); l2 = R("v", l, 2); d2 = R("v", n if d is None else d, 2)
    return I(f"v_pk_mul_f32 {d2}, {r2}, {l2}", "V", [r2, l2], [d2])

def fin_pair(qb, b, li):
    cb = b >> 2
    A_, B_, C_ = [int(regs(Oreg(qb, 4 * cb + k))[0][1:]) for k in range(3)]
    D_ = C_ + 4 if cb < 2 else A_ - 4
    Tm = int(LSV[2][1:])
    cv = lambda d, x, y: valu("v_cvt_pk_bf16_f32", f"v{d}", f"v{x}", f"v{y}")
    off = qb * 6144 + (b >> 1) * 512
    if b & 2 == 0:
        o = []
        if cb == 2: o += [I(f"v_accvgpr_read_b32 v{D_+i}, {r}", "V", [r], [f"v{D_+i}"]) for i, r in enumerate(regs(Oreg(qb, 11)))]
        o += [pkmul(A_, li), pkmul(A_ + 2, li + 2, Tm), pkmul(B_, li, A_ + 2), pkmul(C_, li), pkmul(D_, li)]
        o += [cv(A_, A_, A_ + 2), cv(A_ + 2, A_ + 1, A_ + 3), cv(A_ + 1, C_, D_), cv(A_ + 3, C_ + 1, D_ + 1)]
        return o, ds_write("ds_write_b128", OW, R("v", A_, 4), off)
    o = [pkmul(B_ + 2, li + 2), pkmul(C_ + 2, li + 2), pkmul(D_ + 2, li + 2)]
    o += [cv(B_, Tm, B_ + 2), cv(B_ + 2, Tm + 1, B_ + 3), cv(B_ + 1, C_ + 2, D_ + 2), cv(B_ + 3, C_ + 3, D_ + 3)]
    return o, ds_write("ds_write_b128", OW, R("v", B_, 4), off)

def flag_check(cfg, v):
    return [sop("s_mov_b32", sT[4], f2h(cfg.thresh)), I(f"v_cmp_nge_f32 vcc, {sT[4]}, {v}", "V", [sT[4], v], ["vcc"]),
            salu("s_cmp_lg_u64 vcc, 0", ["vcc"], ["scc"]), sop("s_cselect_b32", sT[4], "1", "0"), sop("s_lshl_b32", sT[4], sT[4], sNN), sop("s_or_b32", sFLAG, sFLAG, sT[4])]

def finalize(cfg):
    a, b, c, d = LSV
    o = []
    if cfg.kvpf and cfg.kvpf_at == "F":
        o += [I(f"buffer_load_dword v252, v254, s[84:87], 0 offen{cfg.polpf}", "G", ["v254", "s[84:87]"], [], tag="PF")]
        if cfg.kvpf > 4:
            o += [sop("s_mov_b32", sT[5], "8192"), I(f"buffer_load_dword v252, v254, s[84:87], {sT[5]} offen{cfg.polpf}", "G", ["v254", "s[84:87]", sT[5]], [], tag="PF")]
        o += [sop("s_mov_b32", "s86", "0")]
    if cfg.cpf2:
        a_, b_ = LSV[0], LSV[1]
        o += [salu(f"s_getpc_b64 s[{sT[4][1:]}:{sT[5][1:]}]"), label("L_pc2"), sop("s_lshl_b32", sT[6], sWAVE, "12"), sop("s_add_u32", sT[6], sT[6], "L_T-L_pc2"),
              valu("v_lshrrev_b32", a_, "1", "v254"), valu("v_add_u32", a_, sT[6], a_), valu("v_min_u32", a_, "L_last-L_pc2", a_), valu("v_mov_b32", b_, sT[5]),
              I(f"v_add_co_u32 {a_}, vcc, {sT[4]}, {a_}", "V", [a_], [a_, "vcc"]), nop(1), I(f"v_addc_co_u32 {b_}, vcc, 0, {b_}, vcc", "V", [b_, "vcc"], [b_, "vcc"]),
              I(f"global_load_dword v252, v[{a_[1:]}:{b_[1:]}], off", "G", [a_, b_], [], tag="PF")]
    o += [I(".p2align 3", "L")]
    pend = []; done = 0
    for k, (qb, b_) in enumerate(fin_order()):
        v, w = fin_pair(qb, b_, LIF(qb))
        o += v; pend.append(w)
        while done < cfg.nfw and done < (k + 1) * cfg.nfw // 24:
            o.append(pend[done]); done += 1
    return o

def last_block(cfg):
    v2base = lambda b: 220 + 4 * b if b < 9 else 4 * (b - 9)
    P2 = lambda qb: R("v", SB + 8 * qb, 4)
    qk = qk_mfmas()
    grp_mf = {"K": lambda q: qk[12 * q:12 * q + 12],
              "A": lambda q: [mfma(Oreg(q, b), Preg(q), Vreg(b), Oreg(q, b)) for b in range(12)],
              "B": lambda q: [mfma(Oreg(q, b), P2(q), R("a", v2base(b), 4), Oreg(q, b)) for b in range(12)]}
    seqm = cfg.lorder.split()
    at = {x: 12 * k for k, x in enumerate(seqm)}
    mf = [m for x in seqm for m in grp_mf[x[0]](int(x[1]))]
    n = len(mf)
    mem = {}; sal = {}; sq = []; post = {}
    def M(g, i):
        l = mem.setdefault(g, [])
        l.insert(len([x for x in l if x.kind != "W"]), i) if i.kind == "D" else l.append(i)
    def S(g, i): sal.setdefault(g, []).append(i)
    ops = sm_ops()[1]
    for o in ops:
        o.fixed = None; o.hi = min(at[f"K{o.qb}"] - 1, at[f"A{o.qb}"] - 2); o.lo = cfg.lrlo
    radd = {q: [o for o in ops if o.qb == q and o.ins.wr == [LS[q]]][-1:] for q in range(4)}
    lrd = []
    for qb in range(4):
        due = at[f"B{qb}"] - 2; end = at[f"B{qb}"] + 11
        adds = []; xs = []; cvs = []
        for e in range(8):
            ready = at[f"K{qb}"] + (9 if e < 4 else 15)
            f = Op(valu("v_fma_f32", Se(qb, e), Se(qb, e), sC, "-" + MC[qb]), lo=ready, hi=due)
            x = Op(valu("v_exp_f32", Se(qb, e), Se(qb, e), kind="E"), deps=[f], hi=due)
            a = Op(valu("v_add_f32", LS[qb], LS[qb], Se(qb, e)), deps=[x], samegap=adds[-1:] or radd[qb], hi=due + 8)
            ops += [f, x, a]; adds.append(a); xs.append(x)
            if e & 1:
                jj = e >> 1
                cv = Op(valu("v_cvt_pk_bf16_f32", Se(qb, jj), Se(qb, e - 1), Se(qb, e)), deps=xs[-2:], samegap=[adds[jj]] + cvs[-1:], hi=due)
                ops.append(cv); cvs.append(cv)
        a_, b_ = LSV[qb & 1], LS[qb]
        c = [adds[-1]]
        def ch(ins):
            o = Op(ins, deps=c[-1:], hi=end - 5); c.append(o); ops.append(o)
        ch(valu("v_mov_b32", a_, b_)); ch(swap("v_permlane32_swap_b32", a_, b_)); ch(valu("v_add_f32", a_, a_, b_))
        ch(valu("v_mov_b32", b_, a_)); ch(swap("v_permlane16_swap_b32", a_, b_)); ch(valu("v_add_f32", b_, a_, b_))
        fc = flag_check(cfg, b_)
        ops.append(Op(fc[1], deps=c[-1:], lo=end - 6, hi=end - 2))
        sq += [(end - 12, end - 8, fc[0])] + [(end - 1, end + 8 if qb < 3 else end, x) for x in fc[2:]]
        ch(I(f"v_rcp_f32 {a_}, {b_}", "E", [b_], [a_]))
        M(end - 4, ds_write("ds_write_b32", SCW, a_, 0))
        lrd.append(ds_read("ds_read_b128", R("v", SB + 8 * qb + 4, 4), SCR, 0)); M(end - 3, lrd[-1])
    S(0, salu("s_barrier"))
    v1 = v_reads(0)
    for b in range(12): M(1 + b, v1[2 * b]); M(1 + b, v1[2 * b + 1])
    for b in (2, 5, 8, 11):
        w = waitcnt(lgkm=0); w.needlg = v1[2 * b + 1]; S(at["A0"] + b - 3, w)
    S(13, waitcnt(vm=0)); S(14, salu("s_barrier"))
    for i in range(3): M(15 + 7 * i, o_store(cfg, i))
    ws_ = window_srd(20, sOP, sITEM)
    sq[0:0] = [(1, 29, x) for x in ws_[:3]] + [(30, 34, x) for x in ws_[3:] + [sop("s_mov_b32", "s22", WIN)]]
    ops.append(Op(valu("v_mov_b32", VDR, VDR0), hi=40))
    v2 = [ds_read("ds_read_b64_tr_b16", R("a", v2base(b) + 2 * x, 2), VA[b & 3], VSLOT[1] + x * 6144 + (b >> 2) * 1024) for b in range(12) for x in range(2)]
    g = 16
    for b in range(12):
        while g in mem or g in sal: g += 1
        M(g, v2[2 * b]); M(g, v2[2 * b + 1]); g += 2
    for b in (2, 5, 8, 11):
        w = waitcnt(lgkm=0); w.needlg = v2[2 * b + 1]; S(at["B0"] + b - 3, w)
    pb = {0: [24, 28, 32, 36, 40, 44], 1: [12, 16, 20, 208, 212, 216], 2: [48, 52, 56, 60, 64, 68], 3: [72, 76, 80, 84, 88, 92]}
    order = [0, 3, 1, 4, 2, 5]
    late = []
    for qb in range(4):
        end = at[f"B{qb}"] + 11
        st = lambda i: gstore(R("a", pb[qb][i], 4), VOFO, SRO, sGOF, pc_off(i), cfg.polo if qb < cfg.wbfrom else "", tag="O")
        grp = [fin_pair(qb, b, SB + 8 * qb + 4) for b in range(0, 12, 2)]
        rds = [piece_reads(pb[qb][i], (6 * qb + i) * 1024) for i in range(6)]
        w = waitcnt(lgkm=0); w.needlg = lrd[qb]
        blk = (late + [nop(3)] if qb == 3 else []) + [w, I(".p2align 3", "L")]
        seq = []
        for k, i in enumerate(order):
            w = waitcnt(lgkm=0); w.needlg = rds[order[k | 1]][1]
            seq.append(([w] if k % 2 == 0 else []) + ([sop("s_mov_b32", sGOF, str(qb * 6144))] if k == 0 else []) + [st(i)])
        defer = []
        nin = 6 if qb == 3 else cfg.lin
        for k, gq in enumerate(grp):
            blk += gq[0]
            if k < nin:
                blk += [gq[1]]
                if k & 1: blk += rds[k >> 1] + rds[3 + (k >> 1)]
                if qb in cfg.learly and k in cfg.lk: blk += seq.pop(0) + seq.pop(0) + [I(".p2align 3", "L")]
            else:
                defer.append([gq[1]])
                if k & 1: defer += [rds[k >> 1], rds[3 + (k >> 1)]]
        if cfg.trace == 3:
            blk = [I("; mark", "L", mark3=True)] + blk + [I("; mark", "L", mark3=True)]
        if qb < 3:
            g0 = end + (cfg.lfin if qb else cfg.lfin0)
            post[g0] = blk
            g = g0 + 1
            for x in defer:
                while g in mem: g += 1
                for ins in x: M(g, ins)
                g += 1 + (x[0].kind == "W")
            g += 4
            for x in seq:
                while g in mem or g - 1 in mem: g += 1
                for ins in x:
                    if g >= n: late.append(ins)
                    elif ins.kind == "S": S(g - 1, ins)
                    else: M(g, ins)
                g += cfg.lsp
        else:
            for x in seq: blk += x
            post[end] = blk
    out, over = schedule(mf, mem, sal, ops, sq, post)
    for k, i in enumerate(out):
        if hasattr(i, "needlg"):
            c = sum(1 for x in out[out.index(i.needlg) + 1:k] if x.kind in "DW")
            assert out.index(i.needlg) < k
            c = min(c, 15)
            i.lgkm = c; i.text = f"s_waitcnt lgkmcnt({c})"
    print(f"last block: {len(out)} instrs, overflow slots {over}", file=sys.stderr)
    return out

def fixnops(seq, name):
    import re
    for _ in range(400):
        p = [x for x in check(seq, name) if "dist" in x]
        if not p: return seq
        for k in range(1, len(seq) + 1):
            q = [x for x in check(seq[:k], name) if "dist" in x]
            if q:
                m = re.search(r"dist (\d+)(?: < (\d+))?", q[0])
                need = int(m.group(2) or 8) - int(m.group(1))
                seq = seq[:k - 1] + [nop(need - 1)] + seq[k - 1:]
                break
    raise RuntimeError("fixnops")

def window_srd(srd_lo, ptr, item):
    return [sop("s_mul_i32", sT[1], item, "98304"), sop("s_mul_i32", sT[2], sWAVE, "24576"), sop("s_add_u32", sT[1], sT[1], sT[2]),
            sop("s_add_u32", f"s{srd_lo}", f"s{ptr}", sT[1]), sop("s_addc_u32", f"s{srd_lo+1}", f"s{ptr+1}", "0")]

def head_base(dst, item):
    return [sop("s_mul_hi_u32", dst, item, "0x55555556"), sop("s_mul_i32", dst, dst, "196608"), sop("s_add_u32", dst, dst, sRB)]

def newitem_a(first=False):
    o = [] if first else [sop("s_sub_u32", sLEFT, sLEFT, "1"), sop("s_add_u32", sITEM, sITEM, "32")]
    o += head_base(sT[0], sITEM) + [sop("s_add_u32", sT[0], sT[0], "196608"), sop("s_add_u32", sKEND, f"s{sKP}", sT[0]), sop("s_add_u32", sVEND, f"s{sVP}", sT[0])]
    o += [sop("s_add_u32", sT[3], sITEM, "32"), sop("s_min_u32", sT[3], sT[3], "767")]
    o += head_base(sT[0], sT[3])
    o += [sop("s_add_u32", f"s{sKNX}", f"s{sKP}", sT[0]), sop("s_addc_u32", f"s{sKNX+1}", f"s{sKP+1}", "0")]
    return o
def kv_slice(cfg, item, unit, first_tile, last_left):
    a_, b_, c_ = sT[5], sT[6], sT[2]
    return [sop("s_mul_hi_u32", a_, item, "0x55555556"), sop("s_mul_i32", b_, a_, "3"), sop("s_sub_u32", c_, item, b_), sop("s_mul_i32", a_, a_, "196608"),
            sop("s_lshl_b32", b_, sLEFT, "8"), sop("s_add_u32", b_, b_, "s2"), salu(f"s_cmp_lt_u32 {b_}, {256 * last_left + 16}", [b_], ["scc"]),
            sop("s_cselect_b32", b_, "3", "2"), sop("s_subb_u32", c_, c_, "0"), sop("s_mul_i32", b_, b_, str(unit)),
            sop("s_lshl_b32", c_, c_, "1"), salu(f"s_bitcmp1_b32 {sWAVE}, 0", [sWAVE], ["scc"]), sop("s_addc_u32", c_, c_, "0"), sop("s_mul_i32", c_, c_, b_),
            sop("s_add_u32", a_, a_, c_), sop("s_add_u32", a_, a_, str(first_tile * 12288)),
            salu(f"s_cmp_lt_u32 {sWAVE}, 2", [sWAVE], ["scc"]), sop("s_cselect_b64", "s[84:85]", R("s", sKP, 2), R("s", sVP, 2)),
            sop("s_add_u32", "s84", "s84", a_), sop("s_addc_u32", "s85", "s85", "0")]

def kvpf_setup(cfg):
    assert cfg.kvpf <= 2
    return [sop("s_add_u32", sT[4], sITEM, "32")] + kv_slice(cfg, sT[4], cfg.kvpf * 1024, 16 - cfg.kvpf, 2) + (
           [salu(f"s_cmp_eq_u32 {sLEFT}, 2", [sLEFT], ["scc"]), sop("s_cselect_b32", "s86", sT[6], "0")] if cfg.kvpf_last else [sop("s_mov_b32", "s86", "0" if cfg.nomem else sT[6])])

def kvpf2_setup(cfg):
    return kv_slice(cfg, sITEM, 1024, 16 - cfg.kvpf - cfg.kvpf2, 1) + [
            salu(f"s_cmp_eq_u32 {sLEFT}, 1", [sLEFT], ["scc"]), sop("s_cselect_b32", "s86", "0" if cfg.nomem else sT[6], "0"),
            sop("s_mov_b32", "s0", "12288"), sop("s_mov_b32", "s1", str(cfg.kvpf2 - 1))]

def newitem_b():
    o = [sop("s_add_u32", f"s{sVNX}", f"s{sVP}", sT[0]), sop("s_addc_u32", f"s{sVNX+1}", f"s{sVP+1}", "0")]
    o += window_srd(16, sQP, sT[3])
    o += [salu(f"s_cmp_gt_u32 {sLEFT}, 1", [sLEFT], ["scc"]), sop("s_cselect_b32", sNR, KVWIN, "0"), sop("s_cselect_b32", "s18", QWIN, "0"),
          sop("s_mov_b32", sGOF, "0"), sop("s_mov_b32", sQM, sSTG), sop("s_mov_b32", sCNT, "7")]
    return o

def code_pf():
    return [salu("s_getpc_b64 s[84:85]"), label("L_pc"),
            valu("v_lshlrev_b32", "v8", "7", "v0"), valu("v_min_u32", "v8", "CODE_BYTES", "v8"), valu("v_mov_b32", "v9", "s85"),
            I("v_add_co_u32 v8, vcc, s84, v8", "V", ["v8"], ["v8", "vcc"]), nop(1), I("v_addc_co_u32 v9, vcc, 0, v9, vcc", "V", ["v9", "vcc"], ["v9", "vcc"]),
            I("global_load_dword v252, v[8:9], off", "G", ["v8", "v9"], [], tag="PF")] + (
           [I("global_load_dword v252, v[8:9], off offset:64", "G", ["v8", "v9"], [], tag="PF")] if CPF64 else [])

def setup(cfg):
    o = []
    x = lambda t: o.append(salu(t))
    x("s_cmp_ge_u32 s2, 256"); x("s_cbranch_scc1 L_end")
    x(f"s_load_dwordx4 s[4:7], s[0:1], 0"); x(f"s_load_dwordx2 s[{sVP}:{sVP+1}], s[0:1], 16"); x(f"s_load_dwordx2 s[{sOP}:{sOP+1}], s[0:1], 24")
    if cfg.stamps: x("s_memtime s[60:61]"); x("s_memrealtime s[62:63]")
    if cfg.cpf == 1: o += code_pf()
    if cfg.stamps: x(f"s_load_dwordx2 s[56:57], s[0:1], {32 if cfg.stamps == 2 else 40}")
    L, N, G, A, B_ = T
    o += [valu("v_lshrrev_b32", A, "6", "v0"), valu("v_and_b32", L, "63", "v0"), I(f"v_readfirstlane_b32 {sWAVE}, {A}", "V", [A], [sWAVE])]
    o += [valu("v_lshrrev_b32", A, "3", L), valu("v_and_b32", B_, "7", L), valu("v_xor_b32", B_, B_, A), valu("v_mul_u32_u24", A, "384", A), valu("v_lshl_add_u32", VOFF, B_, "4", A)]
    o += [valu("v_lshrrev_b32", N, "4", L), valu("v_and_b32", B_, "7", L), valu("v_xor_b32", B_, B_, N), valu("v_lshl_add_u32", VOFV, B_, "4", A)]
    o += [sop("s_mul_i32", sRB, sWAVE, "3072"), sop("s_mul_i32", sSTG, sWAVE, str(STGW)), sop("s_add_u32", sSTG, sSTG, str(STG)), sop("s_mov_b32", sC, f2h(CSCALE))]
    o += [sop("s_and_b32", sT[0], "s2", "7"), sop("s_mul_i32", sT[0], sT[0], "96"), sop("s_lshr_b32", sT[1], "s2", "3"), sop("s_add_u32", sXB, sT[0], sT[1])]
    for lo in (8, 12): x(f"s_mov_b32 s{lo+3}, 0x20000")
    for cb in range(3): o.append(sop("s_add_u32", m0reg("K", 0, cb), sRB, str(cb * 896)))
    x("s_mov_b32 s19, 0x20000"); x("s_mov_b32 s23, 0x20000")
    if cfg.stamps: x(f"s_mov_b32 s58, {256 if cfg.stamps == 2 else 301989888}"); x("s_mov_b32 s59, 0x20000")
    o += [sop("s_mov_b32", sITEM, sXB), sop("s_mov_b32", sLEFT, "3"), sop("s_mov_b32", sNN, "0"), sop("s_mov_b32", sFLAG, "0"), sop("s_mov_b32", sMODE, "0"), sop("s_mov_b32", sTODO, "0")]
    x("s_waitcnt lgkmcnt(0)")
    x(f"s_mov_b32 s{sQP}, s4"); x(f"s_mov_b32 s{sQP+1}, s5")
    return o

def addr_setup():
    L, N, G, A, B_ = T
    o = [valu("v_and_b32", N, "15", L), valu("v_lshrrev_b32", G, "4", L)]
    o += [valu("v_lshrrev_b32", A, "3", N), valu("v_mul_u32_u24", "v0", "3072", A), valu("v_and_b32", "v1", "7", N), valu("v_lshl_add_u32", "v0", "v1", "7", "v0")]
    for e in range(2):
        o += [valu("v_add_u32", A, str(4 * e), G), valu("v_xor_b32", A, A, "v1"), valu("v_lshl_add_u32", KA[e], A, "4", "v0"), valu("v_add_u32", QA[e], sSTG, KA[e])]
    o += [valu("v_lshrrev_b32", "v2", "5", L), valu("v_mul_u32_u24", "v3", "3072", "v2"), valu("v_and_b32", A, "31", L), valu("v_lshl_add_u32", "v3", A, "4", "v3"),
          valu("v_add_u32", "v3", sSTG, "v3"), valu("v_add_u32", OW, "3072", "v3")]
    o += [valu("v_lshrrev_b32", A, "3", L), valu("v_mul_u32_u24", A, "384", A), valu("v_and_b32", B_, "7", L), valu("v_lshl_add_u32", VOFO, B_, "4", A)]
    o += [valu("v_lshlrev_b32", "v3", "8", "v2"), valu("v_and_b32", A, "1", G), valu("v_lshl_add_u32", "v3", A, "9", "v3"), valu("v_and_b32", A, "1", L), valu("v_lshl_add_u32", "v3", A, "7", "v3"),
          valu("v_bfe_u32", A, L, "2", "2"), valu("v_lshl_add_u32", "v3", A, "4", "v3"), valu("v_bfe_u32", A, L, "1", "1"), valu("v_lshl_add_u32", "v3", A, "3", "v3"),
          valu("v_add_u32", "v3", sSTG, "v3"), valu("v_add_u32", VDR0, "3072", "v3")]
    o += [valu("v_mov_b32", A, sWAVE), valu("v_lshlrev_b32", A, "8", A), valu("v_add_u32", A, str(FLAGS_LDS + 256), A), valu("v_lshl_add_u32", SCW, L, "2", A), valu("v_lshl_add_u32", SCR, G, "4", A)]
    o += [valu("v_lshrrev_b32", B_, "2", L), valu("v_lshrrev_b32", A, "3", B_), valu("v_mul_u32_u24", "v0", "3072", A), valu("v_and_b32", "v1", "7", B_),
          valu("v_lshl_add_u32", "v0", "v1", "7", "v0"), valu("v_and_b32", A, "1", L), valu("v_lshl_add_u32", "v0", A, "3", "v0"), valu("v_bfe_u32", "v2", L, "1", "1"),
          valu("v_lshl_add_u32", "v0", "v2", "6", "v0"), valu("v_lshrrev_b32", "v1", "1", "v1")]
    for j in range(4):
        o += [valu("v_xor_b32", A, str(j), "v1"), valu("v_lshl_add_u32", VA[j], A, "4", "v0")]
    for qb in range(4): o += [valu("v_mov_b32", MC[qb], "0xff800000"), valu("v_mov_b32", LS[qb], "0")]
    return o

def touch_pages(cfg):
    o = []
    def ld(ptr, off): o.append(salu(f"s_load_dword s4, s[{ptr}:{ptr+1}], {off}"))
    o += [sop("s_min_u32", sT[1], sWAVE, "2"), sop("s_lshl_b32", sT[1], sT[1], "5"), sop("s_add_u32", sT[1], sT[1], sXB), sop("s_mul_i32", sT[2], sT[1], "98304")]
    ld(sOP, sT[2])
    if cfg.touch > 1: ld(sQP, sT[2])
    o += [sop("s_add_u32", sT[3], sT[2], "98300")]
    ld(sOP, sT[3])
    if cfg.touch > 1:
        ld(sQP, sT[3])
        o += [sop("s_mul_hi_u32", sT[4], sT[1], "0x55555556"), sop("s_mul_i32", sT[4], sT[4], "196608")]
        ld(sKP, sT[4]); ld(sVP, sT[4])
        o += [sop("s_add_u32", sT[5], sT[4], "196604")]
        ld(sKP, sT[5]); ld(sVP, sT[5])
    return o

def start_run(cfg):
    o = head_base(sT[0], sITEM)
    o += [sop("s_add_u32", "s8", f"s{sKP}", sT[0]), sop("s_addc_u32", "s9", f"s{sKP+1}", "0"), sop("s_mov_b32", "s10", KVWIN)]
    if cfg.p2:
        il = init_loads(cfg)[:cfg.pn[0]]
        o += [x for d in il[:3] for x in d]
        o += window_srd(16, sQP, sITEM) + [sop("s_mov_b32", "s18", QWIN)]
        o += [sop("s_add_u32", "s12", f"s{sVP}", sT[0]), sop("s_addc_u32", "s13", f"s{sVP+1}", "0"), sop("s_mov_b32", "s14", KVWIN)]
        il[8] = il[8] + [sop("s_add_u32", m0reg(w, sl, cb), sRB, str(tab[sl] + cb * 896)) for w, tab, sl in (("K", KSLOT, 1), ("V", VSLOT, 0), ("V", VSLOT, 1)) for cb in range(3)]
        for k, at_ in enumerate(cfg.stag):
            il[at_] = il[at_] + [salu(f"s_cmp_lt_u32 s2, {cfg.stagwg}"), salu(f"s_cbranch_scc1 L_stag{k}"), salu("s_waitcnt vmcnt(0)"), label(f"L_stag{k}")]
        o += [x for d in il[3:] for x in d]
    else:
        for m0, d in kv_dma(cfg, "K", 0, "K0"): o += [m0, nop(0), d]
        o += window_srd(16, sQP, sITEM) + [sop("s_mov_b32", "s18", QWIN)]
        for rg in range(cfg.q_early): o += q0_dma(cfg, rg)
    fill = addr_setup(); mixed = []
    for x in o:
        if x.text == "s_nop 0" and fill:
            mixed += fill[:6]; del fill[:6]
        else: mixed.append(x)
    o = mixed + fill
    if cfg.touch: o += touch_pages(cfg)
    if not cfg.p2: o += kv_advance("K", wrap=False) + [sop("s_add_u32", "s12", f"s{sVP}", sT[0]), sop("s_addc_u32", "s13", f"s{sVP+1}", "0"), sop("s_mov_b32", "s14", KVWIN)]
    o += [sop("s_mov_b32", "s20", f"s{sOP}"), sop("s_mov_b32", "s21", f"s{sOP+1}"), sop("s_mov_b32", "s22", "0"), valu("v_add_u32", VDR, "3072", VDR0)]
    if cfg.pf:
        o += [sop("s_add_u32", sT[4], sXB, "64")] + window_srd(84, sQP, sT[4])
        o += [salu(f"s_cmp_eq_u32 {sLEFT}, 3", [sLEFT], ["scc"]), sop("s_cselect_b32", "s86", "0" if cfg.nomem else str(cfg.pf * 128), "0"), sop("s_mov_b32", "s87", "0x20000"),
              sop("s_mov_b32", "s0", str(24576 // cfg.pfn)), sop("s_mov_b32", "s1", str(cfg.pfn - 1))]
    if cfg.exp == "early_o":
        o += [sop("s_add_u32", sT[4], sITEM, "64")] + window_srd(20, sOP, sT[4]) + [sop("s_mov_b32", "s22", WIN)]
    return o

def max_pass(cfg):
    L, N, G, A, B_ = T
    o = [valu("v_and_b32", N, "15", L), valu("v_lshrrev_b32", G, "4", L), valu("v_mul_u32_u24", A, "384", N), valu("v_lshl_add_u32", A, G, "4", A)]
    o += window_srd(20, sQP, sITEM) + [sop("s_mov_b32", "s22", WIN)]
    for qb in range(4):
        o.append(sop("s_mov_b32", sT[5], str(qb * 6144)))
        for s in range(6): o.append(gload(Qreg(qb, s), A, SRO, sT[5], s * 64))
    o += [sop("s_mul_hi_u32", sT[5], sITEM, "0x55555556"), sop("s_mul_i32", sT[5], sT[5], "196608"), sop("s_mov_b32", sT[6], "16")]
    o += [sop("s_mov_b32", "s20", f"s{sKP}"), sop("s_mov_b32", "s21", f"s{sKP+1}"), sop("s_mov_b32", "s22", "0" if cfg.nomem else "50331648")]
    o += [label("L_maxloop")]
    body = []
    for kb in range(2):
        if kb: body.append(sop("s_add_u32", sT[5], sT[5], "6144"))
        for s in range(6): body.append(gload(Kreg(kb, s), A, SRO, sT[5], s * 64))
    body += [sop("s_add_u32", sT[5], sT[5], "6144"), waitcnt(vm=0)]
    body += qk_mfmas() + [nop(7)]
    for qb in range(4):
        for e in range(0, 8, 2): body.append(valu("v_max3_f32", MC[qb], MC[qb], Se(qb, e), Se(qb, e + 1)))
    body += [sop("s_sub_u32", sT[6], sT[6], "1"), salu(f"s_cmp_lg_u32 {sT[6]}, 0"), salu("s_cbranch_scc1 L_maxloop")]
    return o + body + [sop("s_mov_b32", "s20", f"s{sOP}"), sop("s_mov_b32", "s21", f"s{sOP+1}"), sop("s_mov_b32", "s22", "0")]

def stamp(idx):
    if TR3: return []
    return [salu(f"s_memtime s[{64+2*idx}:{65+2*idx}]")]

def build(cfg):
    cfg._m = 68
    global WIN, KVWIN, QWIN, TR3, MODEL, CPF64
    CPF64 = cfg.cpf64
    MODEL = cfg.model
    TR3 = cfg.trace == 3
    WIN = "0" if cfg.nomem else "24576"
    KVWIN = "0" if cfg.nomem else "3072"
    QWIN = "0" if cfg.nomem else "6144"
    blk = {}
    for k in "AZOEXY": blk[k] = fixnops(iteration(cfg, k), k)
    blk["setup"] = fixnops(setup(cfg), "setup")
    blk["start"] = fixnops(start_run(cfg), "start")
    blk["max"] = max_pass(cfg)
    blk["P"] = fixnops((prologue2 if cfg.p2 else prologue)(cfg), "P")
    if cfg.p2: blk["A"] = []
    blk["F"] = fixnops(finalize(cfg), "F")
    blk["T"] = fixnops(last_block(cfg), "T")
    br = lambda t: [salu(t)]
    def item(z="Z"): return blk[z] + (br("b") if z == "Z" else []) + (blk["O"] + br("b") + blk["E"] + br("b")) * 6 + blk["O"] + br("b") + br("b") + br("b")
    mid = blk["X"] + blk["Y"] + blk["F"]
    tr1 = blk["setup"] + blk["start"] + br("b") + br("b") + blk["P"] + item("A") + mid + item() + mid + item() + blk["T"]
    tr2 = blk["setup"] + blk["start"] + br("b") + br("b") + blk["max"] + blk["P"] + item("A") + blk["T"]
    best = {}
    for tr in (tr1, tr2):
        vm = []
        for ins in tr:
            if ins.kind == "G": vm.append(ins.tag)
            if getattr(ins, "need", None):
                tag, nb = ins.need
                seen = 0; cnt = None
                for j in range(len(vm) - 1, -1, -1):
                    if vm[j] == tag:
                        if seen == 3 * (nb - 1): cnt = len(vm) - 1 - j; break
                        seen += 1
                assert cnt is not None
                best[id(ins)] = (min(cnt, best.get(id(ins), (99,))[0]), ins)
    for cnt, ins in best.values():
        ins.vm = cnt; ins.text = f"s_waitcnt vmcnt({cnt})" + (f" lgkmcnt({ins.lgkm})" if ins.lgkm is not None else "")
    for tr, n in ((tr1, "tr1"), (tr2, "tr2")):
        p = check(tr, n)
        for x in sorted(set(p)): print("HAZARD", x, file=sys.stderr)
        assert not p
    out = []
    a = out.append
    def emit(seq):
        if cfg.trace == 1 and any(seq is blk[k] for k in "AZOEXYTF"):
            a("    s_mov_b32 m0, s45"); a("    s_nop 0"); a("    v_writelane_b32 v255, s4, m0"); a("    s_add_u32 s45, s45, 1"); a("    s_nop 0"); a("    s_memtime s[4:5]")
        tp = ["    s_memtime s[4:5]", "    s_waitcnt lgkmcnt(0)", "    s_mov_b32 m0, s45", "    s_nop 0", "    v_writelane_b32 v255, s4, m0", "    s_add_u32 s45, s45, 1"]
        for i in seq:
            mk = cfg.trace == 2 and getattr(i, "mark", False)
            if mk: out.extend(tp)
            if cfg.trace == 3 and (getattr(i, "mark3", False) or (seq is blk["T"] and (i is seq[0] or i is seq[-1]))):
                out.extend([f"    s_memtime s[{cfg._m}:{cfg._m+1}]"]); cfg._m += 2
            a(("" if i.kind == "L" else "    ") + i.text)
            if mk: out.extend(tp)
    for l in """Fused attention forward, B8 H32 Sq768 Sk512 D192, bf16 in/out. Emitted by my own scheduler script (gen/gen.py).
Kernarg: +0 q, +8 k, +16 v, +24 out, +32 debug (unused), +40 ws (unused).
One 4-wave workgroup per CU (one wave per SIMD, 512 registers). Every workgroup runs three blocks of 256 query rows; the three
workgroups that share a head sit next to each other in one XCD's list so K/V are fetched from HBM once (speed only).
K/V tiles of 32 keys stream through a two-slot LDS ring by LDS-DMA; each wave keeps 64 query rows (Q fragments + O accumulators) in registers.
Per tile: S^T = K Q^T and O += P V with v_mfma_f32_16x16x32_bf16; softmax VALU, LDS reads and loads sit in the gaps between the MFMAs.
Softmax reference value: the row maximum over the first key tile. Row sums are checked at the end of every block; if any reaches 2^40
(the reference was far below the true maximum) the workgroup recomputes that block with the exact row maximum (L_max pass + rerun).
Next block's Q and previous block's O travel through a per-wave LDS staging area during the main loop.""".split("\n"): a("; " + l)
    a("; @launch grid=(256,1,1) block=(256,1,1) lds=163840")
    a('.amdgcn_target "amdgcn-amd-amdhsa--gfx950"'); a(".text"); a(f".globl {NAME}"); a(".p2align 8"); a(f".type {NAME},@function"); a(f"{NAME}:")
    emit(blk["setup"])
    a("L_run:")
    emit(blk["start"])
    a(f"    s_cmp_lg_u32 {sMODE}, 0"); a("    s_cbranch_scc1 L_max")
    a("L_k0:")
    if cfg.trace: a("    s_mov_b32 s45, 0"); a("    s_mov_b32 s4, s60")
    if cfg.trace == 2: a("    v_writelane_b32 v255, s4, 0"); a("    s_mov_b32 s45, 1")
    if cfg.stamps: emit(stamp(2))
    emit(blk["P"])
    if cfg.stamps: emit(stamp(8))
    a(".p2align 3")
    emit(blk["A"])
    a(f".p2align {cfg.oalign}"); a("L_O:")
    emit(blk["O"])
    a("    s_cbranch_scc1 L_X")
    a(".p2align 3")
    emit(blk["E"])
    a("    s_branch L_O")
    a(".p2align 6")
    if cfg.shift: a(f".fill {cfg.shift // 4}, 4, 0xbf800000")
    a("L_X:")
    a(f"    s_cmp_eq_u32 {sLEFT}, 1"); a("    s_cbranch_scc1 L_T")
    emit(blk["X"])
    a(".p2align 3")
    if cfg.stamps: a("    s_mov_b64 s[72:73], s[74:75]"); a("    s_nop 0"); emit(stamp(5))
    emit(blk["Y"])
    emit(blk["F"])
    a(".p2align 3"); a("L_Z:")
    if cfg.stamps: emit(stamp(7))
    emit(blk["Z"])
    a("    s_branch L_O")
    a(".p2align 6"); a("L_T:")
    if cfg.stamps: emit(stamp(9))
    emit(blk["T"])
    if cfg.stamps: emit(stamp(3))
    a(f"    s_cmp_lg_u32 {sMODE}, 0"); a("    s_cbranch_scc1 L_todo")
    a(f"    v_mov_b32 v0, {sFLAG}"); a(f"    s_lshl_b32 {sT[0]}, {sWAVE}, 2"); a(f"    s_add_u32 {sT[0]}, {sT[0]}, {FLAGS_LDS}"); a(f"    v_mov_b32 v1, {sT[0]}")
    a("    ds_write_b32 v1, v0"); a("    s_waitcnt lgkmcnt(0)"); a("    s_barrier")
    a(f"    v_mov_b32 v1, {FLAGS_LDS}"); a("    ds_read_b128 v[4:7], v1"); a("    s_waitcnt lgkmcnt(0)")
    a("    v_or_b32 v4, v4, v5"); a("    v_or3_b32 v4, v4, v6, v7"); a("    s_nop 1"); a(f"    v_readfirstlane_b32 {sTODO}, v4"); a(f"    s_mov_b32 {sMODE}, 1"); a("    s_nop 3")
    a("L_todo:")
    a(f"    s_and_b32 {sTODO}, {sTODO}, 7")
    a(f"    s_cbranch_scc0 L_fin")
    a(f"    s_ff1_i32_b32 {sNN}, {sTODO}"); a(f"    s_bitset0_b32 {sTODO}, {sNN}")
    a(f"    s_lshl_b32 {sITEM}, {sNN}, 5"); a(f"    s_add_u32 {sITEM}, {sITEM}, {sXB}"); a(f"    s_mov_b32 {sLEFT}, 1")
    a("    s_waitcnt vmcnt(0) lgkmcnt(0)"); a("    s_barrier"); a("    s_branch L_run")
    a("L_fin:")
    if cfg.stamps:
        a("    s_waitcnt vmcnt(0)")
        a("    s_memtime s[64:65]"); a("    s_memrealtime s[66:67]"); a("    s_waitcnt lgkmcnt(0)")
        a(f"    s_cmp_lg_u32 {sWAVE}, 0"); a("    s_cbranch_scc1 L_end")
        if cfg.stamps == 2:
            a("    s_not_b32 s76, s62"); a("    s_sub_u32 s77, s64, s60"); a("    s_sub_u32 s78, s68, s60"); a("    s_sub_u32 s79, s70, s60"); a("    s_sub_u32 s80, s72, s60")
            a("    s_sub_u32 s81, s66, s62"); a("    s_not_b32 s82, s66"); a("    s_not_b32 s83, s77"); a("    s_not_b32 s84, s78")
            srcs = [66, 76, 62, 82, 77, 83, 78, 84, 79, 80, 81]
            for i, s in enumerate(srcs): a(f"    v_mov_b32 v{i}, s{s}")
            a("    v_mov_b32 v16, 0"); a("    s_mov_b64 exec, 1")
            for i in range(len(srcs)): a(f"    buffer_atomic_umax v{i}, v16, s[56:59], 0 offen offset:{4*i}")
        else:
            order = [2, 8, 4, 5, 7, 9, 3, 0, 0, 0, 0, 0] if cfg.trace != 3 else [2, 3, 4, 5, 6, 7, 8, 9, 10, 11, 0, 0]
            src = [60, 61, 64, 65, 62, 63, 66, 67] + [x for k in order for x in (64 + 2 * k, 65 + 2 * k)]
            for i, s in enumerate(src): a(f"    v_mov_b32 v{i}, s{s}")
            if cfg.trace:
                a("    s_mov_b32 m0, s45"); a("    s_nop 0"); a("    v_writelane_b32 v255, s4, m0"); a("    v_lshlrev_b32 v33, 2, v251"); a("    s_lshl_b32 s41, s2, 8"); a("    s_add_u32 s41, s41, 0x100000")
                a("    buffer_store_dword v255, v33, s[56:59], s41 offen")
            a("    s_lshl_b32 s41, s2, 7"); a("    v_mov_b32 v32, 0"); a("    s_mov_b64 exec, 1")
            for i in range(8): a(f"    buffer_store_dwordx4 v[{4*i}:{4*i+3}], v32, s[56:59], s41 offen offset:{16*i}")
    a("L_end:"); a("    s_endpgm")
    a("L_max:")
    emit(blk["max"])
    a("    s_branch L_k0")
    if cfg.tailpad: a(f".fill {cfg.tailpad // 4}, 4, 0xbf800000")
    a("L_last:"); a("    s_endpgm")
    if cfg.cpf: a(f".set CODE_BYTES, L_last - L_pc")
    a('.section .rodata,"a"'); a(".p2align 6"); a(f".amdhsa_kernel {NAME}")
    for l in ["next_free_vgpr 512", "next_free_sgpr 102", "accum_offset 256", "group_segment_fixed_size 0", "kernarg_size 48", "user_sgpr_count 2",
              "user_sgpr_kernarg_segment_ptr 1", "system_sgpr_workgroup_id_x 1"]: a("  .amdhsa_" + l)
    a(".end_amdhsa_kernel")
    return "\n".join(out) + "\n"

if __name__ == "__main__":
    kw = {}
    for x in sys.argv[2:]:
        k, v = x.split("=", 1)
        kw[k] = ((" " + v.replace("+", " ")) if v != "-" else "") if k.startswith("pol") else eval(v)
    import subprocess, tempfile, os, io, contextlib
    cfg = Cfg(**kw)
    txt = build(cfg)
    if cfg.ophase is not None:
        with tempfile.TemporaryDirectory() as d:
            open(d + "/t.s", "w").write(txt)
            subprocess.run(["clang", "-x", "assembler", "-target", "amdgcn-amd-amdhsa", "-mcpu=gfx950", "-c", d + "/t.s", "-o", d + "/t.o"], check=True)
            nm = subprocess.run(["llvm-objdump", "-t", d + "/t.o"], capture_output=True, text=True).stdout
        addr = {l.split()[-1]: int(l.split()[0], 16) for l in nm.splitlines() if ".text" in l}
        cfg.pad = (cfg.ophase - addr["L_O"]) % 128
        with contextlib.redirect_stderr(io.StringIO()): txt = build(cfg)
    open(sys.argv[1], "w").write(txt)
```

```python
import sys, struct, math, re
from asmlib import *

NAME = "standalone__gqa_softmax__near_ridge_kernel"
def f2h(x): return "0x%08x" % struct.unpack("<I", struct.pack("<f", x))[0]
CSCALE = (192 ** -0.5) * math.log2(math.e)

class Cfg:
    polkv = " nt"; polq = " nt"; polo = " sc1"
    stamps = False
    nomem = False
    kill = ""
    vsp = 6
    rdend = 38
    q_early = 6
    touch = 0
    trace = 0
    kvpf = 2
    kvpf2 = 3
    kvpf_last = 0
    kvpf_at = 'Y90'
    pad = 0
    ophase = None
    oalign = 5
    vtouch = 0
    lfin = 3
    lsp = 3
    lrlo = 0
    cpf = 1
    cpf2 = 0
    cpf64 = 0
    shift = 0
    onecol = 0
    wbfrom = 4
    pfin = 'O'
    stag = ()
    stagwg = 120
    tailpad = 8192
    cpfat = 8
    stg = (21, 33, 45)
    model = 1
    lk = (2, 4)
    lfin0 = 1
    lin = 6
    learly = (0, 3)
    p2 = 1
    pn = (11, 5, 6, 6, 5, 3)
    lorder = 'K0 A0 K1 B0 A1 B1 K2 A2 K3 B2 A3 B3'
    pf = 16
    pfn = 6
    pfA = 0
    polpf = ''
    exp = ''
    nfw = 12
    zwend = 72
    thresh = 2.0 ** 40
    def __init__(s, **kw): s.__dict__.update(kw)

def Oreg(qb, b): return R("v", (qb * 11 + b) * 4, 4) if b < 11 else R("a", 192 + 4 * qb, 4)
SB = 176; PB = 208
def Sreg(qb, kb): return R("v", SB + qb * 8 + kb * 4, 4)
def Se(qb, e): return f"v{SB + qb * 8 + e}"
def Preg(qb): return R("v", PB + 4 * qb, 4)
KA = ["v224", "v225"]; VA = ["v226", "v227", "v228", "v229"]; VOFF = "v230"; VDR = "v231"
MC = [f"v{232+i}" for i in range(4)]; LS = [f"v{236+i}" for i in range(4)]; LSV = [f"v{240+i}" for i in range(4)]
QA = ["v244", "v245"]; OW = "v246"; VOFO = "v247"; SCW = "v248"; SCR = "v249"; VDR0 = "v250"; VOFV = "v253"
T = ["v251", "v4", "v5", "v6", "v7"]
def Qreg(qb, s): return R("a", (qb * 6 + s) * 4, 4)
def Kreg(kb, s): return R("a", 96 + (kb * 6 + s) * 4, 4)
def Vreg(b): return R("a", 144 + 4 * b, 4)
def Vhalf(b, x): return R("a", 144 + 4 * b + 2 * x, 2)
def DRreg(i): return R("a", 208 + 4 * i, 4)
SRK, SRV, SRQ, SRO = "s[8:11]", "s[12:15]", "s[16:19]", "s[20:23]"
sWAVE, sKEND, sVEND, sNR, sGOF, sC, sCNT, sLEFT, sITEM, sRB, sSTG, sQM, sFLAG = [f"s{i}" for i in range(24, 37)]
sT = [f"s{i}" for i in range(38, 46)]
sQP, sOP = 46, 48
sXB = "s50"
sNN = "s51"
sMODE = "s52"
sTODO = "s53"
sKP, sVP = 6, 54
sKNX, sVNX = 88, 90
sM0 = 4
M0TAB = {("K", 0): 92, ("K", 1): 95, ("V", 0): 98}
def m0reg(which, slot, cb):
    if (which, slot) == ("V", 1): return ["s101", "s37", "s3"][cb]
    return f"s{M0TAB[(which, slot)] + cb}"
KSLOT = [0, 12288]; VSLOT = [24576, 36864]; STG = 49152; STGW = 27648; FLAGS_LDS = 49152 + 4 * 27648
OOR = 0x40000000

def qk_mfmas():
    out = []
    for qb in range(4):
        for kb in range(2):
            for s in range(6):
                out.append(mfma(Sreg(qb, kb), Kreg(kb, s), Qreg(qb, s), "0" if s == 0 else Sreg(qb, kb)))
    return out
def pv_mfmas(c0):
    return [mfma(Oreg(qb, b), Preg(qb), Vreg(b), "0" if c0 else Oreg(qb, b)) for qb in range(4) for b in range(12)]
def k_reads(slot):
    return [ds_read("ds_read_b128", Kreg(kb, s), KA[s & 1], KSLOT[slot] + kb * 6144 + (s >> 1) * 1024) for kb in range(2) for s in range(6)]
def q_reads():
    return [ds_read("ds_read_b128", Qreg(qb, s), QA[s & 1], qb * 6144 + (s >> 1) * 1024) for qb in range(4) for s in range(6)]
def v_reads(slot):
    return [ds_read("ds_read_b64_tr_b16", Vhalf(b, x), VA[b & 3], VSLOT[slot] + x * 6144 + (b >> 2) * 1024) for b in range(12) for x in range(2)]
def kv_dma(cfg, which, slot, tag=None):
    srd = SRK if which == "K" else SRV
    return [(sop("s_mov_b32", "m0", m0reg(which, slot, cb)), dma(VOFF if which == "K" else VOFV, srd, "0", cb * 128, cfg.polkv, tag=tag or which)) for cb in range(3)]
def kv_advance(which, wrap=True):
    lo, end, nx = (8, sKEND, sKNX) if which == "K" else (12, sVEND, sVNX)
    o = [sop("s_add_u32", f"s{lo}", f"s{lo}", "12288"), sop("s_addc_u32", f"s{lo+1}", f"s{lo+1}", "0")]
    if wrap:
        o += [salu(f"s_cmp_eq_u32 s{lo}, {end}", [f"s{lo}", end], ["scc"]),
              sop("s_cselect_b64", R("s", lo, 2), R("s", nx, 2), R("s", lo, 2)), sop("s_cselect_b32", f"s{lo+2}", sNR, f"s{lo+2}")]
    return o

class Op:
    def __init__(s, ins, deps=(), lo=0, hi=95, fixed=None, samegap=()):
        s.ins = ins; s.deps = list(deps); s.lo = lo; s.hi = hi; s.fixed = fixed; s.gap = None; s.samegap = list(samegap)

NEXP_H = 22
def sm_ops(minit=None):
    H, Rr = [], []
    egaps = list(range(2, 96, 3))
    for qb in range(4):
        ready = 12 * qb + 11 + 4
        pre = []
        if minit:
            t, u = MC[qb], LS[qb]
            sv = Op(valu("v_mov_b32", LSV[qb], LS[qb]), lo=(0 if qb < 2 else 12 * qb))
            c = []
            def ch(ins, extra=()):
                o = Op(ins, deps=(c[-1:] if c else []) + list(extra), lo=ready); c.append(o); return o
            if minit == "P":
                ch(valu("v_max3_f32", t, t, Se(qb, 0), Se(qb, 1)))
                ch(valu("v_max3_f32", t, t, Se(qb, 2), Se(qb, 3)))
                ch(valu("v_max3_f32", t, t, Se(qb, 4), Se(qb, 5)))
                ch(valu("v_max3_f32", t, t, Se(qb, 6), Se(qb, 7)))
            else:
                ch(valu("v_max3_f32", t, Se(qb, 0), Se(qb, 1), Se(qb, 2)))
                ch(valu("v_max3_f32", t, t, Se(qb, 3), Se(qb, 4)))
                ch(valu("v_max3_f32", t, t, Se(qb, 5), Se(qb, 6)))
                ch(valu("v_max_f32", t, t, Se(qb, 7)))
            ch(valu("v_mov_b32", u, t), [sv])
            ch(swap("v_permlane32_swap_b32", t, u))
            ch(valu("v_max_f32", t, t, u))
            ch(valu("v_mov_b32", u, t))
            ch(swap("v_permlane16_swap_b32", t, u))
            ch(valu("v_max_f32", t, t, u))
            last = ch(valu("v_mul_f32", t, sC, t))
            z = Op(valu("v_mov_b32", u, "0"), deps=[c[-2]], lo=ready)
            H += [sv] + c + ([z] if qb == 3 else [])
            pre = [last, c[-2]]
        prevadd = None
        ex = []
        for e in range(8):
            n = qb * 8 + e
            inH = n < NEXP_H
            f = Op(valu("v_fma_f32", Se(qb, e), Se(qb, e), sC, "-" + MC[qb]), deps=pre[:1])
            x = Op(valu("v_exp_f32", Se(qb, e), Se(qb, e), kind="E"), deps=[f])
            fH = True
            if fH: f.lo = ready
            else: f.deps = []
            (H if fH else Rr).append(f)
            x.fixed = egaps[(32 - NEXP_H) + n] if inH else egaps[n - NEXP_H]
            if not inH and fH: x.deps = []
            (H if inH else Rr).append(x)
            aH = n < NEXP_H - 2
            a = Op(valu("v_add_f32", LS[qb], LS[qb], Se(qb, e)), deps=([x] if (aH or not inH) else []) + (pre[1:] if aH else []))
            if prevadd is not None and prevadd[1] == aH: a.samegap = [prevadd[0]]
            if not aH: a.hi = 12 * qb - 1
            ex.append((x, inH))
            if minit and qb < 3 and e == 1: a.ins = valu("v_add_f32", LS[qb], Se(qb, 0), Se(qb, 1))
            if not (minit and qb < 3 and e == 0):
                prevadd = (a, aH)
                (H if aH else Rr).append(a)
            if e & 1:
                cv = Op(valu("v_cvt_pk_bf16_f32", f"v{PB + 4*qb + (e >> 1)}", Se(qb, e - 1), Se(qb, e)),
                        deps=[y for (y, h) in ex[-2:] if h == aH])
                if aH: cv.lo = 48 + 12 * qb + 11
                else: cv.hi = 12 * qb - 1
                (H if aH else Rr).append(cv)
        for o in H + Rr:
            if not hasattr(o, "qb"): o.qb = qb
    for k, o in enumerate(H + Rr): o.seq = k
    return H, Rr

def schedule(mf, mem, sal, ops, sq=(), post={}):
    assert all(0 <= g < len(mf) for g in list(mem) + list(sal) + list(post)), (sorted(mem)[-3:], sorted(sal)[-3:])
    sq = list(sq)
    for g in range(len(mf)):
        while sq and sq[0][0] <= g and ((g not in mem and g not in sal) or sq[0][1] <= g):
            sal.setdefault(g, []).append(sq.pop(0)[2])
    assert not sq
    cons = {id(o): [] for o in ops}
    for o in ops:
        for d in o.deps: cons[id(d)].append((o, 1))
        for d in o.samegap: cons[id(d)].append((o, 0))
    def dl(o, memo={}):
        if id(o) in memo: return memo[id(o)]
        v = o.fixed if o.fixed is not None else o.hi
        if o.fixed is None:
            for c, k in cons[id(o)]:
                v = min(v, dl(c, memo) - k - (1 if getattr(c.ins, "perm", False) else 0))
        memo[id(o)] = v
        return v
    memo = {}
    for o in ops: o.dl = dl(o, memo)
    for o in ops: assert o.dl >= o.lo, (o.ins, o.dl, o.lo)
    out = []; over = 0
    todo = [o for o in ops if o.fixed is None]
    fixed = {o.fixed: o for o in ops if o.fixed is not None}
    for g in range(len(mf)):
        if mf[g] is not None: out.append(mf[g])
        m = mem.get(g, []); s = sal.get(g, [])
        room = 2
        out += m; room -= sum(2 if x.kind == 'W' else 1 for x in m)
        out += s; room -= (len(s) if m else max(0, len(s) - 1))
        if MODEL == 2 or (MODEL and any(getattr(x, "store", False) for l in mem.values() for x in l)):
            if any(getattr(x, "store", False) for x in m): room += 3
            if any(x.text == "s_barrier" for x in s): room -= 2; over -= 0
            if any(getattr(x, "dma", False) for x in m) and not any(x.kind == "G" for k in range(max(0, g - 8), g) for x in mem.get(k, [])): room -= 1
        if g in fixed:
            o = fixed[g]
            assert all(d.gap is not None and d.gap < g for d in o.deps), o.ins
            o.gap = g; out.append(o.ins); room -= 2
        while True:
            rdy = [o for o in todo if o.lo <= g and all(d.gap is not None and d.gap + (1 if getattr(o.ins, "perm", False) else 0) < g for d in o.deps)
                   and all(d.gap is not None for d in o.samegap)]
            if not rdy: break
            cost = lambda o: 2 if (o.ins.kind == "E" or getattr(o.ins, "perm", False)) else 1
            fit = [o for o in rdy if cost(o) <= room or o.dl <= g]
            if not fit: break
            o = min(fit, key=lambda o: (o.dl, -cost(o)))
            o.gap = g; todo.remove(o); out.append(o.ins); room -= cost(o)
        over += max(0, -room)
        out += post.get(g, [])
    assert not todo, [o.ins for o in todo]
    return out, over

def spread(rd, free, M):
    n = len(rd)
    for k, g in enumerate(free):
        while rd and (n - len(rd)) < (n * (k + 1) + len(free) - 1) // len(free) if n > len(free) else (rd and n - len(rd) <= k):
            M(g, rd.pop(0))
    assert not rd

def piece_reads(base, off):
    return [ds_read("ds_read_b64_tr_b16", R("a", base + 2 * x, 2), VDR, off + 64 * x) for x in range(2)]
def drain_reads(n=3): return [r for i in range(n) for r in piece_reads(208 + 4 * i, i * 1024)]
def pc_off(i): return (i // 3) * 3072 + (i % 3) * 128
def o_store(cfg, i): return gstore(DRreg(i), VOFO, SRO, sGOF, pc_off(i), cfg.polo, tag="O")
def q_dma(cfg, i, tag="Q"): return (sop("s_add_u32", "m0", sQM, str((i % 3) * 896)), dma(VOFF, SRQ, "0", pc_off(i), cfg.polq, tag=tag))
def stage_advance(n, o=True):
    return [sop("s_add_u32", "s16", "s16", str(n)), sop("s_addc_u32", "s17", "s17", "0"), sop("s_add_u32", sQM, sQM, str(n))] + ([sop("s_add_u32", sGOF, sGOF, "3072")] if o else [])

def fin_order(): return [(qb, b) for qb in range(4) for b in range(0, 12, 2)]
LIF = lambda qb: SB + 4 * qb
SCROW = [0, 2, 1, 3]

def l_reduce_ops(cfg, deps):
    a, b, c, d = LSV
    s1 = Op(swap("v_permlane32_swap_b32", a, b), deps=deps[:2]); s2 = Op(swap("v_permlane32_swap_b32", c, d), deps=deps[2:])
    a1 = Op(valu("v_add_f32", a, a, b), deps=[s1]); a2 = Op(valu("v_add_f32", c, c, d), deps=[s2])
    s3 = Op(swap("v_permlane16_swap_b32", a, c), deps=[a1, a2]); a3 = Op(valu("v_add_f32", a, a, c), deps=[s3])
    r = Op(I(f"v_rcp_f32 {b}, {a}", "E", [a], [b]), deps=[a3])
    return [s1, s2, a1, a2, s3, a3, r], r

def iteration(cfg, kind):
    par = {"A": 0, "Z": 0, "O": 1, "E": 0, "X": 0, "Y": 1}[kind]
    mf = qk_mfmas() + pv_mfmas(kind in "AZ")
    mem = {}; sal = {}; sq = []
    def M(g, i):
        l = mem.setdefault(g, [])
        l.insert(len([x for x in l if x.kind != "W"]), i) if i.kind == "D" else l.append(i)
    def busy(g): return g in mem and any(x.kind != "W" for x in mem[g])
    def S(g, i): sal.setdefault(g, []).append(i)
    def Q(lo, hi, lst): sq.extend((lo, hi, x) for x in lst)
    ops = sm_ops()[1] + sm_ops({"Y": "Y"}.get(kind))[0]
    sp = cfg.vsp
    nq = {"A": 6, "Z": 3, "E": 3, "Y": 3}.get(kind, 0)
    S(0, salu("s_barrier"))
    for j, (m0, d) in enumerate(kv_dma(cfg, "K", (par + 1) & 1)):
        S(2 + sp * j, m0); M(3 + sp * j, d)
    if kind in "EZX":
        for i in range(3): M(cfg.stg[i], o_store(cfg, i))
    if kind == "A" and cfg.vtouch:
        M(21, I(f"buffer_load_dword v252, v254, s[20:23], 0 offen", "G", ["v254", "s[20:23]"], [], tag="PF"))
        Q(22, 46, [sop("s_mov_b32", "s22", "0")])
    if kind == cfg.pfin and cfg.pf:
        M(21 if kind == "O" else 27, I(f"buffer_load_dword v252, v254, s[84:87], 0 offen{cfg.polpf}", "G", ["v254", "s[84:87]"], [], tag="PF"))
    if kind == "Z":
        wr = [fin_pair(qb, b, LIF(qb))[1] for qb, b in fin_order()][cfg.nfw:]
        cand = list(range(1, cfg.zwend, 3))
        wg = [cand[int(k * len(cand) / len(wr))] for k in range(len(wr))]
        for g, w in zip(wg, wr): M(g, w)
        assert cfg.nfw >= 8
        for k, d in enumerate(drain_reads(3)): M([6, 6, 7, 7, 12, 12][k], d)
        w = waitcnt(lgkm=0); w.needlg = mem[12][-1]; S(20, w)
        ops.append(Op(valu("v_add_u32", VDR, "3072", VDR), lo=13))
    spread(v_reads(par), [g for g in range(1, cfg.rdend + (5 if kind == "Z" else 0)) if g % 3 != 2 and not busy(g)], M)
    w = waitcnt(vm=0, lgkm=0); w.need = ("K", 2)
    if kind == "Z": w.lgkm = sum(1 for g in range(cfg.rdend + 5, 48) for x in mem.get(g, []) if x.kind == "W")
    S(47, w)
    if kind == "Y": Q(1, 40, newitem_a())
    Q(4 + 2 * sp, 46, kv_advance("K", wrap=(kind == "E")))
    if kind == cfg.pfin and cfg.pf:
        Q(28, 46, [sop("s_add_u32", "s84", "s84", "s0"), sop("s_addc_u32", "s85", "s85", "0"), sop("s_sub_u32", "s1", "s1", "1"), sop("s_cselect_b32", "s86", "0", "s86")])
    if kind == "X" and cfg.kvpf: sq[0:0] = [(1, 46, x) for x in kvpf_setup(cfg)]
    S(48, salu("s_barrier"))
    for j, (m0, d) in enumerate(kv_dma(cfg, "V", par)):
        S(50 + sp * j, m0); M(51 + sp * j, d)
    if kind == "Y": Q(41, 67, newitem_b())
    if kind == "X": Q(49, 70, window_srd(20, sOP, sITEM) + [sop("s_mov_b32", "s22", WIN)])
    qg = [69, 75, 81] if nq == 3 else [66, 69, 75, 78, 84, 87]
    adv = kv_advance("V", wrap=(kind == "O"))
    if nq == 6: Q(64, 64, adv[:2])
    for i in range(nq):
        m0, d = q_dma(cfg, i)
        Q(qg[i] - 1, qg[i] - 1, [m0]); M(qg[i], d)
        if nq == 3 and i == 0: Q(70, 73, adv[:2])
        if nq == 3 and i == 1: Q(76, 79, adv[2:])
    if nq == 6: Q(88, 94, adv[2:])
    if nq == 0: Q(52 + 2 * sp, 90, adv)
    if nq: Q(qg[-1] + 1, 94, stage_advance(nq * 1024, kind != "Y"))
    if kind == cfg.kvpf_at[0] and cfg.kvpf:
        g = int(cfg.kvpf_at[1:])
        M(g, I(f"buffer_load_dword v252, v254, s[84:87], 0 offen{cfg.polpf}", "G", ["v254", "s[84:87]"], [], tag="PF"))
        Q(g + 1, 94, [sop("s_mov_b32", "s86", "0")])
    if kind == "Z" and cfg.kvpf2: sq[2:2] = [(17, 66, x) for x in kvpf2_setup(cfg)]
    rd = k_reads(par) + (q_reads() if kind == "X" else []) + (drain_reads() if kind == "O" else [])
    free = [g for g in range(49, 48 + cfg.rdend) if g % 3 != 2 and not busy(g)]
    if len(rd) <= 12 and kind != "Z": free = [g for g in free if g % 3 == 1]
    elif len(rd) < len(free): free = [free[int(k * len(free) / len(rd))] for k in range(len(rd))]
    spread(rd, free, M)
    if kind == "E": ops.append(Op(valu("v_add_u32", VDR, "3072", VDR)))
    if kind == "Y":
        ops.append(Op(valu("v_mov_b32", VDR, VDR0)))
        svs = [next(o for o in ops if o.ins.wr == [LSV[q]]) for q in range(4)]
        lr, last = l_reduce_ops(cfg, svs)
        last.hi = 82; ops += lr
        M(85, ds_write("ds_write_b32", SCW, LSV[1], 0))
        fc = flag_check(cfg, LSV[0])
        sq.insert(0, (1, 40, fc[0]))
        ops.append(Op(fc[1], deps=[lr[-2]], hi=86))
        Q(88, 94, fc[2:] + [sop("s_add_u32", sNN, sNN, "1")])
        for o in ops:
            if getattr(o, "qb", 9) < 2 and o.fixed is None: o.hi = min(o.hi, 86)
        for q in range(4): M([87, 87, 88, 88][q], ds_read("ds_read_b128", R("v", LIF(q), 4), SCR, SCROW[q] * 64))
    w = waitcnt(vm=0, lgkm=0); w.need = ("V", 2)
    S(95, w)
    if kind == "O": Q(80, 94, [sop("s_sub_u32", sCNT, sCNT, "1"), salu(f"s_cmp_eq_u32 {sCNT}, 0", [sCNT], ["scc"])])
    post = {}
    if cfg.exp in ("m4", "m16") and kind in "OE":
        ops = [o for o in ops if not o.ins.text.startswith("v_add_f32")]
        for qb in range(4):
            acc = R("a", 224 + 4 * qb, 4)
            if cfg.exp == "m16": post[48 + 12 * qb + 4] = [mfma(acc, Preg(qb), "a[240:243]", acc)]
            else:
                for h in range(2):
                    post[48 + 12 * qb + 3 + 3 * h] = [I(f"v_mfma_f32_4x4x4_16b_bf16 {acc}, a[240:241], {R('v', PB + 4 * qb + 2 * h, 2)}, {acc}", "S")]
    out, over = schedule(mf, mem, sal, ops, sq, post)
    for k, i in enumerate(out):
        if hasattr(i, "needlg"):
            n = sum(1 for x in out[out.index(i.needlg) + 1:k] if x.kind in "DW")
            i.lgkm = n; i.text = f"s_waitcnt lgkmcnt({n})"
    for i in out:
        if "bar" in cfg.kill and i.text == "s_barrier": i.text = "s_nop 0"
        if "b1" in cfg.kill and i is out[1]: i.text = "s_nop 0"
        if kind in "OE":
            if "add" in cfg.kill and i.text.startswith("v_add_f32"): i.text = "s_nop 0"
            if "kr" in cfg.kill and i.text.startswith("ds_read_b128"): i.text = "s_nop 0"
            if "vr" in cfg.kill and i.text.startswith("ds_read_b64_tr") and VDR not in i.rd: i.text = "s_nop 0"
            if "kv" in cfg.kill and i.kind == "G" and i.tag in "KV": i.text = "s_nop 0"
            if "sm" in cfg.kill and i.kind in "VE": i.text = "s_nop 0"
            if "exp" in cfg.kill and i.kind == "E": i.text = i.text.replace("v_exp_f32", "v_mov_b32")
        if "dma" in cfg.kill and i.kind == "G": i.text = "s_nop 0"
        if "ds" in cfg.kill and i.kind == "D": i.text = "s_nop 0"
    print(f"iteration {kind}: {len(out)} instrs, overflow slots {over}", file=sys.stderr)
    return out

def linear(ops):
    ops = list(ops); ids = set(id(o) for o in ops); done = {}; out = []
    while ops:
        def rdy(o, slack):
            return all(id(d) not in ids or (id(d) in done and len(out) - done[id(d)] > slack) for d in o.deps + o.samegap)
        o = next((o for o in ops if rdy(o, 2)), None) or next((o for o in ops if rdy(o, 1)), None) or next(o for o in ops if rdy(o, 0))
        ops.remove(o); done[id(o)] = len(out); out.append(o.ins)
    return out

def weave(mf, fill, per=2):
    out = []; fill = list(fill)
    for m in mf:
        out.append(m)
        if m.kind != "M": continue
        room = per
        while fill and room >= (2 if fill[0].kind == "E" else 1):
            f = fill.pop(0); out.append(f); room -= 2 if f.kind == "E" else 1
    return out, fill

def vw(tag, n=1, lgkm=None):
    w = waitcnt(vm=0, lgkm=lgkm); w.need = (tag, n); w.mark = True; return w

def q0_dma(cfg, rg):
    o = []
    for cb in range(3):
        o += [sop("s_add_u32", "m0", sSTG, str(rg * 3072 + cb * 896)), nop(0), dma(VOFF, SRQ, "0", cb * 128, cfg.polq, tag=f"Q{rg}")]
    return o + [sop("s_add_u32", "s16", "s16", "3072"), sop("s_addc_u32", "s17", "s17", "0")]

def prologue(cfg):
    H = sm_ops("P")[0]
    per = [[o for o in H if o.qb == qb] for qb in range(4)]
    qr = q_reads(); mf = qk_mfmas()
    def kv(which, slot, tag=None):
        o = []
        for m0, d in kv_dma(cfg, which, slot, tag): o += [m0, nop(0), d]
        return o + kv_advance(which, wrap=False)
    o = [vw("K0", lgkm=0), salu("s_barrier")] + k_reads(0)
    if cfg.vtouch:
        o += [valu("v_min_u32", "v254", "2", T[0]), valu("v_mul_u32_u24", "v254", "3145728", "v254")] + window_srd(20, sOP, sXB) + [sop("s_mov_b32", "s22", "0" if cfg.nomem else "6316032")]
    o += [valu("v_lshlrev_b32", "v254", "7", T[0])]
    for qb in range(4):
        o += [vw(f"Q{2*qb+1}")] + qr[6 * qb:6 * qb + 6]
        for s in range(6):
            o += [waitcnt(lgkm=5 - s), mf[12 * qb + s]]
        o += mf[12 * qb + 6:12 * qb + 12]
        if qb == 0: o += [label("L_skipq6")] if False else []
        if qb == 0: o += late_q(cfg)
        if qb == 1: o += kv("K", 1, "K1") + kv("V", 0, "V0")
        if qb == 2: o += [salu("s_barrier")] + kv("K", 0) + kv("V", 1) + newitem_a(first=True) + newitem_b()
        if qb == 3: o += [vw("K1"), salu("s_barrier")] + k_reads(1)
        o += linear(per[qb])
    o += [vw("V0", lgkm=0)]
    return o

def sm_full(qb, minit):
    H, Rr = sm_ops(minit)
    ops = [o for o in H + Rr if o.qb == qb]
    last = {}; readers = {}
    for o in sorted(ops, key=lambda o: SM_RANK(o)):
        o.deps = [last[r] for r in set(o.ins.rd + o.ins.wr) if r in last] + [x for r in o.ins.wr for x in readers.get(r, [])]; o.samegap = []
        for r in o.ins.rd: readers.setdefault(r, []).append(o)
        for r in o.ins.wr: last[r] = o; readers[r] = []
    return sorted(ops, key=lambda o: SM_RANK(o))
def SM_RANK(o):
    t = o.ins.text
    if t.startswith("v_fma"): return (1, t)
    if t.startswith("v_exp"): return (2, t)
    if t.startswith("v_add_f32"): return (3, o.ins.rd[-1])
    if t.startswith("v_cvt"): return (4, t)
    return (0, o.seq)

def prologue2(cfg):
    K0 = lambda kb, s: R("a", 208 + (kb * 6 + s) * 4, 4)
    qr = q_reads(); qk1 = qk_mfmas(); pv0 = pv_mfmas(True)
    qk0 = [mfma(Sreg(qb, kb), K0(kb, s), Qreg(qb, s), "0" if s == 0 else Sreg(qb, kb)) for qb in range(4) for kb in range(2) for s in range(6)]
    k0r = [ds_read("ds_read_b128", K0(kb, s), KA[s & 1], KSLOT[0] + kb * 6144 + (s >> 1) * 1024) for kb in range(2) for s in range(6)]
    H1 = sm_ops()[0]
    h1 = [linear([o for o in H1 if o.qb == qb]) for qb in range(4)]
    g = lambda l, q: l[12 * q:12 * q + 12]
    def kv(which, slot, tag=None):
        o = []
        for m0, d in kv_dma(cfg, which, slot, tag): o += [m0, nop(0), d]
        return o + kv_advance(which, wrap=False)
    def first(qb, extra=(), fill=()):
        o = [vw(f"Q{2*qb+1}")] + qr[6 * qb:6 * qb + 6]
        m = []
        for s in range(6): m += [waitcnt(lgkm=5 - s), qk0[12 * qb + s]]
        w, rest = weave(m + qk0[12 * qb + 6:12 * qb + 12], fill)
        return o + w + list(extra) + rest + linear(sm_full(qb, "P"))
    grp = lambda l: [l[3 * k:3 * k + 3] + (l[9:] if k == 2 else []) for k in range(3)]
    pend = init_loads(cfg)[cfg.pn[0]:] + grp(kv("K", 0, "K2")) + grp(kv("V", 1, "V1"))
    def take(n):
        r = [x for d in pend[:n] for x in d]; del pend[:n]; return r
    def sprinkle(o, dmas, skip=8):
        out = []; step = max(1, (len(o) - skip - 2) // (len(dmas) + 1)); dmas = list(dmas)
        for k, x in enumerate(o):
            out.append(x)
            if k >= skip and (k - skip) % step == 0 and dmas: out += dmas.pop(0)
        assert not dmas
        return out
    def takeg(n):
        r = pend[:n]; del pend[:n]; return r
    o = [vw("K0", lgkm=0), salu("s_barrier")] + k0r + [valu("v_lshlrev_b32", "v254", "7", T[0])]
    o += take(cfg.pn[1]) + first(0)
    o += take(cfg.pn[2]) + first(1)
    vr = v_reads(0); kr = k_reads(1)
    assert 21 <= sum(cfg.pn[:4]) <= 33 and sum(cfg.pn[:2]) >= 9 and sum(cfg.pn[:3]) >= 15
    o += take(cfg.pn[3]) + [vw("V0"), salu("s_barrier")] + kr + vr[:12] + newitem_a(first=True) + vr[12:] + [waitcnt(lgkm=15)]
    m = g(qk1, 0) + [waitcnt(lgkm=0), salu("s_barrier")] + g(pv0, 0)[:3]
    w, r0 = weave(g(pv0, 0)[3:] + g(qk1, 1), [x for x in h1[0] if not x.text.startswith("v_cvt")])
    m += w
    w, r1 = weave(g(pv0, 1), r0 + [x for x in h1[0] if x.text.startswith("v_cvt")] + [x for x in h1[1] if not x.text.startswith("v_cvt")])
    m += w + r1 + [x for x in h1[1] if x.text.startswith("v_cvt")]
    o += sprinkle(m, takeg(cfg.pn[4]))
    def ren(ins, qb):
        base = SB + 8 * qb; to = int(regs(Oreg(qb, 9))[0][1:])
        f = lambda r: f"v{int(r[1:]) - base + to}" if r[0] == "v" and r[1:].isdigit() and base <= int(r[1:]) < base + 8 else r
        t = re.sub(r"v\[(\d+):(\d+)\]", lambda m: f"v[{f('v' + m.group(1))[1:]}:{f('v' + m.group(2))[1:]}]", ins.text)
        ins.text = re.sub(r"\bv\d+\b", lambda m: f(m.group(0)), t)
        ins.rd = [f(r) for r in ins.rd]; ins.wr = [f(r) for r in ins.wr]; ins.srcc = [f(r) for r in ins.srcc]
        return ins
    def late(qb, dmas, mid, tailfill):
        o = [vw(f"Q{2*qb+1}")] + qr[6 * qb:6 * qb + 6]
        for s in range(6): o += [waitcnt(lgkm=5 - s), ren(qk0[12 * qb + s], qb)]
        o += [ren(x, qb) for x in qk0[12 * qb + 6:12 * qb + 12]] + g(qk1, qb)[:3]
        w, r = weave(g(qk1, qb)[3:], [ren(x, qb) for x in linear(sm_full(qb, "P"))])
        o += w + r + mid
        nc = [x for x in h1[qb] if not x.text.startswith("v_cvt")]
        w, r = weave(g(pv0, qb), tailfill + nc)
        o += w + r + [x for x in h1[qb] if x.text.startswith("v_cvt")]
        return sprinkle(o, dmas)
    o += take(cfg.pn[5])
    assert len(pend) <= 6
    o += newitem_b() + late(2, takeg(9), [], [])
    dm = [[m0, nop(0), d] for m0, d in kv_dma(cfg, "K", 1) + kv_dma(cfg, "V", 0) + [q_dma(cfg, i) for i in range(6)]]
    o += late(3, dm, [vw("K2"), salu("s_barrier")], k_reads(0))
    o += kv_advance("K", wrap=False) + kv_advance("V", wrap=False) + stage_advance(6144) + [vw("V1", lgkm=0)]
    if cfg.exp in ("m4", "m16"):
        o += [valu("v_mov_b32", "v255", "0x3f803f80")]
        if cfg.onecol: o += [valu("v_and_b32", "v252", "15", T[0]), I("v_cmp_eq_u32 vcc, 0, v252", "V", ["v252"], ["vcc"]), nop(1), I("v_cndmask_b32 v255, 0, v255, vcc", "V", ["v255", "vcc"], ["v255"])]
        o += [I(f"v_accvgpr_write_b32 a{240+k}, v255", "V", ["v255"], [f"a{240+k}"]) for k in range(4)] + [I(f"v_accvgpr_write_b32 a{224+k}, 0", "V", [], [f"a{224+k}"]) for k in range(16)]
    return o

def init_loads(cfg):
    grp = lambda l: [l[3 * k:3 * k + 3] + (l[9:] if k == 2 else []) for k in range(3)]
    def kv(which, slot, tag):
        o = []
        for m0, d in kv_dma(cfg, which, slot, tag): o += [m0, nop(0), d]
        return grp(o + kv_advance(which, wrap=False))
    l = kv("K", 0, "K0")
    for rg in range(4): l += grp(q0_dma(cfg, rg))
    l += kv("K", 1, "K1") + kv("V", 0, "V0")
    for rg in range(4, 8): l += grp(q0_dma(cfg, rg))
    return l

def late_q(cfg):
    o = []
    for rg in range(cfg.q_early, 8): o += q0_dma(cfg, rg)
    return o

def pkmul(n, l, d=None):
    r2 = R("v", n, 2); l2 = R("v", l, 2); d2 = R("v", n if d is None else d, 2)
    return I(f"v_pk_mul_f32 {d2}, {r2}, {l2}", "V", [r2, l2], [d2])

def fin_pair(qb, b, li):
    cb = b >> 2
    A_, B_, C_ = [int(regs(Oreg(qb, 4 * cb + k))[0][1:]) for k in range(3)]
    D_ = C_ + 4 if cb < 2 else A_ - 4
    Tm = int(LSV[2][1:])
    cv = lambda d, x, y: valu("v_cvt_pk_bf16_f32", f"v{d}", f"v{x}", f"v{y}")
    off = qb * 6144 + (b >> 1) * 512
    if b & 2 == 0:
        o = []
        if cb == 2: o += [I(f"v_accvgpr_read_b32 v{D_+i}, {r}", "V", [r], [f"v{D_+i}"]) for i, r in enumerate(regs(Oreg(qb, 11)))]
        o += [pkmul(A_, li), pkmul(A_ + 2, li + 2, Tm), pkmul(B_, li, A_ + 2), pkmul(C_, li), pkmul(D_, li)]
        o += [cv(A_, A_, A_ + 2), cv(A_ + 2, A_ + 1, A_ + 3), cv(A_ + 1, C_, D_), cv(A_ + 3, C_ + 1, D_ + 1)]
        return o, ds_write("ds_write_b128", OW, R("v", A_, 4), off)
    o = [pkmul(B_ + 2, li + 2), pkmul(C_ + 2, li + 2), pkmul(D_ + 2, li + 2)]
    o += [cv(B_, Tm, B_ + 2), cv(B_ + 2, Tm + 1, B_ + 3), cv(B_ + 1, C_ + 2, D_ + 2), cv(B_ + 3, C_ + 3, D_ + 3)]
    return o, ds_write("ds_write_b128", OW, R("v", B_, 4), off)

def flag_check(cfg, v):
    return [sop("s_mov_b32", sT[4], f2h(cfg.thresh)), I(f"v_cmp_nge_f32 vcc, {sT[4]}, {v}", "V", [sT[4], v], ["vcc"]),
            salu("s_cmp_lg_u64 vcc, 0", ["vcc"], ["scc"]), sop("s_cselect_b32", sT[4], "1", "0"), sop("s_lshl_b32", sT[4], sT[4], sNN), sop("s_or_b32", sFLAG, sFLAG, sT[4])]

def finalize(cfg):
    a, b, c, d = LSV
    o = []
    if cfg.kvpf and cfg.kvpf_at == "F":
        o += [I(f"buffer_load_dword v252, v254, s[84:87], 0 offen{cfg.polpf}", "G", ["v254", "s[84:87]"], [], tag="PF")]
        if cfg.kvpf > 4:
            o += [sop("s_mov_b32", sT[5], "8192"), I(f"buffer_load_dword v252, v254, s[84:87], {sT[5]} offen{cfg.polpf}", "G", ["v254", "s[84:87]", sT[5]], [], tag="PF")]
        o += [sop("s_mov_b32", "s86", "0")]
    if cfg.cpf2:
        a_, b_ = LSV[0], LSV[1]
        o += [salu(f"s_getpc_b64 s[{sT[4][1:]}:{sT[5][1:]}]"), label("L_pc2"), sop("s_lshl_b32", sT[6], sWAVE, "12"), sop("s_add_u32", sT[6], sT[6], "L_T-L_pc2"),
              valu("v_lshrrev_b32", a_, "1", "v254"), valu("v_add_u32", a_, sT[6], a_), valu("v_min_u32", a_, "L_last-L_pc2", a_), valu("v_mov_b32", b_, sT[5]),
              I(f"v_add_co_u32 {a_}, vcc, {sT[4]}, {a_}", "V", [a_], [a_, "vcc"]), nop(1), I(f"v_addc_co_u32 {b_}, vcc, 0, {b_}, vcc", "V", [b_, "vcc"], [b_, "vcc"]),
              I(f"global_load_dword v252, v[{a_[1:]}:{b_[1:]}], off", "G", [a_, b_], [], tag="PF")]
    o += [I(".p2align 3", "L")]
    pend = []; done = 0
    for k, (qb, b_) in enumerate(fin_order()):
        v, w = fin_pair(qb, b_, LIF(qb))
        o += v; pend.append(w)
        while done < cfg.nfw and done < (k + 1) * cfg.nfw // 24:
            o.append(pend[done]); done += 1
    return o

def last_block(cfg):
    v2base = lambda b: 220 + 4 * b if b < 9 else 4 * (b - 9)
    P2 = lambda qb: R("v", SB + 8 * qb, 4)
    qk = qk_mfmas()
    grp_mf = {"K": lambda q: qk[12 * q:12 * q + 12],
              "A": lambda q: [mfma(Oreg(q, b), Preg(q), Vreg(b), Oreg(q, b)) for b in range(12)],
              "B": lambda q: [mfma(Oreg(q, b), P2(q), R("a", v2base(b), 4), Oreg(q, b)) for b in range(12)]}
    seqm = cfg.lorder.split()
    at = {x: 12 * k for k, x in enumerate(seqm)}
    mf = [m for x in seqm for m in grp_mf[x[0]](int(x[1]))]
    n = len(mf)
    mem = {}; sal = {}; sq = []; post = {}
    def M(g, i):
        l = mem.setdefault(g, [])
        l.insert(len([x for x in l if x.kind != "W"]), i) if i.kind == "D" else l.append(i)
    def S(g, i): sal.setdefault(g, []).append(i)
    ops = sm_ops()[1]
    for o in ops:
        o.fixed = None; o.hi = min(at[f"K{o.qb}"] - 1, at[f"A{o.qb}"] - 2); o.lo = cfg.lrlo
    radd = {q: [o for o in ops if o.qb == q and o.ins.wr == [LS[q]]][-1:] for q in range(4)}
    lrd = []
    for qb in range(4):
        due = at[f"B{qb}"] - 2; end = at[f"B{qb}"] + 11
        adds = []; xs = []; cvs = []
        for e in range(8):
            ready = at[f"K{qb}"] + (9 if e < 4 else 15)
            f = Op(valu("v_fma_f32", Se(qb, e), Se(qb, e), sC, "-" + MC[qb]), lo=ready, hi=due)
            x = Op(valu("v_exp_f32", Se(qb, e), Se(qb, e), kind="E"), deps=[f], hi=due)
            a = Op(valu("v_add_f32", LS[qb], LS[qb], Se(qb, e)), deps=[x], samegap=adds[-1:] or radd[qb], hi=due + 8)
            ops += [f, x, a]; adds.append(a); xs.append(x)
            if e & 1:
                jj = e >> 1
                cv = Op(valu("v_cvt_pk_bf16_f32", Se(qb, jj), Se(qb, e - 1), Se(qb, e)), deps=xs[-2:], samegap=[adds[jj]] + cvs[-1:], hi=due)
                ops.append(cv); cvs.append(cv)
        a_, b_ = LSV[qb & 1], LS[qb]
        c = [adds[-1]]
        def ch(ins):
            o = Op(ins, deps=c[-1:], hi=end - 5); c.append(o); ops.append(o)
        ch(valu("v_mov_b32", a_, b_)); ch(swap("v_permlane32_swap_b32", a_, b_)); ch(valu("v_add_f32", a_, a_, b_))
        ch(valu("v_mov_b32", b_, a_)); ch(swap("v_permlane16_swap_b32", a_, b_)); ch(valu("v_add_f32", b_, a_, b_))
        fc = flag_check(cfg, b_)
        ops.append(Op(fc[1], deps=c[-1:], lo=end - 6, hi=end - 2))
        sq += [(end - 12, end - 8, fc[0])] + [(end - 1, end + 8 if qb < 3 else end, x) for x in fc[2:]]
        ch(I(f"v_rcp_f32 {a_}, {b_}", "E", [b_], [a_]))
        M(end - 4, ds_write("ds_write_b32", SCW, a_, 0))
        lrd.append(ds_read("ds_read_b128", R("v", SB + 8 * qb + 4, 4), SCR, 0)); M(end - 3, lrd[-1])
    S(0, salu("s_barrier"))
    v1 = v_reads(0)
    for b in range(12): M(1 + b, v1[2 * b]); M(1 + b, v1[2 * b + 1])
    for b in (2, 5, 8, 11):
        w = waitcnt(lgkm=0); w.needlg = v1[2 * b + 1]; S(at["A0"] + b - 3, w)
    S(13, waitcnt(vm=0)); S(14, salu("s_barrier"))
    for i in range(3): M(15 + 7 * i, o_store(cfg, i))
    ws_ = window_srd(20, sOP, sITEM)
    sq[0:0] = [(1, 29, x) for x in ws_[:3]] + [(30, 34, x) for x in ws_[3:] + [sop("s_mov_b32", "s22", WIN)]]
    ops.append(Op(valu("v_mov_b32", VDR, VDR0), hi=40))
    v2 = [ds_read("ds_read_b64_tr_b16", R("a", v2base(b) + 2 * x, 2), VA[b & 3], VSLOT[1] + x * 6144 + (b >> 2) * 1024) for b in range(12) for x in range(2)]
    g = 16
    for b in range(12):
        while g in mem or g in sal: g += 1
        M(g, v2[2 * b]); M(g, v2[2 * b + 1]); g += 2
    for b in (2, 5, 8, 11):
        w = waitcnt(lgkm=0); w.needlg = v2[2 * b + 1]; S(at["B0"] + b - 3, w)
    pb = {0: [24, 28, 32, 36, 40, 44], 1: [12, 16, 20, 208, 212, 216], 2: [48, 52, 56, 60, 64, 68], 3: [72, 76, 80, 84, 88, 92]}
    order = [0, 3, 1, 4, 2, 5]
    late = []
    for qb in range(4):
        end = at[f"B{qb}"] + 11
        st = lambda i: gstore(R("a", pb[qb][i], 4), VOFO, SRO, sGOF, pc_off(i), cfg.polo if qb < cfg.wbfrom else "", tag="O")
        grp = [fin_pair(qb, b, SB + 8 * qb + 4) for b in range(0, 12, 2)]
        rds = [piece_reads(pb[qb][i], (6 * qb + i) * 1024) for i in range(6)]
        w = waitcnt(lgkm=0); w.needlg = lrd[qb]
        blk = (late + [nop(3)] if qb == 3 else []) + [w, I(".p2align 3", "L")]
        seq = []
        for k, i in enumerate(order):
            w = waitcnt(lgkm=0); w.needlg = rds[order[k | 1]][1]
            seq.append(([w] if k % 2 == 0 else []) + ([sop("s_mov_b32", sGOF, str(qb * 6144))] if k == 0 else []) + [st(i)])
        defer = []
        nin = 6 if qb == 3 else cfg.lin
        for k, gq in enumerate(grp):
            blk += gq[0]
            if k < nin:
                blk += [gq[1]]
                if k & 1: blk += rds[k >> 1] + rds[3 + (k >> 1)]
                if qb in cfg.learly and k in cfg.lk: blk += seq.pop(0) + seq.pop(0) + [I(".p2align 3", "L")]
            else:
                defer.append([gq[1]])
                if k & 1: defer += [rds[k >> 1], rds[3 + (k >> 1)]]
        if cfg.trace == 3:
            blk = [I("; mark", "L", mark3=True)] + blk + [I("; mark", "L", mark3=True)]
        if qb < 3:
            g0 = end + (cfg.lfin if qb else cfg.lfin0)
            post[g0] = blk
            g = g0 + 1
            for x in defer:
                while g in mem: g += 1
                for ins in x: M(g, ins)
                g += 1 + (x[0].kind == "W")
            g += 4
            for x in seq:
                while g in mem or g - 1 in mem: g += 1
                for ins in x:
                    if g >= n: late.append(ins)
                    elif ins.kind == "S": S(g - 1, ins)
                    else: M(g, ins)
                g += cfg.lsp
        else:
            for x in seq: blk += x
            post[end] = blk
    out, over = schedule(mf, mem, sal, ops, sq, post)
    for k, i in enumerate(out):
        if hasattr(i, "needlg"):
            c = sum(1 for x in out[out.index(i.needlg) + 1:k] if x.kind in "DW")
            assert out.index(i.needlg) < k
            c = min(c, 15)
            i.lgkm = c; i.text = f"s_waitcnt lgkmcnt({c})"
    print(f"last block: {len(out)} instrs, overflow slots {over}", file=sys.stderr)
    return out

def fixnops(seq, name):
    import re
    for _ in range(400):
        p = [x for x in check(seq, name) if "dist" in x]
        if not p: return seq
        for k in range(1, len(seq) + 1):
            q = [x for x in check(seq[:k], name) if "dist" in x]
            if q:
                m = re.search(r"dist (\d+)(?: < (\d+))?", q[0])
                need = int(m.group(2) or 8) - int(m.group(1))
                seq = seq[:k - 1] + [nop(need - 1)] + seq[k - 1:]
                break
    raise RuntimeError("fixnops")

def window_srd(srd_lo, ptr, item):
    return [sop("s_mul_i32", sT[1], item, "98304"), sop("s_mul_i32", sT[2], sWAVE, "24576"), sop("s_add_u32", sT[1], sT[1], sT[2]),
            sop("s_add_u32", f"s{srd_lo}", f"s{ptr}", sT[1]), sop("s_addc_u32", f"s{srd_lo+1}", f"s{ptr+1}", "0")]

def head_base(dst, item):
    return [sop("s_mul_hi_u32", dst, item, "0x55555556"), sop("s_mul_i32", dst, dst, "196608"), sop("s_add_u32", dst, dst, sRB)]

def newitem_a(first=False):
    o = [] if first else [sop("s_sub_u32", sLEFT, sLEFT, "1"), sop("s_add_u32", sITEM, sITEM, "32")]
    o += head_base(sT[0], sITEM) + [sop("s_add_u32", sT[0], sT[0], "196608"), sop("s_add_u32", sKEND, f"s{sKP}", sT[0]), sop("s_add_u32", sVEND, f"s{sVP}", sT[0])]
    o += [sop("s_add_u32", sT[3], sITEM, "32"), sop("s_min_u32", sT[3], sT[3], "767")]
    o += head_base(sT[0], sT[3])
    o += [sop("s_add_u32", f"s{sKNX}", f"s{sKP}", sT[0]), sop("s_addc_u32", f"s{sKNX+1}", f"s{sKP+1}", "0")]
    return o
def kv_slice(cfg, item, unit, first_tile, last_left):
    a_, b_, c_ = sT[5], sT[6], sT[2]
    return [sop("s_mul_hi_u32", a_, item, "0x55555556"), sop("s_mul_i32", b_, a_, "3"), sop("s_sub_u32", c_, item, b_), sop("s_mul_i32", a_, a_, "196608"),
            sop("s_lshl_b32", b_, sLEFT, "8"), sop("s_add_u32", b_, b_, "s2"), salu(f"s_cmp_lt_u32 {b_}, {256 * last_left + 16}", [b_], ["scc"]),
            sop("s_cselect_b32", b_, "3", "2"), sop("s_subb_u32", c_, c_, "0"), sop("s_mul_i32", b_, b_, str(unit)),
            sop("s_lshl_b32", c_, c_, "1"), salu(f"s_bitcmp1_b32 {sWAVE}, 0", [sWAVE], ["scc"]), sop("s_addc_u32", c_, c_, "0"), sop("s_mul_i32", c_, c_, b_),
            sop("s_add_u32", a_, a_, c_), sop("s_add_u32", a_, a_, str(first_tile * 12288)),
            salu(f"s_cmp_lt_u32 {sWAVE}, 2", [sWAVE], ["scc"]), sop("s_cselect_b64", "s[84:85]", R("s", sKP, 2), R("s", sVP, 2)),
            sop("s_add_u32", "s84", "s84", a_), sop("s_addc_u32", "s85", "s85", "0")]

def kvpf_setup(cfg):
    assert cfg.kvpf <= 2
    return [sop("s_add_u32", sT[4], sITEM, "32")] + kv_slice(cfg, sT[4], cfg.kvpf * 1024, 16 - cfg.kvpf, 2) + (
           [salu(f"s_cmp_eq_u32 {sLEFT}, 2", [sLEFT], ["scc"]), sop("s_cselect_b32", "s86", sT[6], "0")] if cfg.kvpf_last else [sop("s_mov_b32", "s86", "0" if cfg.nomem else sT[6])])

def kvpf2_setup(cfg):
    return kv_slice(cfg, sITEM, 1024, 16 - cfg.kvpf - cfg.kvpf2, 1) + [
            salu(f"s_cmp_eq_u32 {sLEFT}, 1", [sLEFT], ["scc"]), sop("s_cselect_b32", "s86", "0" if cfg.nomem else sT[6], "0"),
            sop("s_mov_b32", "s0", "12288"), sop("s_mov_b32", "s1", str(cfg.kvpf2 - 1))]

def newitem_b():
    o = [sop("s_add_u32", f"s{sVNX}", f"s{sVP}", sT[0]), sop("s_addc_u32", f"s{sVNX+1}", f"s{sVP+1}", "0")]
    o += window_srd(16, sQP, sT[3])
    o += [salu(f"s_cmp_gt_u32 {sLEFT}, 1", [sLEFT], ["scc"]), sop("s_cselect_b32", sNR, KVWIN, "0"), sop("s_cselect_b32", "s18", QWIN, "0"),
          sop("s_mov_b32", sGOF, "0"), sop("s_mov_b32", sQM, sSTG), sop("s_mov_b32", sCNT, "7")]
    return o

def code_pf():
    return [salu("s_getpc_b64 s[84:85]"), label("L_pc"),
            valu("v_lshlrev_b32", "v8", "7", "v0"), valu("v_min_u32", "v8", "CODE_BYTES", "v8"), valu("v_mov_b32", "v9", "s85"),
            I("v_add_co_u32 v8, vcc, s84, v8", "V", ["v8"], ["v8", "vcc"]), nop(1), I("v_addc_co_u32 v9, vcc, 0, v9, vcc", "V", ["v9", "vcc"], ["v9", "vcc"]),
            I("global_load_dword v252, v[8:9], off", "G", ["v8", "v9"], [], tag="PF")] + (
           [I("global_load_dword v252, v[8:9], off offset:64", "G", ["v8", "v9"], [], tag="PF")] if CPF64 else [])

def setup(cfg):
    o = []
    x = lambda t: o.append(salu(t))
    x("s_cmp_ge_u32 s2, 256"); x("s_cbranch_scc1 L_end")
    x(f"s_load_dwordx4 s[4:7], s[0:1], 0"); x(f"s_load_dwordx2 s[{sVP}:{sVP+1}], s[0:1], 16"); x(f"s_load_dwordx2 s[{sOP}:{sOP+1}], s[0:1], 24")
    if cfg.stamps: x("s_memtime s[60:61]"); x("s_memrealtime s[62:63]")
    if cfg.cpf == 1: o += code_pf()
    if cfg.stamps: x(f"s_load_dwordx2 s[56:57], s[0:1], {32 if cfg.stamps == 2 else 40}")
    L, N, G, A, B_ = T
    o += [valu("v_lshrrev_b32", A, "6", "v0"), valu("v_and_b32", L, "63", "v0"), I(f"v_readfirstlane_b32 {sWAVE}, {A}", "V", [A], [sWAVE])]
    o += [valu("v_lshrrev_b32", A, "3", L), valu("v_and_b32", B_, "7", L), valu("v_xor_b32", B_, B_, A), valu("v_mul_u32_u24", A, "384", A), valu("v_lshl_add_u32", VOFF, B_, "4", A)]
    o += [valu("v_lshrrev_b32", N, "4", L), valu("v_and_b32", B_, "7", L), valu("v_xor_b32", B_, B_, N), valu("v_lshl_add_u32", VOFV, B_, "4", A)]
    o += [sop("s_mul_i32", sRB, sWAVE, "3072"), sop("s_mul_i32", sSTG, sWAVE, str(STGW)), sop("s_add_u32", sSTG, sSTG, str(STG)), sop("s_mov_b32", sC, f2h(CSCALE))]
    o += [sop("s_and_b32", sT[0], "s2", "7"), sop("s_mul_i32", sT[0], sT[0], "96"), sop("s_lshr_b32", sT[1], "s2", "3"), sop("s_add_u32", sXB, sT[0], sT[1])]
    for lo in (8, 12): x(f"s_mov_b32 s{lo+3}, 0x20000")
    for cb in range(3): o.append(sop("s_add_u32", m0reg("K", 0, cb), sRB, str(cb * 896)))
    x("s_mov_b32 s19, 0x20000"); x("s_mov_b32 s23, 0x20000")
    if cfg.stamps: x(f"s_mov_b32 s58, {256 if cfg.stamps == 2 else 301989888}"); x("s_mov_b32 s59, 0x20000")
    o += [sop("s_mov_b32", sITEM, sXB), sop("s_mov_b32", sLEFT, "3"), sop("s_mov_b32", sNN, "0"), sop("s_mov_b32", sFLAG, "0"), sop("s_mov_b32", sMODE, "0"), sop("s_mov_b32", sTODO, "0")]
    x("s_waitcnt lgkmcnt(0)")
    x(f"s_mov_b32 s{sQP}, s4"); x(f"s_mov_b32 s{sQP+1}, s5")
    return o

def addr_setup():
    L, N, G, A, B_ = T
    o = [valu("v_and_b32", N, "15", L), valu("v_lshrrev_b32", G, "4", L)]
    o += [valu("v_lshrrev_b32", A, "3", N), valu("v_mul_u32_u24", "v0", "3072", A), valu("v_and_b32", "v1", "7", N), valu("v_lshl_add_u32", "v0", "v1", "7", "v0")]
    for e in range(2):
        o += [valu("v_add_u32", A, str(4 * e), G), valu("v_xor_b32", A, A, "v1"), valu("v_lshl_add_u32", KA[e], A, "4", "v0"), valu("v_add_u32", QA[e], sSTG, KA[e])]
    o += [valu("v_lshrrev_b32", "v2", "5", L), valu("v_mul_u32_u24", "v3", "3072", "v2"), valu("v_and_b32", A, "31", L), valu("v_lshl_add_u32", "v3", A, "4", "v3"),
          valu("v_add_u32", "v3", sSTG, "v3"), valu("v_add_u32", OW, "3072", "v3")]
    o += [valu("v_lshrrev_b32", A, "3", L), valu("v_mul_u32_u24", A, "384", A), valu("v_and_b32", B_, "7", L), valu("v_lshl_add_u32", VOFO, B_, "4", A)]
    o += [valu("v_lshlrev_b32", "v3", "8", "v2"), valu("v_and_b32", A, "1", G), valu("v_lshl_add_u32", "v3", A, "9", "v3"), valu("v_and_b32", A, "1", L), valu("v_lshl_add_u32", "v3", A, "7", "v3"),
          valu("v_bfe_u32", A, L, "2", "2"), valu("v_lshl_add_u32", "v3", A, "4", "v3"), valu("v_bfe_u32", A, L, "1", "1"), valu("v_lshl_add_u32", "v3", A, "3", "v3"),
          valu("v_add_u32", "v3", sSTG, "v3"), valu("v_add_u32", VDR0, "3072", "v3")]
    o += [valu("v_mov_b32", A, sWAVE), valu("v_lshlrev_b32", A, "8", A), valu("v_add_u32", A, str(FLAGS_LDS + 256), A), valu("v_lshl_add_u32", SCW, L, "2", A), valu("v_lshl_add_u32", SCR, G, "4", A)]
    o += [valu("v_lshrrev_b32", B_, "2", L), valu("v_lshrrev_b32", A, "3", B_), valu("v_mul_u32_u24", "v0", "3072", A), valu("v_and_b32", "v1", "7", B_),
          valu("v_lshl_add_u32", "v0", "v1", "7", "v0"), valu("v_and_b32", A, "1", L), valu("v_lshl_add_u32", "v0", A, "3", "v0"), valu("v_bfe_u32", "v2", L, "1", "1"),
          valu("v_lshl_add_u32", "v0", "v2", "6", "v0"), valu("v_lshrrev_b32", "v1", "1", "v1")]
    for j in range(4):
        o += [valu("v_xor_b32", A, str(j), "v1"), valu("v_lshl_add_u32", VA[j], A, "4", "v0")]
    for qb in range(4): o += [valu("v_mov_b32", MC[qb], "0xff800000"), valu("v_mov_b32", LS[qb], "0")]
    return o

def touch_pages(cfg):
    o = []
    def ld(ptr, off): o.append(salu(f"s_load_dword s4, s[{ptr}:{ptr+1}], {off}"))
    o += [sop("s_min_u32", sT[1], sWAVE, "2"), sop("s_lshl_b32", sT[1], sT[1], "5"), sop("s_add_u32", sT[1], sT[1], sXB), sop("s_mul_i32", sT[2], sT[1], "98304")]
    ld(sOP, sT[2])
    if cfg.touch > 1: ld(sQP, sT[2])
    o += [sop("s_add_u32", sT[3], sT[2], "98300")]
    ld(sOP, sT[3])
    if cfg.touch > 1:
        ld(sQP, sT[3])
        o += [sop("s_mul_hi_u32", sT[4], sT[1], "0x55555556"), sop("s_mul_i32", sT[4], sT[4], "196608")]
        ld(sKP, sT[4]); ld(sVP, sT[4])
        o += [sop("s_add_u32", sT[5], sT[4], "196604")]
        ld(sKP, sT[5]); ld(sVP, sT[5])
    return o

def start_run(cfg):
    o = head_base(sT[0], sITEM)
    o += [sop("s_add_u32", "s8", f"s{sKP}", sT[0]), sop("s_addc_u32", "s9", f"s{sKP+1}", "0"), sop("s_mov_b32", "s10", KVWIN)]
    if cfg.p2:
        il = init_loads(cfg)[:cfg.pn[0]]
        o += [x for d in il[:3] for x in d]
        o += window_srd(16, sQP, sITEM) + [sop("s_mov_b32", "s18", QWIN)]
        o += [sop("s_add_u32", "s12", f"s{sVP}", sT[0]), sop("s_addc_u32", "s13", f"s{sVP+1}", "0"), sop("s_mov_b32", "s14", KVWIN)]
        il[8] = il[8] + [sop("s_add_u32", m0reg(w, sl, cb), sRB, str(tab[sl] + cb * 896)) for w, tab, sl in (("K", KSLOT, 1), ("V", VSLOT, 0), ("V", VSLOT, 1)) for cb in range(3)]
        for k, at_ in enumerate(cfg.stag):
            il[at_] = il[at_] + [salu(f"s_cmp_lt_u32 s2, {cfg.stagwg}"), salu(f"s_cbranch_scc1 L_stag{k}"), salu("s_waitcnt vmcnt(0)"), label(f"L_stag{k}")]
        o += [x for d in il[3:] for x in d]
    else:
        for m0, d in kv_dma(cfg, "K", 0, "K0"): o += [m0, nop(0), d]
        o += window_srd(16, sQP, sITEM) + [sop("s_mov_b32", "s18", QWIN)]
        for rg in range(cfg.q_early): o += q0_dma(cfg, rg)
    fill = addr_setup(); mixed = []
    for x in o:
        if x.text == "s_nop 0" and fill:
            mixed += fill[:6]; del fill[:6]
        else: mixed.append(x)
    o = mixed + fill
    if cfg.touch: o += touch_pages(cfg)
    if not cfg.p2: o += kv_advance("K", wrap=False) + [sop("s_add_u32", "s12", f"s{sVP}", sT[0]), sop("s_addc_u32", "s13", f"s{sVP+1}", "0"), sop("s_mov_b32", "s14", KVWIN)]
    o += [sop("s_mov_b32", "s20", f"s{sOP}"), sop("s_mov_b32", "s21", f"s{sOP+1}"), sop("s_mov_b32", "s22", "0"), valu("v_add_u32", VDR, "3072", VDR0)]
    if cfg.pf:
        o += [sop("s_add_u32", sT[4], sXB, "64")] + window_srd(84, sQP, sT[4])
        o += [salu(f"s_cmp_eq_u32 {sLEFT}, 3", [sLEFT], ["scc"]), sop("s_cselect_b32", "s86", "0" if cfg.nomem else str(cfg.pf * 128), "0"), sop("s_mov_b32", "s87", "0x20000"),
              sop("s_mov_b32", "s0", str(24576 // cfg.pfn)), sop("s_mov_b32", "s1", str(cfg.pfn - 1))]
    if cfg.exp == "early_o":
        o += [sop("s_add_u32", sT[4], sITEM, "64")] + window_srd(20, sOP, sT[4]) + [sop("s_mov_b32", "s22", WIN)]
    return o

def max_pass(cfg):
    L, N, G, A, B_ = T
    o = [valu("v_and_b32", N, "15", L), valu("v_lshrrev_b32", G, "4", L), valu("v_mul_u32_u24", A, "384", N), valu("v_lshl_add_u32", A, G, "4", A)]
    o += window_srd(20, sQP, sITEM) + [sop("s_mov_b32", "s22", WIN)]
    for qb in range(4):
        o.append(sop("s_mov_b32", sT[5], str(qb * 6144)))
        for s in range(6): o.append(gload(Qreg(qb, s), A, SRO, sT[5], s * 64))
    o += [sop("s_mul_hi_u32", sT[5], sITEM, "0x55555556"), sop("s_mul_i32", sT[5], sT[5], "196608"), sop("s_mov_b32", sT[6], "16")]
    o += [sop("s_mov_b32", "s20", f"s{sKP}"), sop("s_mov_b32", "s21", f"s{sKP+1}"), sop("s_mov_b32", "s22", "0" if cfg.nomem else "50331648")]
    o += [label("L_maxloop")]
    body = []
    for kb in range(2):
        if kb: body.append(sop("s_add_u32", sT[5], sT[5], "6144"))
        for s in range(6): body.append(gload(Kreg(kb, s), A, SRO, sT[5], s * 64))
    body += [sop("s_add_u32", sT[5], sT[5], "6144"), waitcnt(vm=0)]
    body += qk_mfmas() + [nop(7)]
    for qb in range(4):
        for e in range(0, 8, 2): body.append(valu("v_max3_f32", MC[qb], MC[qb], Se(qb, e), Se(qb, e + 1)))
    body += [sop("s_sub_u32", sT[6], sT[6], "1"), salu(f"s_cmp_lg_u32 {sT[6]}, 0"), salu("s_cbranch_scc1 L_maxloop")]
    return o + body + [sop("s_mov_b32", "s20", f"s{sOP}"), sop("s_mov_b32", "s21", f"s{sOP+1}"), sop("s_mov_b32", "s22", "0")]

def stamp(idx):
    if TR3: return []
    return [salu(f"s_memtime s[{64+2*idx}:{65+2*idx}]")]

def build(cfg):
    cfg._m = 68
    global WIN, KVWIN, QWIN, TR3, MODEL, CPF64
    CPF64 = cfg.cpf64
    MODEL = cfg.model
    TR3 = cfg.trace == 3
    WIN = "0" if cfg.nomem else "24576"
    KVWIN = "0" if cfg.nomem else "3072"
    QWIN = "0" if cfg.nomem else "6144"
    blk = {}
    for k in "AZOEXY": blk[k] = fixnops(iteration(cfg, k), k)
    blk["setup"] = fixnops(setup(cfg), "setup")
    blk["start"] = fixnops(start_run(cfg), "start")
    blk["max"] = max_pass(cfg)
    blk["P"] = fixnops((prologue2 if cfg.p2 else prologue)(cfg), "P")
    if cfg.p2: blk["A"] = []
    blk["F"] = fixnops(finalize(cfg), "F")
    blk["T"] = fixnops(last_block(cfg), "T")
    br = lambda t: [salu(t)]
    def item(z="Z"): return blk[z] + (br("b") if z == "Z" else []) + (blk["O"] + br("b") + blk["E"] + br("b")) * 6 + blk["O"] + br("b") + br("b") + br("b")
    mid = blk["X"] + blk["Y"] + blk["F"]
    tr1 = blk["setup"] + blk["start"] + br("b") + br("b") + blk["P"] + item("A") + mid + item() + mid + item() + blk["T"]
    tr2 = blk["setup"] + blk["start"] + br("b") + br("b") + blk["max"] + blk["P"] + item("A") + blk["T"]
    best = {}
    for tr in (tr1, tr2):
        vm = []
        for ins in tr:
            if ins.kind == "G": vm.append(ins.tag)
            if getattr(ins, "need", None):
                tag, nb = ins.need
                seen = 0; cnt = None
                for j in range(len(vm) - 1, -1, -1):
                    if vm[j] == tag:
                        if seen == 3 * (nb - 1): cnt = len(vm) - 1 - j; break
                        seen += 1
                assert cnt is not None
                best[id(ins)] = (min(cnt, best.get(id(ins), (99,))[0]), ins)
    for cnt, ins in best.values():
        ins.vm = cnt; ins.text = f"s_waitcnt vmcnt({cnt})" + (f" lgkmcnt({ins.lgkm})" if ins.lgkm is not None else "")
    for tr, n in ((tr1, "tr1"), (tr2, "tr2")):
        p = check(tr, n)
        for x in sorted(set(p)): print("HAZARD", x, file=sys.stderr)
        assert not p
    out = []
    a = out.append
    def emit(seq):
        if cfg.trace == 1 and any(seq is blk[k] for k in "AZOEXYTF"):
            a("    s_mov_b32 m0, s45"); a("    s_nop 0"); a("    v_writelane_b32 v255, s4, m0"); a("    s_add_u32 s45, s45, 1"); a("    s_nop 0"); a("    s_memtime s[4:5]")
        tp = ["    s_memtime s[4:5]", "    s_waitcnt lgkmcnt(0)", "    s_mov_b32 m0, s45", "    s_nop 0", "    v_writelane_b32 v255, s4, m0", "    s_add_u32 s45, s45, 1"]
        for i in seq:
            mk = cfg.trace == 2 and getattr(i, "mark", False)
            if mk: out.extend(tp)
            if cfg.trace == 3 and (getattr(i, "mark3", False) or (seq is blk["T"] and (i is seq[0] or i is seq[-1]))):
                out.extend([f"    s_memtime s[{cfg._m}:{cfg._m+1}]"]); cfg._m += 2
            a(("" if i.kind == "L" else "    ") + i.text)
            if mk: out.extend(tp)
    for l in """Fused attention forward, B8 H32 Sq768 Sk512 D192, bf16 in/out. Emitted by my own scheduler script (gen/gen.py).
Kernarg: +0 q, +8 k, +16 v, +24 out, +32 debug (unused), +40 ws (unused).
One 4-wave workgroup per CU (one wave per SIMD, 512 registers). Every workgroup runs three blocks of 256 query rows; the three
workgroups that share a head sit next to each other in one XCD's list so K/V are fetched from HBM once (speed only).
K/V tiles of 32 keys stream through a two-slot LDS ring by LDS-DMA; each wave keeps 64 query rows (Q fragments + O accumulators) in registers.
Per tile: S^T = K Q^T and O += P V with v_mfma_f32_16x16x32_bf16; softmax VALU, LDS reads and loads sit in the gaps between the MFMAs.
Softmax reference value: the row maximum over the first key tile. Row sums are checked at the end of every block; if any reaches 2^40
(the reference was far below the true maximum) the workgroup recomputes that block with the exact row maximum (L_max pass + rerun).
Next block's Q and previous block's O travel through a per-wave LDS staging area during the main loop.""".split("\n"): a("; " + l)
    a("; @launch grid=(256,1,1) block=(256,1,1) lds=163840")
    a('.amdgcn_target "amdgcn-amd-amdhsa--gfx950"'); a(".text"); a(f".globl {NAME}"); a(".p2align 8"); a(f".type {NAME},@function"); a(f"{NAME}:")
    emit(blk["setup"])
    a("L_run:")
    emit(blk["start"])
    a(f"    s_cmp_lg_u32 {sMODE}, 0"); a("    s_cbranch_scc1 L_max")
    a("L_k0:")
    if cfg.trace: a("    s_mov_b32 s45, 0"); a("    s_mov_b32 s4, s60")
    if cfg.trace == 2: a("    v_writelane_b32 v255, s4, 0"); a("    s_mov_b32 s45, 1")
    if cfg.stamps: emit(stamp(2))
    emit(blk["P"])
    if cfg.stamps: emit(stamp(8))
    a(".p2align 3")
    emit(blk["A"])
    a(f".p2align {cfg.oalign}"); a("L_O:")
    emit(blk["O"])
    a("    s_cbranch_scc1 L_X")
    a(".p2align 3")
    emit(blk["E"])
    a("    s_branch L_O")
    a(".p2align 6")
    if cfg.shift: a(f".fill {cfg.shift // 4}, 4, 0xbf800000")
    a("L_X:")
    a(f"    s_cmp_eq_u32 {sLEFT}, 1"); a("    s_cbranch_scc1 L_T")
    emit(blk["X"])
    a(".p2align 3")
    if cfg.stamps: a("    s_mov_b64 s[72:73], s[74:75]"); a("    s_nop 0"); emit(stamp(5))
    emit(blk["Y"])
    emit(blk["F"])
    a(".p2align 3"); a("L_Z:")
    if cfg.stamps: emit(stamp(7))
    emit(blk["Z"])
    a("    s_branch L_O")
    a(".p2align 6"); a("L_T:")
    if cfg.stamps: emit(stamp(9))
    emit(blk["T"])
    if cfg.stamps: emit(stamp(3))
    a(f"    s_cmp_lg_u32 {sMODE}, 0"); a("    s_cbranch_scc1 L_todo")
    a(f"    v_mov_b32 v0, {sFLAG}"); a(f"    s_lshl_b32 {sT[0]}, {sWAVE}, 2"); a(f"    s_add_u32 {sT[0]}, {sT[0]}, {FLAGS_LDS}"); a(f"    v_mov_b32 v1, {sT[0]}")
    a("    ds_write_b32 v1, v0"); a("    s_waitcnt lgkmcnt(0)"); a("    s_barrier")
    a(f"    v_mov_b32 v1, {FLAGS_LDS}"); a("    ds_read_b128 v[4:7], v1"); a("    s_waitcnt lgkmcnt(0)")
    a("    v_or_b32 v4, v4, v5"); a("    v_or3_b32 v4, v4, v6, v7"); a("    s_nop 1"); a(f"    v_readfirstlane_b32 {sTODO}, v4"); a(f"    s_mov_b32 {sMODE}, 1"); a("    s_nop 3")
    a("L_todo:")
    a(f"    s_and_b32 {sTODO}, {sTODO}, 7")
    a(f"    s_cbranch_scc0 L_fin")
    a(f"    s_ff1_i32_b32 {sNN}, {sTODO}"); a(f"    s_bitset0_b32 {sTODO}, {sNN}")
    a(f"    s_lshl_b32 {sITEM}, {sNN}, 5"); a(f"    s_add_u32 {sITEM}, {sITEM}, {sXB}"); a(f"    s_mov_b32 {sLEFT}, 1")
    a("    s_waitcnt vmcnt(0) lgkmcnt(0)"); a("    s_barrier"); a("    s_branch L_run")
    a("L_fin:")
    if cfg.stamps:
        a("    s_waitcnt vmcnt(0)")
        a("    s_memtime s[64:65]"); a("    s_memrealtime s[66:67]"); a("    s_waitcnt lgkmcnt(0)")
        a(f"    s_cmp_lg_u32 {sWAVE}, 0"); a("    s_cbranch_scc1 L_end")
        if cfg.stamps == 2:
            a("    s_not_b32 s76, s62"); a("    s_sub_u32 s77, s64, s60"); a("    s_sub_u32 s78, s68, s60"); a("    s_sub_u32 s79, s70, s60"); a("    s_sub_u32 s80, s72, s60")
            a("    s_sub_u32 s81, s66, s62"); a("    s_not_b32 s82, s66"); a("    s_not_b32 s83, s77"); a("    s_not_b32 s84, s78")
            srcs = [66, 76, 62, 82, 77, 83, 78, 84, 79, 80, 81]
            for i, s in enumerate(srcs): a(f"    v_mov_b32 v{i}, s{s}")
            a("    v_mov_b32 v16, 0"); a("    s_mov_b64 exec, 1")
            for i in range(len(srcs)): a(f"    buffer_atomic_umax v{i}, v16, s[56:59], 0 offen offset:{4*i}")
        else:
            order = [2, 8, 4, 5, 7, 9, 3, 0, 0, 0, 0, 0] if cfg.trace != 3 else [2, 3, 4, 5, 6, 7, 8, 9, 10, 11, 0, 0]
            src = [60, 61, 64, 65, 62, 63, 66, 67] + [x for k in order for x in (64 + 2 * k, 65 + 2 * k)]
            for i, s in enumerate(src): a(f"    v_mov_b32 v{i}, s{s}")
            if cfg.trace:
                a("    s_mov_b32 m0, s45"); a("    s_nop 0"); a("    v_writelane_b32 v255, s4, m0"); a("    v_lshlrev_b32 v33, 2, v251"); a("    s_lshl_b32 s41, s2, 8"); a("    s_add_u32 s41, s41, 0x100000")
                a("    buffer_store_dword v255, v33, s[56:59], s41 offen")
            a("    s_lshl_b32 s41, s2, 7"); a("    v_mov_b32 v32, 0"); a("    s_mov_b64 exec, 1")
            for i in range(8): a(f"    buffer_store_dwordx4 v[{4*i}:{4*i+3}], v32, s[56:59], s41 offen offset:{16*i}")
    a("L_end:"); a("    s_endpgm")
    a("L_max:")
    emit(blk["max"])
    a("    s_branch L_k0")
    if cfg.tailpad:
        a("; unreachable filler (end-of-program encodings): instruction fetch runs several KiB ahead of the program counter, so the code prefetch covers this too")
        a(f".fill {cfg.tailpad // 4}, 4, 0xbf810000")
    a("L_last:"); a("    s_endpgm")
    if cfg.cpf: a(f".set CODE_BYTES, L_last - L_pc")
    a('.section .rodata,"a"'); a(".p2align 6"); a(f".amdhsa_kernel {NAME}")
    for l in ["next_free_vgpr 512", "next_free_sgpr 102", "accum_offset 256", "group_segment_fixed_size 0", "kernarg_size 48", "user_sgpr_count 2",
              "user_sgpr_kernarg_segment_ptr 1", "system_sgpr_workgroup_id_x 1"]: a("  .amdhsa_" + l)
    a(".end_amdhsa_kernel")
    return "\n".join(out) + "\n"

if __name__ == "__main__":
    kw = {}
    for x in sys.argv[2:]:
        k, v = x.split("=", 1)
        kw[k] = ((" " + v.replace("+", " ")) if v != "-" else "") if k.startswith("pol") else eval(v)
    import subprocess, tempfile, os, io, contextlib
    cfg = Cfg(**kw)
    txt = build(cfg)
    if cfg.ophase is not None:
        with tempfile.TemporaryDirectory() as d:
            open(d + "/t.s", "w").write(txt)
            subprocess.run(["clang", "-x", "assembler", "-target", "amdgcn-amd-amdhsa", "-mcpu=gfx950", "-c", d + "/t.s", "-o", d + "/t.o"], check=True)
            nm = subprocess.run(["llvm-objdump", "-t", d + "/t.o"], capture_output=True, text=True).stdout
        addr = {l.split()[-1]: int(l.split()[0], 16) for l in nm.splitlines() if ".text" in l}
        cfg.pad = (cfg.ophase - addr["L_O"]) % 128
        with contextlib.redirect_stderr(io.StringIO()): txt = build(cfg)
    open(sys.argv[1], "w").write(txt)
```

```python
import sys, struct, math, re
from asmlib import *

NAME = "standalone__gqa_softmax__near_ridge_kernel"
def f2h(x): return "0x%08x" % struct.unpack("<I", struct.pack("<f", x))[0]
CSCALE = (192 ** -0.5) * math.log2(math.e)

class Cfg:
    polkv = " nt"; polq = " nt"; polo = " sc1"
    stamps = False
    nomem = False
    kill = ""
    vsp = 6
    rdend = 38
    q_early = 6
    touch = 0
    trace = 0
    kvpf = 2
    kvpf2 = 3
    kvpf_last = 0
    kvpf_at = 'Y90'
    pad = 0
    ophase = None
    oalign = 5
    vtouch = 0
    lfin = 3
    lsp = 3
    lrlo = 0
    cpf = 1
    cpf2 = 0
    cpf64 = 0
    shift = 0
    qtouch = 0
    qtat = 8
    onecol = 0
    wbfrom = 4
    pfin = 'O'
    stag = ()
    stagwg = 120
    tailpad = 8192
    cpfat = 8
    stg = (21, 33, 45)
    model = 1
    lk = (2, 4)
    lfin0 = 1
    lin = 6
    learly = (0, 3)
    p2 = 1
    pn = (11, 5, 6, 6, 5, 3)
    lorder = 'K0 A0 K1 B0 A1 B1 K2 A2 K3 B2 A3 B3'
    pf = 16
    pfn = 6
    pfA = 0
    polpf = ''
    exp = ''
    nfw = 12
    zwend = 72
    thresh = 2.0 ** 40
    def __init__(s, **kw): s.__dict__.update(kw)

def Oreg(qb, b): return R("v", (qb * 11 + b) * 4, 4) if b < 11 else R("a", 192 + 4 * qb, 4)
SB = 176; PB = 208
def Sreg(qb, kb): return R("v", SB + qb * 8 + kb * 4, 4)
def Se(qb, e): return f"v{SB + qb * 8 + e}"
def Preg(qb): return R("v", PB + 4 * qb, 4)
KA = ["v224", "v225"]; VA = ["v226", "v227", "v228", "v229"]; VOFF = "v230"; VDR = "v231"
MC = [f"v{232+i}" for i in range(4)]; LS = [f"v{236+i}" for i in range(4)]; LSV = [f"v{240+i}" for i in range(4)]
QA = ["v244", "v245"]; OW = "v246"; VOFO = "v247"; SCW = "v248"; SCR = "v249"; VDR0 = "v250"; VOFV = "v253"
T = ["v251", "v4", "v5", "v6", "v7"]
def Qreg(qb, s): return R("a", (qb * 6 + s) * 4, 4)
def Kreg(kb, s): return R("a", 96 + (kb * 6 + s) * 4, 4)
def Vreg(b): return R("a", 144 + 4 * b, 4)
def Vhalf(b, x): return R("a", 144 + 4 * b + 2 * x, 2)
def DRreg(i): return R("a", 208 + 4 * i, 4)
SRK, SRV, SRQ, SRO = "s[8:11]", "s[12:15]", "s[16:19]", "s[20:23]"
sWAVE, sKEND, sVEND, sNR, sGOF, sC, sCNT, sLEFT, sITEM, sRB, sSTG, sQM, sFLAG = [f"s{i}" for i in range(24, 37)]
sT = [f"s{i}" for i in range(38, 46)]
sQP, sOP = 46, 48
sXB = "s50"
sNN = "s51"
sMODE = "s52"
sTODO = "s53"
sKP, sVP = 6, 54
sKNX, sVNX = 88, 90
sM0 = 4
M0TAB = {("K", 0): 92, ("K", 1): 95, ("V", 0): 98}
def m0reg(which, slot, cb):
    if (which, slot) == ("V", 1): return ["s101", "s37", "s3"][cb]
    return f"s{M0TAB[(which, slot)] + cb}"
KSLOT = [0, 12288]; VSLOT = [24576, 36864]; STG = 49152; STGW = 27648; FLAGS_LDS = 49152 + 4 * 27648
OOR = 0x40000000

def qk_mfmas():
    out = []
    for qb in range(4):
        for kb in range(2):
            for s in range(6):
                out.append(mfma(Sreg(qb, kb), Kreg(kb, s), Qreg(qb, s), "0" if s == 0 else Sreg(qb, kb)))
    return out
def pv_mfmas(c0):
    return [mfma(Oreg(qb, b), Preg(qb), Vreg(b), "0" if c0 else Oreg(qb, b)) for qb in range(4) for b in range(12)]
def k_reads(slot):
    return [ds_read("ds_read_b128", Kreg(kb, s), KA[s & 1], KSLOT[slot] + kb * 6144 + (s >> 1) * 1024) for kb in range(2) for s in range(6)]
def q_reads():
    return [ds_read("ds_read_b128", Qreg(qb, s), QA[s & 1], qb * 6144 + (s >> 1) * 1024) for qb in range(4) for s in range(6)]
def v_reads(slot):
    return [ds_read("ds_read_b64_tr_b16", Vhalf(b, x), VA[b & 3], VSLOT[slot] + x * 6144 + (b >> 2) * 1024) for b in range(12) for x in range(2)]
def kv_dma(cfg, which, slot, tag=None):
    srd = SRK if which == "K" else SRV
    return [(sop("s_mov_b32", "m0", m0reg(which, slot, cb)), dma(VOFF if which == "K" else VOFV, srd, "0", cb * 128, cfg.polkv, tag=tag or which)) for cb in range(3)]
def kv_advance(which, wrap=True):
    lo, end, nx = (8, sKEND, sKNX) if which == "K" else (12, sVEND, sVNX)
    o = [sop("s_add_u32", f"s{lo}", f"s{lo}", "12288"), sop("s_addc_u32", f"s{lo+1}", f"s{lo+1}", "0")]
    if wrap:
        o += [salu(f"s_cmp_eq_u32 s{lo}, {end}", [f"s{lo}", end], ["scc"]),
              sop("s_cselect_b64", R("s", lo, 2), R("s", nx, 2), R("s", lo, 2)), sop("s_cselect_b32", f"s{lo+2}", sNR, f"s{lo+2}")]
    return o

class Op:
    def __init__(s, ins, deps=(), lo=0, hi=95, fixed=None, samegap=()):
        s.ins = ins; s.deps = list(deps); s.lo = lo; s.hi = hi; s.fixed = fixed; s.gap = None; s.samegap = list(samegap)

NEXP_H = 22
def sm_ops(minit=None):
    H, Rr = [], []
    egaps = list(range(2, 96, 3))
    for qb in range(4):
        ready = 12 * qb + 11 + 4
        pre = []
        if minit:
            t, u = MC[qb], LS[qb]
            sv = Op(valu("v_mov_b32", LSV[qb], LS[qb]), lo=(0 if qb < 2 else 12 * qb))
            c = []
            def ch(ins, extra=()):
                o = Op(ins, deps=(c[-1:] if c else []) + list(extra), lo=ready); c.append(o); return o
            if minit == "P":
                ch(valu("v_max3_f32", t, t, Se(qb, 0), Se(qb, 1)))
                ch(valu("v_max3_f32", t, t, Se(qb, 2), Se(qb, 3)))
                ch(valu("v_max3_f32", t, t, Se(qb, 4), Se(qb, 5)))
                ch(valu("v_max3_f32", t, t, Se(qb, 6), Se(qb, 7)))
            else:
                ch(valu("v_max3_f32", t, Se(qb, 0), Se(qb, 1), Se(qb, 2)))
                ch(valu("v_max3_f32", t, t, Se(qb, 3), Se(qb, 4)))
                ch(valu("v_max3_f32", t, t, Se(qb, 5), Se(qb, 6)))
                ch(valu("v_max_f32", t, t, Se(qb, 7)))
            ch(valu("v_mov_b32", u, t), [sv])
            ch(swap("v_permlane32_swap_b32", t, u))
            ch(valu("v_max_f32", t, t, u))
            ch(valu("v_mov_b32", u, t))
            ch(swap("v_permlane16_swap_b32", t, u))
            ch(valu("v_max_f32", t, t, u))
            last = ch(valu("v_mul_f32", t, sC, t))
            z = Op(valu("v_mov_b32", u, "0"), deps=[c[-2]], lo=ready)
            H += [sv] + c + ([z] if qb == 3 else [])
            pre = [last, c[-2]]
        prevadd = None
        ex = []
        for e in range(8):
            n = qb * 8 + e
            inH = n < NEXP_H
            f = Op(valu("v_fma_f32", Se(qb, e), Se(qb, e), sC, "-" + MC[qb]), deps=pre[:1])
            x = Op(valu("v_exp_f32", Se(qb, e), Se(qb, e), kind="E"), deps=[f])
            fH = True
            if fH: f.lo = ready
            else: f.deps = []
            (H if fH else Rr).append(f)
            x.fixed = egaps[(32 - NEXP_H) + n] if inH else egaps[n - NEXP_H]
            if not inH and fH: x.deps = []
            (H if inH else Rr).append(x)
            aH = n < NEXP_H - 2
            a = Op(valu("v_add_f32", LS[qb], LS[qb], Se(qb, e)), deps=([x] if (aH or not inH) else []) + (pre[1:] if aH else []))
            if prevadd is not None and prevadd[1] == aH: a.samegap = [prevadd[0]]
            if not aH: a.hi = 12 * qb - 1
            ex.append((x, inH))
            if minit and qb < 3 and e == 1: a.ins = valu("v_add_f32", LS[qb], Se(qb, 0), Se(qb, 1))
            if not (minit and qb < 3 and e == 0):
                prevadd = (a, aH)
                (H if aH else Rr).append(a)
            if e & 1:
                cv = Op(valu("v_cvt_pk_bf16_f32", f"v{PB + 4*qb + (e >> 1)}", Se(qb, e - 1), Se(qb, e)),
                        deps=[y for (y, h) in ex[-2:] if h == aH])
                if aH: cv.lo = 48 + 12 * qb + 11
                else: cv.hi = 12 * qb - 1
                (H if aH else Rr).append(cv)
        for o in H + Rr:
            if not hasattr(o, "qb"): o.qb = qb
    for k, o in enumerate(H + Rr): o.seq = k
    return H, Rr

def schedule(mf, mem, sal, ops, sq=(), post={}):
    assert all(0 <= g < len(mf) for g in list(mem) + list(sal) + list(post)), (sorted(mem)[-3:], sorted(sal)[-3:])
    sq = list(sq)
    for g in range(len(mf)):
        while sq and sq[0][0] <= g and ((g not in mem and g not in sal) or sq[0][1] <= g):
            sal.setdefault(g, []).append(sq.pop(0)[2])
    assert not sq
    cons = {id(o): [] for o in ops}
    for o in ops:
        for d in o.deps: cons[id(d)].append((o, 1))
        for d in o.samegap: cons[id(d)].append((o, 0))
    def dl(o, memo={}):
        if id(o) in memo: return memo[id(o)]
        v = o.fixed if o.fixed is not None else o.hi
        if o.fixed is None:
            for c, k in cons[id(o)]:
                v = min(v, dl(c, memo) - k - (1 if getattr(c.ins, "perm", False) else 0))
        memo[id(o)] = v
        return v
    memo = {}
    for o in ops: o.dl = dl(o, memo)
    for o in ops: assert o.dl >= o.lo, (o.ins, o.dl, o.lo)
    out = []; over = 0
    todo = [o for o in ops if o.fixed is None]
    fixed = {o.fixed: o for o in ops if o.fixed is not None}
    for g in range(len(mf)):
        if mf[g] is not None: out.append(mf[g])
        m = mem.get(g, []); s = sal.get(g, [])
        room = 2
        out += m; room -= sum(2 if x.kind == 'W' else 1 for x in m)
        out += s; room -= (len(s) if m else max(0, len(s) - 1))
        if MODEL == 2 or (MODEL and any(getattr(x, "store", False) for l in mem.values() for x in l)):
            if any(getattr(x, "store", False) for x in m): room += 3
            if any(x.text == "s_barrier" for x in s): room -= 2; over -= 0
            if any(getattr(x, "dma", False) for x in m) and not any(x.kind == "G" for k in range(max(0, g - 8), g) for x in mem.get(k, [])): room -= 1
        if g in fixed:
            o = fixed[g]
            assert all(d.gap is not None and d.gap < g for d in o.deps), o.ins
            o.gap = g; out.append(o.ins); room -= 2
        while True:
            rdy = [o for o in todo if o.lo <= g and all(d.gap is not None and d.gap + (1 if getattr(o.ins, "perm", False) else 0) < g for d in o.deps)
                   and all(d.gap is not None for d in o.samegap)]
            if not rdy: break
            cost = lambda o: 2 if (o.ins.kind == "E" or getattr(o.ins, "perm", False)) else 1
            fit = [o for o in rdy if cost(o) <= room or o.dl <= g]
            if not fit: break
            o = min(fit, key=lambda o: (o.dl, -cost(o)))
            o.gap = g; todo.remove(o); out.append(o.ins); room -= cost(o)
        over += max(0, -room)
        out += post.get(g, [])
    assert not todo, [o.ins for o in todo]
    return out, over

def spread(rd, free, M):
    n = len(rd)
    for k, g in enumerate(free):
        while rd and (n - len(rd)) < (n * (k + 1) + len(free) - 1) // len(free) if n > len(free) else (rd and n - len(rd) <= k):
            M(g, rd.pop(0))
    assert not rd

def piece_reads(base, off):
    return [ds_read("ds_read_b64_tr_b16", R("a", base + 2 * x, 2), VDR, off + 64 * x) for x in range(2)]
def drain_reads(n=3): return [r for i in range(n) for r in piece_reads(208 + 4 * i, i * 1024)]
def pc_off(i): return (i // 3) * 3072 + (i % 3) * 128
def o_store(cfg, i): return gstore(DRreg(i), VOFO, SRO, sGOF, pc_off(i), cfg.polo, tag="O")
def q_dma(cfg, i, tag="Q"): return (sop("s_add_u32", "m0", sQM, str((i % 3) * 896)), dma(VOFF, SRQ, "0", pc_off(i), cfg.polq, tag=tag))
def stage_advance(n, o=True):
    return [sop("s_add_u32", "s16", "s16", str(n)), sop("s_addc_u32", "s17", "s17", "0"), sop("s_add_u32", sQM, sQM, str(n))] + ([sop("s_add_u32", sGOF, sGOF, "3072")] if o else [])

def fin_order(): return [(qb, b) for qb in range(4) for b in range(0, 12, 2)]
LIF = lambda qb: SB + 4 * qb
SCROW = [0, 2, 1, 3]

def l_reduce_ops(cfg, deps):
    a, b, c, d = LSV
    s1 = Op(swap("v_permlane32_swap_b32", a, b), deps=deps[:2]); s2 = Op(swap("v_permlane32_swap_b32", c, d), deps=deps[2:])
    a1 = Op(valu("v_add_f32", a, a, b), deps=[s1]); a2 = Op(valu("v_add_f32", c, c, d), deps=[s2])
    s3 = Op(swap("v_permlane16_swap_b32", a, c), deps=[a1, a2]); a3 = Op(valu("v_add_f32", a, a, c), deps=[s3])
    r = Op(I(f"v_rcp_f32 {b}, {a}", "E", [a], [b]), deps=[a3])
    return [s1, s2, a1, a2, s3, a3, r], r

def iteration(cfg, kind):
    par = {"A": 0, "Z": 0, "O": 1, "E": 0, "X": 0, "Y": 1}[kind]
    mf = qk_mfmas() + pv_mfmas(kind in "AZ")
    mem = {}; sal = {}; sq = []
    def M(g, i):
        l = mem.setdefault(g, [])
        l.insert(len([x for x in l if x.kind != "W"]), i) if i.kind == "D" else l.append(i)
    def busy(g): return g in mem and any(x.kind != "W" for x in mem[g])
    def S(g, i): sal.setdefault(g, []).append(i)
    def Q(lo, hi, lst): sq.extend((lo, hi, x) for x in lst)
    ops = sm_ops()[1] + sm_ops({"Y": "Y"}.get(kind))[0]
    sp = cfg.vsp
    nq = {"A": 6, "Z": 3, "E": 3, "Y": 3}.get(kind, 0)
    S(0, salu("s_barrier"))
    for j, (m0, d) in enumerate(kv_dma(cfg, "K", (par + 1) & 1)):
        S(2 + sp * j, m0); M(3 + sp * j, d)
    if kind in "EZX":
        for i in range(3): M(cfg.stg[i], o_store(cfg, i))
    if kind == "A" and cfg.vtouch:
        M(21, I(f"buffer_load_dword v252, v254, s[20:23], 0 offen", "G", ["v254", "s[20:23]"], [], tag="PF"))
        Q(22, 46, [sop("s_mov_b32", "s22", "0")])
    if kind == cfg.pfin and cfg.pf:
        M(21 if kind == "O" else 27, I(f"buffer_load_dword v252, v254, s[84:87], 0 offen{cfg.polpf}", "G", ["v254", "s[84:87]"], [], tag="PF"))
    if kind == "Z":
        wr = [fin_pair(qb, b, LIF(qb))[1] for qb, b in fin_order()][cfg.nfw:]
        cand = list(range(1, cfg.zwend, 3))
        wg = [cand[int(k * len(cand) / len(wr))] for k in range(len(wr))]
        for g, w in zip(wg, wr): M(g, w)
        assert cfg.nfw >= 8
        for k, d in enumerate(drain_reads(3)): M([6, 6, 7, 7, 12, 12][k], d)
        w = waitcnt(lgkm=0); w.needlg = mem[12][-1]; S(20, w)
        ops.append(Op(valu("v_add_u32", VDR, "3072", VDR), lo=13))
    spread(v_reads(par), [g for g in range(1, cfg.rdend + (5 if kind == "Z" else 0)) if g % 3 != 2 and not busy(g)], M)
    w = waitcnt(vm=0, lgkm=0); w.need = ("K", 2)
    if kind == "Z": w.lgkm = sum(1 for g in range(cfg.rdend + 5, 48) for x in mem.get(g, []) if x.kind == "W")
    S(47, w)
    if kind == "Y": Q(1, 40, newitem_a())
    Q(4 + 2 * sp, 46, kv_advance("K", wrap=(kind == "E")))
    if kind == cfg.pfin and cfg.pf:
        Q(28, 46, [sop("s_add_u32", "s84", "s84", "s0"), sop("s_addc_u32", "s85", "s85", "0"), sop("s_sub_u32", "s1", "s1", "1"), sop("s_cselect_b32", "s86", "0", "s86")])
    if kind == "X" and cfg.kvpf: sq[0:0] = [(1, 46, x) for x in kvpf_setup(cfg)]
    S(48, salu("s_barrier"))
    for j, (m0, d) in enumerate(kv_dma(cfg, "V", par)):
        S(50 + sp * j, m0); M(51 + sp * j, d)
    if kind == "Y": Q(41, 67, newitem_b())
    if kind == "X": Q(49, 70, window_srd(20, sOP, sITEM) + [sop("s_mov_b32", "s22", WIN)])
    qg = [69, 75, 81] if nq == 3 else [66, 69, 75, 78, 84, 87]
    adv = kv_advance("V", wrap=(kind == "O"))
    if nq == 6: Q(64, 64, adv[:2])
    for i in range(nq):
        m0, d = q_dma(cfg, i)
        Q(qg[i] - 1, qg[i] - 1, [m0]); M(qg[i], d)
        if nq == 3 and i == 0: Q(70, 73, adv[:2])
        if nq == 3 and i == 1: Q(76, 79, adv[2:])
    if nq == 6: Q(88, 94, adv[2:])
    if nq == 0: Q(52 + 2 * sp, 90, adv)
    if nq: Q(qg[-1] + 1, 94, stage_advance(nq * 1024, kind != "Y"))
    if kind == cfg.kvpf_at[0] and cfg.kvpf:
        g = int(cfg.kvpf_at[1:])
        M(g, I(f"buffer_load_dword v252, v254, s[84:87], 0 offen{cfg.polpf}", "G", ["v254", "s[84:87]"], [], tag="PF"))
        Q(g + 1, 94, [sop("s_mov_b32", "s86", "0")])
    if kind == "Z" and cfg.kvpf2: sq[2:2] = [(17, 66, x) for x in kvpf2_setup(cfg)]
    rd = k_reads(par) + (q_reads() if kind == "X" else []) + (drain_reads() if kind == "O" else [])
    free = [g for g in range(49, 48 + cfg.rdend) if g % 3 != 2 and not busy(g)]
    if len(rd) <= 12 and kind != "Z": free = [g for g in free if g % 3 == 1]
    elif len(rd) < len(free): free = [free[int(k * len(free) / len(rd))] for k in range(len(rd))]
    spread(rd, free, M)
    if kind == "E": ops.append(Op(valu("v_add_u32", VDR, "3072", VDR)))
    if kind == "Y":
        ops.append(Op(valu("v_mov_b32", VDR, VDR0)))
        svs = [next(o for o in ops if o.ins.wr == [LSV[q]]) for q in range(4)]
        lr, last = l_reduce_ops(cfg, svs)
        last.hi = 82; ops += lr
        M(85, ds_write("ds_write_b32", SCW, LSV[1], 0))
        fc = flag_check(cfg, LSV[0])
        sq.insert(0, (1, 40, fc[0]))
        ops.append(Op(fc[1], deps=[lr[-2]], hi=86))
        Q(88, 94, fc[2:] + [sop("s_add_u32", sNN, sNN, "1")])
        for o in ops:
            if getattr(o, "qb", 9) < 2 and o.fixed is None: o.hi = min(o.hi, 86)
        for q in range(4): M([87, 87, 88, 88][q], ds_read("ds_read_b128", R("v", LIF(q), 4), SCR, SCROW[q] * 64))
    w = waitcnt(vm=0, lgkm=0); w.need = ("V", 2)
    S(95, w)
    if kind == "O": Q(80, 94, [sop("s_sub_u32", sCNT, sCNT, "1"), salu(f"s_cmp_eq_u32 {sCNT}, 0", [sCNT], ["scc"])])
    post = {}
    if cfg.exp in ("m4", "m16") and kind in "OE":
        ops = [o for o in ops if not o.ins.text.startswith("v_add_f32")]
        for qb in range(4):
            acc = R("a", 224 + 4 * qb, 4)
            if cfg.exp == "m16": post[48 + 12 * qb + 4] = [mfma(acc, Preg(qb), "a[240:243]", acc)]
            else:
                for h in range(2):
                    post[48 + 12 * qb + 3 + 3 * h] = [I(f"v_mfma_f32_4x4x4_16b_bf16 {acc}, a[240:241], {R('v', PB + 4 * qb + 2 * h, 2)}, {acc}", "S")]
    out, over = schedule(mf, mem, sal, ops, sq, post)
    for k, i in enumerate(out):
        if hasattr(i, "needlg"):
            n = sum(1 for x in out[out.index(i.needlg) + 1:k] if x.kind in "DW")
            i.lgkm = n; i.text = f"s_waitcnt lgkmcnt({n})"
    for i in out:
        if "bar" in cfg.kill and i.text == "s_barrier": i.text = "s_nop 0"
        if "b1" in cfg.kill and i is out[1]: i.text = "s_nop 0"
        if kind in "OE":
            if "add" in cfg.kill and i.text.startswith("v_add_f32"): i.text = "s_nop 0"
            if "kr" in cfg.kill and i.text.startswith("ds_read_b128"): i.text = "s_nop 0"
            if "vr" in cfg.kill and i.text.startswith("ds_read_b64_tr") and VDR not in i.rd: i.text = "s_nop 0"
            if "kv" in cfg.kill and i.kind == "G" and i.tag in "KV": i.text = "s_nop 0"
            if "sm" in cfg.kill and i.kind in "VE": i.text = "s_nop 0"
            if "exp" in cfg.kill and i.kind == "E": i.text = i.text.replace("v_exp_f32", "v_mov_b32")
        if "dma" in cfg.kill and i.kind == "G": i.text = "s_nop 0"
        if "ds" in cfg.kill and i.kind == "D": i.text = "s_nop 0"
    print(f"iteration {kind}: {len(out)} instrs, overflow slots {over}", file=sys.stderr)
    return out

def linear(ops):
    ops = list(ops); ids = set(id(o) for o in ops); done = {}; out = []
    while ops:
        def rdy(o, slack):
            return all(id(d) not in ids or (id(d) in done and len(out) - done[id(d)] > slack) for d in o.deps + o.samegap)
        o = next((o for o in ops if rdy(o, 2)), None) or next((o for o in ops if rdy(o, 1)), None) or next(o for o in ops if rdy(o, 0))
        ops.remove(o); done[id(o)] = len(out); out.append(o.ins)
    return out

def weave(mf, fill, per=2):
    out = []; fill = list(fill)
    for m in mf:
        out.append(m)
        if m.kind != "M": continue
        room = per
        while fill and room >= (2 if fill[0].kind == "E" else 1):
            f = fill.pop(0); out.append(f); room -= 2 if f.kind == "E" else 1
    return out, fill

def vw(tag, n=1, lgkm=None):
    w = waitcnt(vm=0, lgkm=lgkm); w.need = (tag, n); w.mark = True; return w

def q0_dma(cfg, rg):
    o = []
    for cb in range(3):
        o += [sop("s_add_u32", "m0", sSTG, str(rg * 3072 + cb * 896)), nop(0), dma(VOFF, SRQ, "0", cb * 128, cfg.polq, tag=f"Q{rg}")]
    return o + [sop("s_add_u32", "s16", "s16", "3072"), sop("s_addc_u32", "s17", "s17", "0")]

def prologue(cfg):
    H = sm_ops("P")[0]
    per = [[o for o in H if o.qb == qb] for qb in range(4)]
    qr = q_reads(); mf = qk_mfmas()
    def kv(which, slot, tag=None):
        o = []
        for m0, d in kv_dma(cfg, which, slot, tag): o += [m0, nop(0), d]
        return o + kv_advance(which, wrap=False)
    o = [vw("K0", lgkm=0), salu("s_barrier")] + k_reads(0)
    if cfg.vtouch:
        o += [valu("v_min_u32", "v254", "2", T[0]), valu("v_mul_u32_u24", "v254", "3145728", "v254")] + window_srd(20, sOP, sXB) + [sop("s_mov_b32", "s22", "0" if cfg.nomem else "6316032")]
    o += [valu("v_lshlrev_b32", "v254", "7", T[0])]
    for qb in range(4):
        o += [vw(f"Q{2*qb+1}")] + qr[6 * qb:6 * qb + 6]
        for s in range(6):
            o += [waitcnt(lgkm=5 - s), mf[12 * qb + s]]
        o += mf[12 * qb + 6:12 * qb + 12]
        if qb == 0: o += [label("L_skipq6")] if False else []
        if qb == 0: o += late_q(cfg)
        if qb == 1: o += kv("K", 1, "K1") + kv("V", 0, "V0")
        if qb == 2: o += [salu("s_barrier")] + kv("K", 0) + kv("V", 1) + newitem_a(first=True) + newitem_b()
        if qb == 3: o += [vw("K1"), salu("s_barrier")] + k_reads(1)
        o += linear(per[qb])
    o += [vw("V0", lgkm=0)]
    return o

def sm_full(qb, minit):
    H, Rr = sm_ops(minit)
    ops = [o for o in H + Rr if o.qb == qb]
    last = {}; readers = {}
    for o in sorted(ops, key=lambda o: SM_RANK(o)):
        o.deps = [last[r] for r in set(o.ins.rd + o.ins.wr) if r in last] + [x for r in o.ins.wr for x in readers.get(r, [])]; o.samegap = []
        for r in o.ins.rd: readers.setdefault(r, []).append(o)
        for r in o.ins.wr: last[r] = o; readers[r] = []
    return sorted(ops, key=lambda o: SM_RANK(o))
def SM_RANK(o):
    t = o.ins.text
    if t.startswith("v_fma"): return (1, t)
    if t.startswith("v_exp"): return (2, t)
    if t.startswith("v_add_f32"): return (3, o.ins.rd[-1])
    if t.startswith("v_cvt"): return (4, t)
    return (0, o.seq)

def prologue2(cfg):
    K0 = lambda kb, s: R("a", 208 + (kb * 6 + s) * 4, 4)
    qr = q_reads(); qk1 = qk_mfmas(); pv0 = pv_mfmas(True)
    qk0 = [mfma(Sreg(qb, kb), K0(kb, s), Qreg(qb, s), "0" if s == 0 else Sreg(qb, kb)) for qb in range(4) for kb in range(2) for s in range(6)]
    k0r = [ds_read("ds_read_b128", K0(kb, s), KA[s & 1], KSLOT[0] + kb * 6144 + (s >> 1) * 1024) for kb in range(2) for s in range(6)]
    H1 = sm_ops()[0]
    h1 = [linear([o for o in H1 if o.qb == qb]) for qb in range(4)]
    g = lambda l, q: l[12 * q:12 * q + 12]
    def kv(which, slot, tag=None):
        o = []
        for m0, d in kv_dma(cfg, which, slot, tag): o += [m0, nop(0), d]
        return o + kv_advance(which, wrap=False)
    def first(qb, extra=(), fill=()):
        o = [vw(f"Q{2*qb+1}")] + qr[6 * qb:6 * qb + 6]
        m = []
        for s in range(6): m += [waitcnt(lgkm=5 - s), qk0[12 * qb + s]]
        w, rest = weave(m + qk0[12 * qb + 6:12 * qb + 12], fill)
        return o + w + list(extra) + rest + linear(sm_full(qb, "P"))
    grp = lambda l: [l[3 * k:3 * k + 3] + (l[9:] if k == 2 else []) for k in range(3)]
    pend = init_loads(cfg)[cfg.pn[0]:] + grp(kv("K", 0, "K2")) + grp(kv("V", 1, "V1"))
    def take(n):
        r = [x for d in pend[:n] for x in d]; del pend[:n]; return r
    def sprinkle(o, dmas, skip=8):
        out = []; step = max(1, (len(o) - skip - 2) // (len(dmas) + 1)); dmas = list(dmas)
        for k, x in enumerate(o):
            out.append(x)
            if k >= skip and (k - skip) % step == 0 and dmas: out += dmas.pop(0)
        assert not dmas
        return out
    def takeg(n):
        r = pend[:n]; del pend[:n]; return r
    o = [vw("K0", lgkm=0), salu("s_barrier")] + k0r + [valu("v_lshlrev_b32", "v254", "7", T[0])]
    o += take(cfg.pn[1]) + first(0)
    o += take(cfg.pn[2]) + first(1)
    vr = v_reads(0); kr = k_reads(1)
    assert 21 <= sum(cfg.pn[:4]) <= 33 and sum(cfg.pn[:2]) >= 9 and sum(cfg.pn[:3]) >= 15
    o += take(cfg.pn[3]) + [vw("V0"), salu("s_barrier")] + kr + vr[:12] + newitem_a(first=True) + vr[12:] + [waitcnt(lgkm=15)]
    m = g(qk1, 0) + [waitcnt(lgkm=0), salu("s_barrier")] + g(pv0, 0)[:3]
    w, r0 = weave(g(pv0, 0)[3:] + g(qk1, 1), [x for x in h1[0] if not x.text.startswith("v_cvt")])
    m += w
    w, r1 = weave(g(pv0, 1), r0 + [x for x in h1[0] if x.text.startswith("v_cvt")] + [x for x in h1[1] if not x.text.startswith("v_cvt")])
    m += w + r1 + [x for x in h1[1] if x.text.startswith("v_cvt")]
    o += sprinkle(m, takeg(cfg.pn[4]))
    def ren(ins, qb):
        base = SB + 8 * qb; to = int(regs(Oreg(qb, 9))[0][1:])
        f = lambda r: f"v{int(r[1:]) - base + to}" if r[0] == "v" and r[1:].isdigit() and base <= int(r[1:]) < base + 8 else r
        t = re.sub(r"v\[(\d+):(\d+)\]", lambda m: f"v[{f('v' + m.group(1))[1:]}:{f('v' + m.group(2))[1:]}]", ins.text)
        ins.text = re.sub(r"\bv\d+\b", lambda m: f(m.group(0)), t)
        ins.rd = [f(r) for r in ins.rd]; ins.wr = [f(r) for r in ins.wr]; ins.srcc = [f(r) for r in ins.srcc]
        return ins
    def late(qb, dmas, mid, tailfill):
        o = [vw(f"Q{2*qb+1}")] + qr[6 * qb:6 * qb + 6]
        for s in range(6): o += [waitcnt(lgkm=5 - s), ren(qk0[12 * qb + s], qb)]
        o += [ren(x, qb) for x in qk0[12 * qb + 6:12 * qb + 12]] + g(qk1, qb)[:3]
        w, r = weave(g(qk1, qb)[3:], [ren(x, qb) for x in linear(sm_full(qb, "P"))])
        o += w + r + mid
        nc = [x for x in h1[qb] if not x.text.startswith("v_cvt")]
        w, r = weave(g(pv0, qb), tailfill + nc)
        o += w + r + [x for x in h1[qb] if x.text.startswith("v_cvt")]
        return sprinkle(o, dmas)
    o += take(cfg.pn[5])
    assert len(pend) <= 6
    o += newitem_b() + late(2, takeg(9), [], [])
    dm = [[m0, nop(0), d] for m0, d in kv_dma(cfg, "K", 1) + kv_dma(cfg, "V", 0) + [q_dma(cfg, i) for i in range(6)]]
    o += late(3, dm, [vw("K2"), salu("s_barrier")], k_reads(0))
    o += kv_advance("K", wrap=False) + kv_advance("V", wrap=False) + stage_advance(6144) + [vw("V1", lgkm=0)]
    if cfg.exp in ("m4", "m16"):
        o += [valu("v_mov_b32", "v255", "0x3f803f80")]
        if cfg.onecol: o += [valu("v_and_b32", "v252", "15", T[0]), I("v_cmp_eq_u32 vcc, 0, v252", "V", ["v252"], ["vcc"]), nop(1), I("v_cndmask_b32 v255, 0, v255, vcc", "V", ["v255", "vcc"], ["v255"])]
        o += [I(f"v_accvgpr_write_b32 a{240+k}, v255", "V", ["v255"], [f"a{240+k}"]) for k in range(4)] + [I(f"v_accvgpr_write_b32 a{224+k}, 0", "V", [], [f"a{224+k}"]) for k in range(16)]
    return o

def init_loads(cfg):
    grp = lambda l: [l[3 * k:3 * k + 3] + (l[9:] if k == 2 else []) for k in range(3)]
    def kv(which, slot, tag):
        o = []
        for m0, d in kv_dma(cfg, which, slot, tag): o += [m0, nop(0), d]
        return grp(o + kv_advance(which, wrap=False))
    l = kv("K", 0, "K0")
    for rg in range(4): l += grp(q0_dma(cfg, rg))
    l += kv("K", 1, "K1") + kv("V", 0, "V0")
    for rg in range(4, 8): l += grp(q0_dma(cfg, rg))
    return l

def late_q(cfg):
    o = []
    for rg in range(cfg.q_early, 8): o += q0_dma(cfg, rg)
    return o

def pkmul(n, l, d=None):
    r2 = R("v", n, 2); l2 = R("v", l, 2); d2 = R("v", n if d is None else d, 2)
    return I(f"v_pk_mul_f32 {d2}, {r2}, {l2}", "V", [r2, l2], [d2])

def fin_pair(qb, b, li):
    cb = b >> 2
    A_, B_, C_ = [int(regs(Oreg(qb, 4 * cb + k))[0][1:]) for k in range(3)]
    D_ = C_ + 4 if cb < 2 else A_ - 4
    Tm = int(LSV[2][1:])
    cv = lambda d, x, y: valu("v_cvt_pk_bf16_f32", f"v{d}", f"v{x}", f"v{y}")
    off = qb * 6144 + (b >> 1) * 512
    if b & 2 == 0:
        o = []
        if cb == 2: o += [I(f"v_accvgpr_read_b32 v{D_+i}, {r}", "V", [r], [f"v{D_+i}"]) for i, r in enumerate(regs(Oreg(qb, 11)))]
        o += [pkmul(A_, li), pkmul(A_ + 2, li + 2, Tm), pkmul(B_, li, A_ + 2), pkmul(C_, li), pkmul(D_, li)]
        o += [cv(A_, A_, A_ + 2), cv(A_ + 2, A_ + 1, A_ + 3), cv(A_ + 1, C_, D_), cv(A_ + 3, C_ + 1, D_ + 1)]
        return o, ds_write("ds_write_b128", OW, R("v", A_, 4), off)
    o = [pkmul(B_ + 2, li + 2), pkmul(C_ + 2, li + 2), pkmul(D_ + 2, li + 2)]
    o += [cv(B_, Tm, B_ + 2), cv(B_ + 2, Tm + 1, B_ + 3), cv(B_ + 1, C_ + 2, D_ + 2), cv(B_ + 3, C_ + 3, D_ + 3)]
    return o, ds_write("ds_write_b128", OW, R("v", B_, 4), off)

def flag_check(cfg, v):
    return [sop("s_mov_b32", sT[4], f2h(cfg.thresh)), I(f"v_cmp_nge_f32 vcc, {sT[4]}, {v}", "V", [sT[4], v], ["vcc"]),
            salu("s_cmp_lg_u64 vcc, 0", ["vcc"], ["scc"]), sop("s_cselect_b32", sT[4], "1", "0"), sop("s_lshl_b32", sT[4], sT[4], sNN), sop("s_or_b32", sFLAG, sFLAG, sT[4])]

def finalize(cfg):
    a, b, c, d = LSV
    o = []
    if cfg.kvpf and cfg.kvpf_at == "F":
        o += [I(f"buffer_load_dword v252, v254, s[84:87], 0 offen{cfg.polpf}", "G", ["v254", "s[84:87]"], [], tag="PF")]
        if cfg.kvpf > 4:
            o += [sop("s_mov_b32", sT[5], "8192"), I(f"buffer_load_dword v252, v254, s[84:87], {sT[5]} offen{cfg.polpf}", "G", ["v254", "s[84:87]", sT[5]], [], tag="PF")]
        o += [sop("s_mov_b32", "s86", "0")]
    if cfg.cpf2:
        a_, b_ = LSV[0], LSV[1]
        o += [salu(f"s_getpc_b64 s[{sT[4][1:]}:{sT[5][1:]}]"), label("L_pc2"), sop("s_lshl_b32", sT[6], sWAVE, "12"), sop("s_add_u32", sT[6], sT[6], "L_T-L_pc2"),
              valu("v_lshrrev_b32", a_, "1", "v254"), valu("v_add_u32", a_, sT[6], a_), valu("v_min_u32", a_, "L_last-L_pc2", a_), valu("v_mov_b32", b_, sT[5]),
              I(f"v_add_co_u32 {a_}, vcc, {sT[4]}, {a_}", "V", [a_], [a_, "vcc"]), nop(1), I(f"v_addc_co_u32 {b_}, vcc, 0, {b_}, vcc", "V", [b_, "vcc"], [b_, "vcc"]),
              I(f"global_load_dword v252, v[{a_[1:]}:{b_[1:]}], off", "G", [a_, b_], [], tag="PF")]
    o += [I(".p2align 3", "L")]
    pend = []; done = 0
    for k, (qb, b_) in enumerate(fin_order()):
        v, w = fin_pair(qb, b_, LIF(qb))
        o += v; pend.append(w)
        while done < cfg.nfw and done < (k + 1) * cfg.nfw // 24:
            o.append(pend[done]); done += 1
    return o

def last_block(cfg):
    v2base = lambda b: 220 + 4 * b if b < 9 else 4 * (b - 9)
    P2 = lambda qb: R("v", SB + 8 * qb, 4)
    qk = qk_mfmas()
    grp_mf = {"K": lambda q: qk[12 * q:12 * q + 12],
              "A": lambda q: [mfma(Oreg(q, b), Preg(q), Vreg(b), Oreg(q, b)) for b in range(12)],
              "B": lambda q: [mfma(Oreg(q, b), P2(q), R("a", v2base(b), 4), Oreg(q, b)) for b in range(12)]}
    seqm = cfg.lorder.split()
    at = {x: 12 * k for k, x in enumerate(seqm)}
    mf = [m for x in seqm for m in grp_mf[x[0]](int(x[1]))]
    n = len(mf)
    mem = {}; sal = {}; sq = []; post = {}
    def M(g, i):
        l = mem.setdefault(g, [])
        l.insert(len([x for x in l if x.kind != "W"]), i) if i.kind == "D" else l.append(i)
    def S(g, i): sal.setdefault(g, []).append(i)
    ops = sm_ops()[1]
    for o in ops:
        o.fixed = None; o.hi = min(at[f"K{o.qb}"] - 1, at[f"A{o.qb}"] - 2); o.lo = cfg.lrlo
    radd = {q: [o for o in ops if o.qb == q and o.ins.wr == [LS[q]]][-1:] for q in range(4)}
    lrd = []
    for qb in range(4):
        due = at[f"B{qb}"] - 2; end = at[f"B{qb}"] + 11
        adds = []; xs = []; cvs = []
        for e in range(8):
            ready = at[f"K{qb}"] + (9 if e < 4 else 15)
            f = Op(valu("v_fma_f32", Se(qb, e), Se(qb, e), sC, "-" + MC[qb]), lo=ready, hi=due)
            x = Op(valu("v_exp_f32", Se(qb, e), Se(qb, e), kind="E"), deps=[f], hi=due)
            a = Op(valu("v_add_f32", LS[qb], LS[qb], Se(qb, e)), deps=[x], samegap=adds[-1:] or radd[qb], hi=due + 8)
            ops += [f, x, a]; adds.append(a); xs.append(x)
            if e & 1:
                jj = e >> 1
                cv = Op(valu("v_cvt_pk_bf16_f32", Se(qb, jj), Se(qb, e - 1), Se(qb, e)), deps=xs[-2:], samegap=[adds[jj]] + cvs[-1:], hi=due)
                ops.append(cv); cvs.append(cv)
        a_, b_ = LSV[qb & 1], LS[qb]
        c = [adds[-1]]
        def ch(ins):
            o = Op(ins, deps=c[-1:], hi=end - 5); c.append(o); ops.append(o)
        ch(valu("v_mov_b32", a_, b_)); ch(swap("v_permlane32_swap_b32", a_, b_)); ch(valu("v_add_f32", a_, a_, b_))
        ch(valu("v_mov_b32", b_, a_)); ch(swap("v_permlane16_swap_b32", a_, b_)); ch(valu("v_add_f32", b_, a_, b_))
        fc = flag_check(cfg, b_)
        ops.append(Op(fc[1], deps=c[-1:], lo=end - 6, hi=end - 2))
        sq += [(end - 12, end - 8, fc[0])] + [(end - 1, end + 8 if qb < 3 else end, x) for x in fc[2:]]
        ch(I(f"v_rcp_f32 {a_}, {b_}", "E", [b_], [a_]))
        M(end - 4, ds_write("ds_write_b32", SCW, a_, 0))
        lrd.append(ds_read("ds_read_b128", R("v", SB + 8 * qb + 4, 4), SCR, 0)); M(end - 3, lrd[-1])
    S(0, salu("s_barrier"))
    v1 = v_reads(0)
    for b in range(12): M(1 + b, v1[2 * b]); M(1 + b, v1[2 * b + 1])
    for b in (2, 5, 8, 11):
        w = waitcnt(lgkm=0); w.needlg = v1[2 * b + 1]; S(at["A0"] + b - 3, w)
    S(13, waitcnt(vm=0)); S(14, salu("s_barrier"))
    for i in range(3): M(15 + 7 * i, o_store(cfg, i))
    ws_ = window_srd(20, sOP, sITEM)
    sq[0:0] = [(1, 29, x) for x in ws_[:3]] + [(30, 34, x) for x in ws_[3:] + [sop("s_mov_b32", "s22", WIN)]]
    ops.append(Op(valu("v_mov_b32", VDR, VDR0), hi=40))
    v2 = [ds_read("ds_read_b64_tr_b16", R("a", v2base(b) + 2 * x, 2), VA[b & 3], VSLOT[1] + x * 6144 + (b >> 2) * 1024) for b in range(12) for x in range(2)]
    g = 16
    for b in range(12):
        while g in mem or g in sal: g += 1
        M(g, v2[2 * b]); M(g, v2[2 * b + 1]); g += 2
    for b in (2, 5, 8, 11):
        w = waitcnt(lgkm=0); w.needlg = v2[2 * b + 1]; S(at["B0"] + b - 3, w)
    pb = {0: [24, 28, 32, 36, 40, 44], 1: [12, 16, 20, 208, 212, 216], 2: [48, 52, 56, 60, 64, 68], 3: [72, 76, 80, 84, 88, 92]}
    order = [0, 3, 1, 4, 2, 5]
    late = []
    for qb in range(4):
        end = at[f"B{qb}"] + 11
        st = lambda i: gstore(R("a", pb[qb][i], 4), VOFO, SRO, sGOF, pc_off(i), cfg.polo if qb < cfg.wbfrom else "", tag="O")
        grp = [fin_pair(qb, b, SB + 8 * qb + 4) for b in range(0, 12, 2)]
        rds = [piece_reads(pb[qb][i], (6 * qb + i) * 1024) for i in range(6)]
        w = waitcnt(lgkm=0); w.needlg = lrd[qb]
        blk = (late + [nop(3)] if qb == 3 else []) + [w, I(".p2align 3", "L")]
        seq = []
        for k, i in enumerate(order):
            w = waitcnt(lgkm=0); w.needlg = rds[order[k | 1]][1]
            seq.append(([w] if k % 2 == 0 else []) + ([sop("s_mov_b32", sGOF, str(qb * 6144))] if k == 0 else []) + [st(i)])
        defer = []
        nin = 6 if qb == 3 else cfg.lin
        for k, gq in enumerate(grp):
            blk += gq[0]
            if k < nin:
                blk += [gq[1]]
                if k & 1: blk += rds[k >> 1] + rds[3 + (k >> 1)]
                if qb in cfg.learly and k in cfg.lk: blk += seq.pop(0) + seq.pop(0) + [I(".p2align 3", "L")]
            else:
                defer.append([gq[1]])
                if k & 1: defer += [rds[k >> 1], rds[3 + (k >> 1)]]
        if cfg.trace == 3:
            blk = [I("; mark", "L", mark3=True)] + blk + [I("; mark", "L", mark3=True)]
        if qb < 3:
            g0 = end + (cfg.lfin if qb else cfg.lfin0)
            post[g0] = blk
            g = g0 + 1
            for x in defer:
                while g in mem: g += 1
                for ins in x: M(g, ins)
                g += 1 + (x[0].kind == "W")
            g += 4
            for x in seq:
                while g in mem or g - 1 in mem: g += 1
                for ins in x:
                    if g >= n: late.append(ins)
                    elif ins.kind == "S": S(g - 1, ins)
                    else: M(g, ins)
                g += cfg.lsp
        else:
            for x in seq: blk += x
            post[end] = blk
    out, over = schedule(mf, mem, sal, ops, sq, post)
    for k, i in enumerate(out):
        if hasattr(i, "needlg"):
            c = sum(1 for x in out[out.index(i.needlg) + 1:k] if x.kind in "DW")
            assert out.index(i.needlg) < k
            c = min(c, 15)
            i.lgkm = c; i.text = f"s_waitcnt lgkmcnt({c})"
    print(f"last block: {len(out)} instrs, overflow slots {over}", file=sys.stderr)
    return out

def fixnops(seq, name):
    import re
    for _ in range(400):
        p = [x for x in check(seq, name) if "dist" in x]
        if not p: return seq
        for k in range(1, len(seq) + 1):
            q = [x for x in check(seq[:k], name) if "dist" in x]
            if q:
                m = re.search(r"dist (\d+)(?: < (\d+))?", q[0])
                need = int(m.group(2) or 8) - int(m.group(1))
                seq = seq[:k - 1] + [nop(need - 1)] + seq[k - 1:]
                break
    raise RuntimeError("fixnops")

def window_srd(srd_lo, ptr, item):
    return [sop("s_mul_i32", sT[1], item, "98304"), sop("s_mul_i32", sT[2], sWAVE, "24576"), sop("s_add_u32", sT[1], sT[1], sT[2]),
            sop("s_add_u32", f"s{srd_lo}", f"s{ptr}", sT[1]), sop("s_addc_u32", f"s{srd_lo+1}", f"s{ptr+1}", "0")]

def head_base(dst, item):
    return [sop("s_mul_hi_u32", dst, item, "0x55555556"), sop("s_mul_i32", dst, dst, "196608"), sop("s_add_u32", dst, dst, sRB)]

def newitem_a(first=False):
    o = [] if first else [sop("s_sub_u32", sLEFT, sLEFT, "1"), sop("s_add_u32", sITEM, sITEM, "32")]
    o += head_base(sT[0], sITEM) + [sop("s_add_u32", sT[0], sT[0], "196608"), sop("s_add_u32", sKEND, f"s{sKP}", sT[0]), sop("s_add_u32", sVEND, f"s{sVP}", sT[0])]
    o += [sop("s_add_u32", sT[3], sITEM, "32"), sop("s_min_u32", sT[3], sT[3], "767")]
    o += head_base(sT[0], sT[3])
    o += [sop("s_add_u32", f"s{sKNX}", f"s{sKP}", sT[0]), sop("s_addc_u32", f"s{sKNX+1}", f"s{sKP+1}", "0")]
    return o
def kv_slice(cfg, item, unit, first_tile, last_left):
    a_, b_, c_ = sT[5], sT[6], sT[2]
    return [sop("s_mul_hi_u32", a_, item, "0x55555556"), sop("s_mul_i32", b_, a_, "3"), sop("s_sub_u32", c_, item, b_), sop("s_mul_i32", a_, a_, "196608"),
            sop("s_lshl_b32", b_, sLEFT, "8"), sop("s_add_u32", b_, b_, "s2"), salu(f"s_cmp_lt_u32 {b_}, {256 * last_left + 16}", [b_], ["scc"]),
            sop("s_cselect_b32", b_, "3", "2"), sop("s_subb_u32", c_, c_, "0"), sop("s_mul_i32", b_, b_, str(unit)),
            sop("s_lshl_b32", c_, c_, "1"), salu(f"s_bitcmp1_b32 {sWAVE}, 0", [sWAVE], ["scc"]), sop("s_addc_u32", c_, c_, "0"), sop("s_mul_i32", c_, c_, b_),
            sop("s_add_u32", a_, a_, c_), sop("s_add_u32", a_, a_, str(first_tile * 12288)),
            salu(f"s_cmp_lt_u32 {sWAVE}, 2", [sWAVE], ["scc"]), sop("s_cselect_b64", "s[84:85]", R("s", sKP, 2), R("s", sVP, 2)),
            sop("s_add_u32", "s84", "s84", a_), sop("s_addc_u32", "s85", "s85", "0")]

def kvpf_setup(cfg):
    assert cfg.kvpf <= 2
    return [sop("s_add_u32", sT[4], sITEM, "32")] + kv_slice(cfg, sT[4], cfg.kvpf * 1024, 16 - cfg.kvpf, 2) + (
           [salu(f"s_cmp_eq_u32 {sLEFT}, 2", [sLEFT], ["scc"]), sop("s_cselect_b32", "s86", sT[6], "0")] if cfg.kvpf_last else [sop("s_mov_b32", "s86", "0" if cfg.nomem else sT[6])])

def kvpf2_setup(cfg):
    return kv_slice(cfg, sITEM, 1024, 16 - cfg.kvpf - cfg.kvpf2, 1) + [
            salu(f"s_cmp_eq_u32 {sLEFT}, 1", [sLEFT], ["scc"]), sop("s_cselect_b32", "s86", "0" if cfg.nomem else sT[6], "0"),
            sop("s_mov_b32", "s0", "12288"), sop("s_mov_b32", "s1", str(cfg.kvpf2 - 1))]

def newitem_b():
    o = [sop("s_add_u32", f"s{sVNX}", f"s{sVP}", sT[0]), sop("s_addc_u32", f"s{sVNX+1}", f"s{sVP+1}", "0")]
    o += window_srd(16, sQP, sT[3])
    o += [salu(f"s_cmp_gt_u32 {sLEFT}, 1", [sLEFT], ["scc"]), sop("s_cselect_b32", sNR, KVWIN, "0"), sop("s_cselect_b32", "s18", QWIN, "0"),
          sop("s_mov_b32", sGOF, "0"), sop("s_mov_b32", sQM, sSTG), sop("s_mov_b32", sCNT, "7")]
    return o

def code_pf():
    return [salu("s_getpc_b64 s[84:85]"), label("L_pc"),
            valu("v_lshlrev_b32", "v8", "7", "v0"), valu("v_min_u32", "v8", "CODE_BYTES", "v8"), valu("v_mov_b32", "v9", "s85"),
            I("v_add_co_u32 v8, vcc, s84, v8", "V", ["v8"], ["v8", "vcc"]), nop(1), I("v_addc_co_u32 v9, vcc, 0, v9, vcc", "V", ["v9", "vcc"], ["v9", "vcc"]),
            I("global_load_dword v252, v[8:9], off", "G", ["v8", "v9"], [], tag="PF")] + (
           [I("global_load_dword v252, v[8:9], off offset:64", "G", ["v8", "v9"], [], tag="PF")] if CPF64 else [])

def setup(cfg):
    o = []
    x = lambda t: o.append(salu(t))
    x("s_cmp_ge_u32 s2, 256"); x("s_cbranch_scc1 L_end")
    x(f"s_load_dwordx4 s[4:7], s[0:1], 0"); x(f"s_load_dwordx2 s[{sVP}:{sVP+1}], s[0:1], 16"); x(f"s_load_dwordx2 s[{sOP}:{sOP+1}], s[0:1], 24")
    if cfg.stamps: x("s_memtime s[60:61]"); x("s_memrealtime s[62:63]")
    if cfg.cpf == 1: o += code_pf()
    if cfg.stamps: x(f"s_load_dwordx2 s[56:57], s[0:1], {32 if cfg.stamps == 2 else 40}")
    L, N, G, A, B_ = T
    o += [valu("v_lshrrev_b32", A, "6", "v0"), valu("v_and_b32", L, "63", "v0"), I(f"v_readfirstlane_b32 {sWAVE}, {A}", "V", [A], [sWAVE])]
    o += [valu("v_lshrrev_b32", A, "3", L), valu("v_and_b32", B_, "7", L), valu("v_xor_b32", B_, B_, A), valu("v_mul_u32_u24", A, "384", A), valu("v_lshl_add_u32", VOFF, B_, "4", A)]
    o += [valu("v_lshrrev_b32", N, "4", L), valu("v_and_b32", B_, "7", L), valu("v_xor_b32", B_, B_, N), valu("v_lshl_add_u32", VOFV, B_, "4", A)]
    o += [sop("s_mul_i32", sRB, sWAVE, "3072"), sop("s_mul_i32", sSTG, sWAVE, str(STGW)), sop("s_add_u32", sSTG, sSTG, str(STG)), sop("s_mov_b32", sC, f2h(CSCALE))]
    o += [sop("s_and_b32", sT[0], "s2", "7"), sop("s_mul_i32", sT[0], sT[0], "96"), sop("s_lshr_b32", sT[1], "s2", "3"), sop("s_add_u32", sXB, sT[0], sT[1])]
    for lo in (8, 12): x(f"s_mov_b32 s{lo+3}, 0x20000")
    for cb in range(3): o.append(sop("s_add_u32", m0reg("K", 0, cb), sRB, str(cb * 896)))
    x("s_mov_b32 s19, 0x20000"); x("s_mov_b32 s23, 0x20000")
    if cfg.stamps: x(f"s_mov_b32 s58, {256 if cfg.stamps == 2 else 301989888}"); x("s_mov_b32 s59, 0x20000")
    o += [sop("s_mov_b32", sITEM, sXB), sop("s_mov_b32", sLEFT, "3"), sop("s_mov_b32", sNN, "0"), sop("s_mov_b32", sFLAG, "0"), sop("s_mov_b32", sMODE, "0"), sop("s_mov_b32", sTODO, "0")]
    x("s_waitcnt lgkmcnt(0)")
    x(f"s_mov_b32 s{sQP}, s4"); x(f"s_mov_b32 s{sQP+1}, s5")
    return o

def addr_setup():
    L, N, G, A, B_ = T
    o = [valu("v_and_b32", N, "15", L), valu("v_lshrrev_b32", G, "4", L)]
    o += [valu("v_lshrrev_b32", A, "3", N), valu("v_mul_u32_u24", "v0", "3072", A), valu("v_and_b32", "v1", "7", N), valu("v_lshl_add_u32", "v0", "v1", "7", "v0")]
    for e in range(2):
        o += [valu("v_add_u32", A, str(4 * e), G), valu("v_xor_b32", A, A, "v1"), valu("v_lshl_add_u32", KA[e], A, "4", "v0"), valu("v_add_u32", QA[e], sSTG, KA[e])]
    o += [valu("v_lshrrev_b32", "v2", "5", L), valu("v_mul_u32_u24", "v3", "3072", "v2"), valu("v_and_b32", A, "31", L), valu("v_lshl_add_u32", "v3", A, "4", "v3"),
          valu("v_add_u32", "v3", sSTG, "v3"), valu("v_add_u32", OW, "3072", "v3")]
    o += [valu("v_lshrrev_b32", A, "3", L), valu("v_mul_u32_u24", A, "384", A), valu("v_and_b32", B_, "7", L), valu("v_lshl_add_u32", VOFO, B_, "4", A)]
    o += [valu("v_lshlrev_b32", "v3", "8", "v2"), valu("v_and_b32", A, "1", G), valu("v_lshl_add_u32", "v3", A, "9", "v3"), valu("v_and_b32", A, "1", L), valu("v_lshl_add_u32", "v3", A, "7", "v3"),
          valu("v_bfe_u32", A, L, "2", "2"), valu("v_lshl_add_u32", "v3", A, "4", "v3"), valu("v_bfe_u32", A, L, "1", "1"), valu("v_lshl_add_u32", "v3", A, "3", "v3"),
          valu("v_add_u32", "v3", sSTG, "v3"), valu("v_add_u32", VDR0, "3072", "v3")]
    o += [valu("v_mov_b32", A, sWAVE), valu("v_lshlrev_b32", A, "8", A), valu("v_add_u32", A, str(FLAGS_LDS + 256), A), valu("v_lshl_add_u32", SCW, L, "2", A), valu("v_lshl_add_u32", SCR, G, "4", A)]
    o += [valu("v_lshrrev_b32", B_, "2", L), valu("v_lshrrev_b32", A, "3", B_), valu("v_mul_u32_u24", "v0", "3072", A), valu("v_and_b32", "v1", "7", B_),
          valu("v_lshl_add_u32", "v0", "v1", "7", "v0"), valu("v_and_b32", A, "1", L), valu("v_lshl_add_u32", "v0", A, "3", "v0"), valu("v_bfe_u32", "v2", L, "1", "1"),
          valu("v_lshl_add_u32", "v0", "v2", "6", "v0"), valu("v_lshrrev_b32", "v1", "1", "v1")]
    for j in range(4):
        o += [valu("v_xor_b32", A, str(j), "v1"), valu("v_lshl_add_u32", VA[j], A, "4", "v0")]
    for qb in range(4): o += [valu("v_mov_b32", MC[qb], "0xff800000"), valu("v_mov_b32", LS[qb], "0")]
    return o

def touch_pages(cfg):
    o = []
    def ld(ptr, off): o.append(salu(f"s_load_dword s4, s[{ptr}:{ptr+1}], {off}"))
    o += [sop("s_min_u32", sT[1], sWAVE, "2"), sop("s_lshl_b32", sT[1], sT[1], "5"), sop("s_add_u32", sT[1], sT[1], sXB), sop("s_mul_i32", sT[2], sT[1], "98304")]
    ld(sOP, sT[2])
    if cfg.touch > 1: ld(sQP, sT[2])
    o += [sop("s_add_u32", sT[3], sT[2], "98300")]
    ld(sOP, sT[3])
    if cfg.touch > 1:
        ld(sQP, sT[3])
        o += [sop("s_mul_hi_u32", sT[4], sT[1], "0x55555556"), sop("s_mul_i32", sT[4], sT[4], "196608")]
        ld(sKP, sT[4]); ld(sVP, sT[4])
        o += [sop("s_add_u32", sT[5], sT[4], "196604")]
        ld(sKP, sT[5]); ld(sVP, sT[5])
    return o

def start_run(cfg):
    o = head_base(sT[0], sITEM)
    o += [sop("s_add_u32", "s8", f"s{sKP}", sT[0]), sop("s_addc_u32", "s9", f"s{sKP+1}", "0"), sop("s_mov_b32", "s10", KVWIN)]
    if cfg.p2:
        il = init_loads(cfg)[:cfg.pn[0]]
        o += [x for d in il[:3] for x in d]
        o += window_srd(16, sQP, sITEM) + [sop("s_mov_b32", "s18", QWIN)]
        o += [sop("s_add_u32", "s12", f"s{sVP}", sT[0]), sop("s_addc_u32", "s13", f"s{sVP+1}", "0"), sop("s_mov_b32", "s14", KVWIN)]
        il[8] = il[8] + [sop("s_add_u32", m0reg(w, sl, cb), sRB, str(tab[sl] + cb * 896)) for w, tab, sl in (("K", KSLOT, 1), ("V", VSLOT, 0), ("V", VSLOT, 1)) for cb in range(3)]
        if cfg.qtouch:
            t_ = [salu(f"s_getreg_b32 {sT[6]}, hwreg(HW_REG_XCC_ID, 0, 1)"), sop("s_mul_i32", "s86", sT[6], "0" if cfg.nomem else "24576"), sop("s_mov_b32", "s87", "0x20000"),
                  sop("s_mov_b64", "s[84:85]", "s[16:17]"), valu("v_lshlrev_b32", "v254", "7", T[0])]
            o += t_
            tl = []
            for k in range(3 - cfg.qtouch, 3):
                tl += [sop("s_mov_b32", sT[5], str(8192 * k)), I(f"buffer_load_dword v252, v254, s[84:87], {sT[5]} offen{cfg.polq}", "G", ["v254", "s[84:87]", sT[5]], [], tag="PF")]
            il[cfg.qtat] = il[cfg.qtat] + tl
        for k, at_ in enumerate(cfg.stag):
            il[at_] = il[at_] + ([salu(f"s_cmp_lt_u32 s2, {cfg.stagwg}")] if cfg.stagwg > 1 else [salu(f"s_getreg_b32 {sT[6]}, hwreg(HW_REG_XCC_ID, 0, 1)"), salu(f"s_cmp_eq_u32 {sT[6]}, {cfg.stagwg}")]) + [salu(f"s_cbranch_scc1 L_stag{k}"), salu("s_waitcnt vmcnt(0)"), label(f"L_stag{k}")]
        o += [x for d in il[3:] for x in d]
    else:
        for m0, d in kv_dma(cfg, "K", 0, "K0"): o += [m0, nop(0), d]
        o += window_srd(16, sQP, sITEM) + [sop("s_mov_b32", "s18", QWIN)]
        for rg in range(cfg.q_early): o += q0_dma(cfg, rg)
    fill = addr_setup(); mixed = []
    for x in o:
        if x.text == "s_nop 0" and fill:
            mixed += fill[:6]; del fill[:6]
        else: mixed.append(x)
    o = mixed + fill
    if cfg.touch: o += touch_pages(cfg)
    if not cfg.p2: o += kv_advance("K", wrap=False) + [sop("s_add_u32", "s12", f"s{sVP}", sT[0]), sop("s_addc_u32", "s13", f"s{sVP+1}", "0"), sop("s_mov_b32", "s14", KVWIN)]
    o += [sop("s_mov_b32", "s20", f"s{sOP}"), sop("s_mov_b32", "s21", f"s{sOP+1}"), sop("s_mov_b32", "s22", "0"), valu("v_add_u32", VDR, "3072", VDR0)]
    if cfg.pf:
        o += [sop("s_add_u32", sT[4], sXB, "64")] + window_srd(84, sQP, sT[4])
        o += [salu(f"s_cmp_eq_u32 {sLEFT}, 3", [sLEFT], ["scc"]), sop("s_cselect_b32", "s86", "0" if cfg.nomem else str(cfg.pf * 128), "0"), sop("s_mov_b32", "s87", "0x20000"),
              sop("s_mov_b32", "s0", str(24576 // cfg.pfn)), sop("s_mov_b32", "s1", str(cfg.pfn - 1))]
    if cfg.exp == "early_o":
        o += [sop("s_add_u32", sT[4], sITEM, "64")] + window_srd(20, sOP, sT[4]) + [sop("s_mov_b32", "s22", WIN)]
    return o

def max_pass(cfg):
    L, N, G, A, B_ = T
    o = [valu("v_and_b32", N, "15", L), valu("v_lshrrev_b32", G, "4", L), valu("v_mul_u32_u24", A, "384", N), valu("v_lshl_add_u32", A, G, "4", A)]
    o += window_srd(20, sQP, sITEM) + [sop("s_mov_b32", "s22", WIN)]
    for qb in range(4):
        o.append(sop("s_mov_b32", sT[5], str(qb * 6144)))
        for s in range(6): o.append(gload(Qreg(qb, s), A, SRO, sT[5], s * 64))
    o += [sop("s_mul_hi_u32", sT[5], sITEM, "0x55555556"), sop("s_mul_i32", sT[5], sT[5], "196608"), sop("s_mov_b32", sT[6], "16")]
    o += [sop("s_mov_b32", "s20", f"s{sKP}"), sop("s_mov_b32", "s21", f"s{sKP+1}"), sop("s_mov_b32", "s22", "0" if cfg.nomem else "50331648")]
    o += [label("L_maxloop")]
    body = []
    for kb in range(2):
        if kb: body.append(sop("s_add_u32", sT[5], sT[5], "6144"))
        for s in range(6): body.append(gload(Kreg(kb, s), A, SRO, sT[5], s * 64))
    body += [sop("s_add_u32", sT[5], sT[5], "6144"), waitcnt(vm=0)]
    body += qk_mfmas() + [nop(7)]
    for qb in range(4):
        for e in range(0, 8, 2): body.append(valu("v_max3_f32", MC[qb], MC[qb], Se(qb, e), Se(qb, e + 1)))
    body += [sop("s_sub_u32", sT[6], sT[6], "1"), salu(f"s_cmp_lg_u32 {sT[6]}, 0"), salu("s_cbranch_scc1 L_maxloop")]
    return o + body + [sop("s_mov_b32", "s20", f"s{sOP}"), sop("s_mov_b32", "s21", f"s{sOP+1}"), sop("s_mov_b32", "s22", "0")]

def stamp(idx):
    if TR3: return []
    return [salu(f"s_memtime s[{64+2*idx}:{65+2*idx}]")]

def build(cfg):
    cfg._m = 68
    global WIN, KVWIN, QWIN, TR3, MODEL, CPF64
    CPF64 = cfg.cpf64
    MODEL = cfg.model
    TR3 = cfg.trace == 3
    WIN = "0" if cfg.nomem else "24576"
    KVWIN = "0" if cfg.nomem else "3072"
    QWIN = "0" if cfg.nomem else "6144"
    blk = {}
    for k in "AZOEXY": blk[k] = fixnops(iteration(cfg, k), k)
    blk["setup"] = fixnops(setup(cfg), "setup")
    blk["start"] = fixnops(start_run(cfg), "start")
    blk["max"] = max_pass(cfg)
    blk["P"] = fixnops((prologue2 if cfg.p2 else prologue)(cfg), "P")
    if cfg.p2: blk["A"] = []
    blk["F"] = fixnops(finalize(cfg), "F")
    blk["T"] = fixnops(last_block(cfg), "T")
    br = lambda t: [salu(t)]
    def item(z="Z"): return blk[z] + (br("b") if z == "Z" else []) + (blk["O"] + br("b") + blk["E"] + br("b")) * 6 + blk["O"] + br("b") + br("b") + br("b")
    mid = blk["X"] + blk["Y"] + blk["F"]
    tr1 = blk["setup"] + blk["start"] + br("b") + br("b") + blk["P"] + item("A") + mid + item() + mid + item() + blk["T"]
    tr2 = blk["setup"] + blk["start"] + br("b") + br("b") + blk["max"] + blk["P"] + item("A") + blk["T"]
    best = {}
    for tr in (tr1, tr2):
        vm = []
        for ins in tr:
            if ins.kind == "G": vm.append(ins.tag)
            if getattr(ins, "need", None):
                tag, nb = ins.need
                seen = 0; cnt = None
                for j in range(len(vm) - 1, -1, -1):
                    if vm[j] == tag:
                        if seen == 3 * (nb - 1): cnt = len(vm) - 1 - j; break
                        seen += 1
                assert cnt is not None
                best[id(ins)] = (min(cnt, best.get(id(ins), (99,))[0]), ins)
    for cnt, ins in best.values():
        ins.vm = cnt; ins.text = f"s_waitcnt vmcnt({cnt})" + (f" lgkmcnt({ins.lgkm})" if ins.lgkm is not None else "")
    for tr, n in ((tr1, "tr1"), (tr2, "tr2")):
        p = check(tr, n)
        for x in sorted(set(p)): print("HAZARD", x, file=sys.stderr)
        assert not p
    out = []
    a = out.append
    def emit(seq):
        if cfg.trace == 1 and any(seq is blk[k] for k in "AZOEXYTF"):
            a("    s_mov_b32 m0, s45"); a("    s_nop 0"); a("    v_writelane_b32 v255, s4, m0"); a("    s_add_u32 s45, s45, 1"); a("    s_nop 0"); a("    s_memtime s[4:5]")
        tp = ["    s_memtime s[4:5]", "    s_waitcnt lgkmcnt(0)", "    s_mov_b32 m0, s45", "    s_nop 0", "    v_writelane_b32 v255, s4, m0", "    s_add_u32 s45, s45, 1"]
        for i in seq:
            mk = cfg.trace == 2 and getattr(i, "mark", False)
            if mk: out.extend(tp)
            if cfg.trace == 3 and (getattr(i, "mark3", False) or (seq is blk["T"] and (i is seq[0] or i is seq[-1]))):
                out.extend([f"    s_memtime s[{cfg._m}:{cfg._m+1}]"]); cfg._m += 2
            a(("" if i.kind == "L" else "    ") + i.text)
            if mk: out.extend(tp)
    for l in """Fused attention forward, B8 H32 Sq768 Sk512 D192, bf16 in/out. Emitted by my own scheduler script (gen/gen.py).
Kernarg: +0 q, +8 k, +16 v, +24 out, +32 debug (unused), +40 ws (unused).
One 4-wave workgroup per CU (one wave per SIMD, 512 registers). Every workgroup runs three blocks of 256 query rows; the three
workgroups that share a head sit next to each other in one XCD's list so K/V are fetched from HBM once (speed only).
K/V tiles of 32 keys stream through a two-slot LDS ring by LDS-DMA; each wave keeps 64 query rows (Q fragments + O accumulators) in registers.
Per tile: S^T = K Q^T and O += P V with v_mfma_f32_16x16x32_bf16; softmax VALU, LDS reads and loads sit in the gaps between the MFMAs.
Softmax reference value: the row maximum over the first key tile. Row sums are checked at the end of every block; if any reaches 2^40
(the reference was far below the true maximum) the workgroup recomputes that block with the exact row maximum (L_max pass + rerun).
Next block's Q and previous block's O travel through a per-wave LDS staging area during the main loop.""".split("\n"): a("; " + l)
    a("; @launch grid=(256,1,1) block=(256,1,1) lds=163840")
    a('.amdgcn_target "amdgcn-amd-amdhsa--gfx950"'); a(".text"); a(f".globl {NAME}"); a(".p2align 8"); a(f".type {NAME},@function"); a(f"{NAME}:")
    emit(blk["setup"])
    a("L_run:")
    emit(blk["start"])
    a(f"    s_cmp_lg_u32 {sMODE}, 0"); a("    s_cbranch_scc1 L_max")
    a("L_k0:")
    if cfg.trace: a("    s_mov_b32 s45, 0"); a("    s_mov_b32 s4, s60")
    if cfg.trace == 2: a("    v_writelane_b32 v255, s4, 0"); a("    s_mov_b32 s45, 1")
    if cfg.stamps: emit(stamp(2))
    emit(blk["P"])
    if cfg.stamps: emit(stamp(8))
    a(".p2align 3")
    emit(blk["A"])
    a(f".p2align {cfg.oalign}"); a("L_O:")
    emit(blk["O"])
    a("    s_cbranch_scc1 L_X")
    a(".p2align 3")
    emit(blk["E"])
    a("    s_branch L_O")
    a(".p2align 6")
    if cfg.shift: a(f".fill {cfg.shift // 4}, 4, 0xbf800000")
    a("L_X:")
    a(f"    s_cmp_eq_u32 {sLEFT}, 1"); a("    s_cbranch_scc1 L_T")
    emit(blk["X"])
    a(".p2align 3")
    if cfg.stamps: a("    s_mov_b64 s[72:73], s[74:75]"); a("    s_nop 0"); emit(stamp(5))
    emit(blk["Y"])
    emit(blk["F"])
    a(".p2align 3"); a("L_Z:")
    if cfg.stamps: emit(stamp(7))
    emit(blk["Z"])
    a("    s_branch L_O")
    a(".p2align 6"); a("L_T:")
    if cfg.stamps: emit(stamp(9))
    emit(blk["T"])
    if cfg.stamps: emit(stamp(3))
    a(f"    s_cmp_lg_u32 {sMODE}, 0"); a("    s_cbranch_scc1 L_todo")
    a(f"    v_mov_b32 v0, {sFLAG}"); a(f"    s_lshl_b32 {sT[0]}, {sWAVE}, 2"); a(f"    s_add_u32 {sT[0]}, {sT[0]}, {FLAGS_LDS}"); a(f"    v_mov_b32 v1, {sT[0]}")
    a("    ds_write_b32 v1, v0"); a("    s_waitcnt lgkmcnt(0)"); a("    s_barrier")
    a(f"    v_mov_b32 v1, {FLAGS_LDS}"); a("    ds_read_b128 v[4:7], v1"); a("    s_waitcnt lgkmcnt(0)")
    a("    v_or_b32 v4, v4, v5"); a("    v_or3_b32 v4, v4, v6, v7"); a("    s_nop 1"); a(f"    v_readfirstlane_b32 {sTODO}, v4"); a(f"    s_mov_b32 {sMODE}, 1"); a("    s_nop 3")
    a("L_todo:")
    a(f"    s_and_b32 {sTODO}, {sTODO}, 7")
    a(f"    s_cbranch_scc0 L_fin")
    a(f"    s_ff1_i32_b32 {sNN}, {sTODO}"); a(f"    s_bitset0_b32 {sTODO}, {sNN}")
    a(f"    s_lshl_b32 {sITEM}, {sNN}, 5"); a(f"    s_add_u32 {sITEM}, {sITEM}, {sXB}"); a(f"    s_mov_b32 {sLEFT}, 1")
    a("    s_waitcnt vmcnt(0) lgkmcnt(0)"); a("    s_barrier"); a("    s_branch L_run")
    a("L_fin:")
    if cfg.stamps:
        a("    s_waitcnt vmcnt(0)")
        a("    s_memtime s[64:65]"); a("    s_memrealtime s[66:67]"); a("    s_waitcnt lgkmcnt(0)")
        a(f"    s_cmp_lg_u32 {sWAVE}, 0"); a("    s_cbranch_scc1 L_end")
        if cfg.stamps == 2:
            a("    s_not_b32 s76, s62"); a("    s_sub_u32 s77, s64, s60"); a("    s_sub_u32 s78, s68, s60"); a("    s_sub_u32 s79, s70, s60"); a("    s_sub_u32 s80, s72, s60")
            a("    s_sub_u32 s81, s66, s62"); a("    s_not_b32 s82, s66"); a("    s_not_b32 s83, s77"); a("    s_not_b32 s84, s78")
            srcs = [66, 76, 62, 82, 77, 83, 78, 84, 79, 80, 81]
            for i, s in enumerate(srcs): a(f"    v_mov_b32 v{i}, s{s}")
            a("    v_mov_b32 v16, 0"); a("    s_mov_b64 exec, 1")
            for i in range(len(srcs)): a(f"    buffer_atomic_umax v{i}, v16, s[56:59], 0 offen offset:{4*i}")
        else:
            order = [2, 8, 4, 5, 7, 9, 3, 0, 0, 0, 0, 0] if cfg.trace != 3 else [2, 3, 4, 5, 6, 7, 8, 9, 10, 11, 0, 0]
            src = [60, 61, 64, 65, 62, 63, 66, 67] + [x for k in order for x in (64 + 2 * k, 65 + 2 * k)]
            for i, s in enumerate(src): a(f"    v_mov_b32 v{i}, s{s}")
            if cfg.trace:
                a("    s_mov_b32 m0, s45"); a("    s_nop 0"); a("    v_writelane_b32 v255, s4, m0"); a("    v_lshlrev_b32 v33, 2, v251"); a("    s_lshl_b32 s41, s2, 8"); a("    s_add_u32 s41, s41, 0x100000")
                a("    buffer_store_dword v255, v33, s[56:59], s41 offen")
            a("    s_lshl_b32 s41, s2, 7"); a("    v_mov_b32 v32, 0"); a("    s_mov_b64 exec, 1")
            for i in range(8): a(f"    buffer_store_dwordx4 v[{4*i}:{4*i+3}], v32, s[56:59], s41 offen offset:{16*i}")
    a("L_end:"); a("    s_endpgm")
    a("L_max:")
    emit(blk["max"])
    a("    s_branch L_k0")
    if cfg.tailpad:
        a("; unreachable filler (end-of-program encodings): instruction fetch runs several KiB ahead of the program counter, so the code prefetch covers this too")
        a(f".fill {cfg.tailpad // 4}, 4, 0xbf810000")
    a("L_last:"); a("    s_endpgm")
    if cfg.cpf: a(f".set CODE_BYTES, L_last - L_pc")
    a('.section .rodata,"a"'); a(".p2align 6"); a(f".amdhsa_kernel {NAME}")
    for l in ["next_free_vgpr 512", "next_free_sgpr 102", "accum_offset 256", "group_segment_fixed_size 0", "kernarg_size 48", "user_sgpr_count 2",
              "user_sgpr_kernarg_segment_ptr 1", "system_sgpr_workgroup_id_x 1"]: a("  .amdhsa_" + l)
    a(".end_amdhsa_kernel")
    return "\n".join(out) + "\n"

if __name__ == "__main__":
    kw = {}
    for x in sys.argv[2:]:
        k, v = x.split("=", 1)
        kw[k] = ((" " + v.replace("+", " ")) if v != "-" else "") if k.startswith("pol") else eval(v)
    import subprocess, tempfile, os, io, contextlib
    cfg = Cfg(**kw)
    txt = build(cfg)
    if cfg.ophase is not None:
        with tempfile.TemporaryDirectory() as d:
            open(d + "/t.s", "w").write(txt)
            subprocess.run(["clang", "-x", "assembler", "-target", "amdgcn-amd-amdhsa", "-mcpu=gfx950", "-c", d + "/t.s", "-o", d + "/t.o"], check=True)
            nm = subprocess.run(["llvm-objdump", "-t", d + "/t.o"], capture_output=True, text=True).stdout
        addr = {l.split()[-1]: int(l.split()[0], 16) for l in nm.splitlines() if ".text" in l}
        cfg.pad = (cfg.ophase - addr["L_O"]) % 128
        with contextlib.redirect_stderr(io.StringIO()): txt = build(cfg)
    open(sys.argv[1], "w").write(txt)
```
